```python
import torch

def _softmax(x, axis=-1):
    return torch.softmax(x, dim=axis)
def _gelu(x):
    return torch.nn.functional.gelu(x, approximate="tanh")
def _silu(x):
    return torch.nn.functional.silu(x)
def _sigmoid(x):
    return torch.sigmoid(x)
def _layernorm(x, axis=-1, eps=1e-5):
    m = x.mean(dim=axis, keepdim=True)
    v = x.var(dim=axis, keepdim=True, unbiased=False)
    return (x - m) / torch.sqrt(v + eps)
def _scatter_add(tgt, idx, src, axis=0):
    return tgt.clone().index_add_(axis, idx, src)
def _segment_sum(src, seg, n):
    out = torch.zeros((n,) + src.shape[1:], dtype=src.dtype)
    return out.index_add_(0, seg, src)
def _pad(x, pw):
    flat = tuple(v for pair in reversed(pw) for v in pair)
    return torch.nn.functional.pad(x, flat)

kernel_name = 'parallel_sum__ssm_conv_s4d__mixer_channel_mlp__prompt'

def setup_inputs():

    _w = (lambda a: (lambda t: t.to(torch.bfloat16) if t.is_floating_point() else t)(torch.as_tensor(a)))
    def _A_setup():
        Bsz, L, D, N = 1, 2048, 512, 128
        return {
            "u": _w((lambda *s: torch.randn(*s, dtype=torch.bfloat16) * 0.05)(Bsz, L, D)),
            "log_A_real": _w((lambda *s: torch.randn(*s, dtype=torch.bfloat16) * 3.2)(D, N) * 0.5),
            "A_imag": _w((lambda *s: torch.randn(*s, dtype=torch.bfloat16) * 0.05)(D, N) * 3.14),
            "C_real": _w((lambda *s: torch.randn(*s, dtype=torch.bfloat16) * 0.1)(D, N) / N ** 0.5),
            "C_imag": _w((lambda *s: torch.randn(*s, dtype=torch.bfloat16) * 0.2)(D, N) / N ** 0.5),
            "log_dt": _w((lambda *s: torch.randn(*s, dtype=torch.bfloat16) * 0.05)(D) * 0.5 - 4.0),
            "D_skip": _w((lambda *s: torch.randn(*s, dtype=torch.bfloat16) * 0.05)(D)),
        }
    _A_in = _A_setup()

    def _B_setup():
        B, S, D, F = 1, 2048, 512, 1376
        return {
            "x": _w((lambda *s: torch.randn(*s, dtype=torch.bfloat16) * 0.05)(B, S, D)),
            "w1": _w((lambda *s: torch.randn(*s, dtype=torch.bfloat16) * 1.6)(D, F) * (D ** -0.5)),
            "b1": _w((lambda *s: torch.randn(*s, dtype=torch.bfloat16) * 0.8)(F)),
            "w2": _w((lambda *s: torch.randn(*s, dtype=torch.bfloat16) * 0.05)(F, D) * (F ** -0.5)),
            "b2": _w((lambda *s: torch.randn(*s, dtype=torch.bfloat16) * 0.05)(D)),
        }
    _B_in = _B_setup()

    return {
        "A_u": _A_in["u"],
        "A_log_A_real": _A_in["log_A_real"],
        "A_A_imag": _A_in["A_imag"],
        "A_C_real": _A_in["C_real"],
        "A_C_imag": _A_in["C_imag"],
        "A_log_dt": _A_in["log_dt"],
        "A_D_skip": _A_in["D_skip"],
        "B_x": _B_in["x"],
        "B_w1": _B_in["w1"],
        "B_b1": _B_in["b1"],
        "B_w2": _B_in["w2"],
        "B_b2": _B_in["b2"],
    }

def reference(A_u, A_log_A_real, A_A_imag, A_C_real, A_C_imag, A_log_dt, A_D_skip, B_x, B_w1, B_b1, B_w2, B_b2):
    def _A_ref(u, log_A_real, A_imag, C_real, C_imag, log_dt, D_skip):
        L = u.shape[1]
        dt = torch.exp(log_dt)
        A = -torch.exp(log_A_real) + 1j * A_imag
        C = (C_real + 1j * C_imag) * dt[:, None]
        pos = (lambda x, dt: x.to(dt))(torch.arange(L), log_dt.dtype)
        P = torch.exp((A * dt[:, None])[:, :, None] * pos[None, None, :])
        K = 2.0 * torch.einsum("dn,dnl->dl", C, P).real
        L2 = 2 * L
        u_t = (lambda x, *d: x.permute(*d))(u, 0, 2, 1)
        Kf = (lambda x, *a, **k: torch.fft.rfft(x.float(), *a, **k))(K, L2)
        Uf = (lambda x, *a, **k: torch.fft.rfft(x.float(), *a, **k))(u_t, L2)
        y = (lambda x, *a, **k: torch.fft.irfft(x, *a, **k).to(torch.bfloat16))(Uf * Kf[None, :, :], L2)[:, :, :L]
        y = (lambda x, *d: x.permute(*d))(y, 0, 2, 1)
        return y + u * D_skip[None, None, :]

    def _B_ref(x, w1, b1, w2, b2):
        y = _layernorm(x, axis=-1)
        h = _gelu(torch.einsum("bsd,df->bsf", y, w1) + b1)
        return torch.einsum("bsf,fd->bsd", h, w2) + b2

    x = A_u
    xn = _layernorm(x, axis=-1)
    return x + _A_ref(xn, A_log_A_real, A_A_imag, A_C_real, A_C_imag, A_log_dt, A_D_skip) + _B_ref(xn, B_w1, B_b1, B_w2, B_b2)
```

```python
import re

TRANS = ("v_exp_f32","v_log_f32","v_rcp_f32","v_rsq_f32","v_sqrt_f32","v_sin_f32","v_cos_f32","v_rcp_iflag_f32")

def regs_of(op):
    op = op.strip()
    op = re.sub(r'^-', '', op); op = re.sub(r'^abs\((.*)\)$', r'\1', op); op = op.strip('|')
    m = re.fullmatch(r'([vsa])\[(\d+):(\d+)\]', op)
    if m: return [(m.group(1), i) for i in range(int(m.group(2)), int(m.group(3))+1)]
    m = re.fullmatch(r'([vsa])(\d+)', op)
    if m: return [(m.group(1), int(m.group(2)))]
    if op == 'vcc': return [('s','vcc_lo'),('s','vcc_hi')]
    if op in ('vcc_lo','vcc_hi'): return [('s',op)]
    if op == 'exec': return [('s','exec')]
    if op == 'm0': return [('s','m0')]
    return []

class Ins:
    def __init__(self, text):
        self.text = text
        t = text.split(';')[0].strip()
        self.is_label = t.endswith(':')
        self.is_dir = t.startswith('.')
        self.op = ''
        self.dst = []; self.src = []
        self.base = ''; self.dpp = False; self.mods = ''
        if self.is_label or self.is_dir or not t:
            self.kind = 'none'; return
        parts = t.split(None, 1)
        op = parts[0]; self.op = op
        rest = parts[1] if len(parts) > 1 else ''
        ops = [o.strip() for o in re.split(r',(?![^\[]*\])', rest)] if rest else []
        clean = []
        self.mods = ''
        for i,o in enumerate(ops):
            toks = o.split()
            if not toks: continue
            clean.append(toks[0])
            if len(toks) > 1: self.mods += ' ' + ' '.join(toks[1:])
        self.ops = clean
        base = re.sub(r'_(e32|e64|dpp|sdwa)$', '', op)
        self.base = base
        self.dpp = op.endswith('_dpp') or 'quad_perm' in self.mods or 'row_' in self.mods or 'wave_' in self.mods
        R = lambda idxs: [r for i in idxs if i < len(clean) for r in regs_of(clean[i])]
        if base.startswith('v_mfma'):
            self.kind = 'mfma'
            self.dst = R([0]); self.srcab = R([1,2]); self.srcc = R([3]); self.src = self.srcab + self.srcc
            self.passes = 8 if '32x32' in base else 4
            if '32x32x2_f32' in base or '16x16x4_f32' in base: raise Exception('sgemm unsupported')
        elif base.startswith('v_cmp'):
            self.kind = 'valu'; self.dst = R([0]); self.src = R(range(1,len(clean)))
            if base.startswith('v_cmpx'): self.dst += [('s','exec')]
        elif base in ('v_readfirstlane_b32','v_readlane_b32'):
            self.kind = 'valu'; self.dst = R([0]); self.src = R(range(1,len(clean))); self.lane_read = True
        elif base.startswith('v_permlane') and 'swap' in base:
            self.kind = 'valu'; self.dst = R([0,1]); self.src = R([0,1]); self.perm = True
        elif base.startswith('v_'):
            self.kind = 'valu'
            self.dst = R([0]); self.src = R(range(1,len(clean)))
            if base in ('v_add_co_u32','v_sub_co_u32','v_addc_co_u32','v_subb_co_u32','v_subrev_co_u32','v_mad_u64_u32','v_div_scale_f32'):
                self.dst = R([0,1]); self.src = R(range(2,len(clean)))
            if base in ('v_fmac_f32','v_dot2c_f32_bf16','v_pk_fmac_f16','v_fmac_f16','v_writelane_b32'): self.src += self.dst
            if base == 'v_cndmask_b32' and len(clean) == 3: self.src += regs_of('vcc')
            if base in ('v_cndmask_b32',) : self.maskread = True
            if self.dpp and base == 'v_mov_b32': self.src += self.dst
        elif base.startswith('ds_'):
            self.kind = 'ds'
            if base.startswith('ds_read') or base.startswith('ds_bpermute') or base.startswith('ds_permute') or base.startswith('ds_swizzle'):
                self.dst = R([0]); self.src = R(range(1,len(clean)))
            else:
                self.src = R(range(0,len(clean)))
            if 'addtid' in base: self.src += [('s','m0')]
        elif base.startswith('buffer_') or base.startswith('global_') or base.startswith('flat_'):
            self.kind = 'vmem'
            lds = (' lds' in (' '+self.mods+' ')) or '_lds_' in base
            self.lds = lds
            if base.startswith('buffer_wbl2') or base.startswith('buffer_inv'):
                pass
            elif 'store' in base:
                self.src = R(range(0,len(clean))); self.store = True
                self.wide = ('x3' in base or 'x4' in base)
                if base.startswith('buffer_'): self.sdata = R([0])
                else: self.sdata = R([1])
            elif 'atomic' in base:
                if 'sc0' in self.mods: self.dst = R([0]); self.src = R(range(1,len(clean)))
                else: self.src = R(range(0,len(clean)))
            elif lds:
                self.src = R(range(0,len(clean))) + [('s','m0')]
            else:
                self.dst = R([0]); self.src = R(range(1,len(clean)))
        elif base.startswith('s_'):
            self.kind = 'salu'
            if base in ('s_waitcnt','s_nop','s_barrier','s_endpgm','s_branch','s_sleep','s_setprio') or base.startswith('s_cbranch') or base.startswith('s_cmp') or base.startswith('s_bitcmp'):
                self.src = R(range(0,len(clean)))
            else:
                self.dst = R([0]); self.src = R(range(1,len(clean)))
                if 'saveexec' in base: self.dst += [('s','exec')]
        else:
            raise Exception('unknown op '+text)
    def slots(self):
        if self.kind == 'none': return 0
        if self.op == 's_nop': return int(self.ops[0], 0) + 1
        return 1

def fix_hazards(lines, verbose=False):
    ins = [Ins(l) for l in lines]
    out = []
    hist = []
    def need(cur):
        req = 0
        dist = 0
        for p in reversed(hist):
            if dist >= 20: break
            if p.kind in ('none',): continue
            w = 0
            pd = set(p.dst)
            if p.kind == 'valu' or p.kind == 'mfma':
                vd = {r for r in pd if r[0] in 'va'}
                sd = {r for r in pd if r[0] == 's'}
            if p.kind == 'valu':
                if p.base.startswith('v_dot'):
                    if cur.base == p.base:
                        ab = set(cur.src) - set(cur.dst)
                        if vd & ab: w = max(w, 3)
                    elif vd & (set(cur.src) | set(cur.dst)): w = max(w, 3)
                if cur.kind == 'mfma' and vd & set(cur.src): w = max(w, 2)
                if cur.kind == 'valu':
                    if getattr(cur,'lane_read',False) and vd & set(cur.src): w = max(w, 1)
                    if getattr(cur,'perm',False) and vd & set(cur.src): w = max(w, 2)
                    if cur.dpp and vd & set(cur.src): w = max(w, 2)
                    if p.base in TRANS and vd & set(cur.src) and cur.base not in TRANS: w = max(w, 1)
                    if p.base in TRANS and vd & set(cur.src) and cur.base in TRANS: w = max(w, 1)
                    if sd & set(cur.src) - {('s','exec')}: w = max(w, 2)
                    if ('s','exec') in sd and (cur.dpp): w = max(w, 5)
                    if ('s','exec') in sd and (getattr(cur,'lane_read',False) or getattr(cur,'perm',False)): w = max(w, 4)
                    if getattr(cur,'lane_read',False) and sd & set(cur.src): w = max(w,4)
                    if ('op_sel' in p.mods and not p.base.startswith('v_pk')) or 'sdwa' in p.op:
                        if vd & set(cur.src): w = max(w,1)
                if cur.kind == 'vmem' and sd & set(cur.src): w = max(w, 5)
                if cur.kind == 'mfma' and ('s','exec') in sd: w = max(w, 4)
                if cur.kind == 'salu' and sd & set(cur.src): w = max(w, 3)
            if p.kind == 'mfma':
                n_ab = {4:8, 8:12}[p.passes]; n_rd = {4:8, 8:12}[p.passes]; n_part = {4:6, 8:10}[p.passes]; n_war = {4:3, 8:7}[p.passes]
                if cur.kind == 'mfma':
                    if vd & set(cur.srcab): w = max(w, n_ab)
                    if vd & set(cur.srcc):
                        if not (cur.srcc == p.dst and cur.passes == p.passes): w = max(w, n_part)
                    if vd & set(cur.dst) and not (cur.srcc == p.dst and cur.dst == p.dst and cur.passes == p.passes):
                        w = max(w, n_part)
                elif cur.kind in ('valu','ds','vmem'):
                    if vd & (set(cur.src) | set(cur.dst)): w = max(w, n_rd)
                    if cur.kind == 'valu' and set(p.srcc) & set(cur.dst): w = max(w, n_war)
            if p.kind == 'salu':
                if ('s','m0') in pd and ('s','m0') in cur.src and cur.kind in ('vmem','ds'): w = max(w, 1)
                if ('s','exec') in pd and cur.kind == 'valu' and cur.dpp: w = max(w, 1)
            if p.kind == 'vmem' and getattr(p,'store',False) and getattr(p,'wide',False):
                if set(p.sdata) & set(cur.dst) and cur.kind in ('valu','mfma','ds','vmem'): w = max(w, 2)
            if w > dist: req = max(req, w - dist)
            dist += p.slots()
        return req
    for i, c in enumerate(ins):
        if c.kind != 'none':
            r = need(c)
            while r > 0:
                k = min(r, 16)
                n = Ins(f"    s_nop {k-1}")
                out.append(n); hist.append(n); r -= k
        out.append(c)
        if c.kind != 'none': hist.append(c)
        if len(hist) > 64: hist = hist[-40:]
    labels = {}
    for i,c in enumerate(out):
        if c.is_label: labels[c.text.split(';')[0].strip()[:-1]] = i
    problems = []
    for i,c in enumerate(out):
        if c.kind == 'salu' and (c.base.startswith('s_cbranch') or c.base == 's_branch'):
            tgt = c.ops[0]
            if tgt in labels:
                j = labels[tgt]
                hist = [x for x in out[max(0,i-40):i+1] if x.kind != 'none']
                for k in range(j, min(j+30, len(out))):
                    x = out[k]
                    if x.kind == 'none': continue
                    r = need(x)
                    if r > 0: problems.append((c.text.strip(), x.text.strip(), r))
                    hist.append(x)
    if problems:
        for p in problems: print("HAZARD across branch:", p)
        raise Exception("hazards across branches")
    return [c.text for c in out]

class Asm:
    def __init__(self):
        self.lines = []
        self.uid = 0
    def e(self, s):
        for l in s.split('\n'):
            if l.strip(): self.lines.append('    ' + l.strip() if not l.strip().endswith(':') else l.strip())
    def label(self, name): self.lines.append(name + ':')
    def newlabel(self, p='L'):
        self.uid += 1; return f"{p}_{self.uid}"
    def c(self, s): self.lines.append('    ; ' + s)
    def text(self, fix=True):
        ls = fix_hazards(self.lines) if fix else self.lines
        return '\n'.join(ls) + '\n'

D_FMT = """.amdhsa_kernel {name}
  .amdhsa_next_free_vgpr {vgpr}
  .amdhsa_next_free_sgpr {sgpr}
  .amdhsa_accum_offset {accum}
  .amdhsa_group_segment_fixed_size 0
  .amdhsa_kernarg_size 120
  .amdhsa_user_sgpr_count 2
  .amdhsa_user_sgpr_kernarg_segment_ptr 1
  .amdhsa_system_sgpr_workgroup_id_x 1
  .amdhsa_float_denorm_mode_32 3
  .amdhsa_float_denorm_mode_16_64 3
.end_amdhsa_kernel
"""
def build_file(header, launches, kernels):
    s = header
    for (n,g,b,l) in launches:
        s += f"; @launch kernel={n} grid=({g},1,1) block=({b},1,1) lds={l}\n"
    s += '.amdgcn_target "amdgcn-amd-amdhsa--gfx950"\n.text\n'
    for (n, body, vg, sg) in kernels:
        s += f".globl {n}\n.p2align 8\n.type {n},@function\n{n}:\n" + body + "\n"
    s += '.section .rodata,"a"\n'
    for (n, body, vg, sg) in kernels:
        s += ".p2align 6\n" + D_FMT.format(name=n, vgpr=vg, sgpr=sg, accum=min(256,(vg+3)//4*4))
    return s
```

```python
from asm import *
import struct, math
def f2u(f): return struct.unpack('<I', struct.pack('<f', f))[0]
def hx(f): return f"0x{f2u(f):08x}"

WS_H   = 0x100000
WS_XNT = 0x800000
WS_AOT = 0xA00000
WS_KR  = 0xC00000
WS_SIZE = 0x1000000
KR_STRIDE = 4224
H_RT = 43*4096

LOG2E = 1.4426950408889634
LOG2E_F = struct.unpack('<f', struct.pack('<f', LOG2E))[0]
LOG2E_LO = LOG2E - LOG2E_F
LN2 = math.log(2.0)

S_WG=2; S_WAVE=3
S_X=4; S_LOGA=6; S_AIM=8; S_CRE=10; S_CIM=12; S_LDT=14; S_DSK=16; S_BX=18
S_W1=20; S_B1=22; S_W2=24; S_B2=26; S_OUT=28; S_DBG=30; S_WS=32
SRD_X=36; SRD_W=40; SRD_WS=44; SRD_OUT=48
def sp(n): return f"s[{n}:{n+1}]"
def sq(n): return f"s[{n}:{n+3}]"
def vr(n, k): return f"v[{n}:{n+k-1}]"

def prologue(a, nwg, endlabel):
    a.e(f"""
    s_load_dwordx16 s[4:19], s[0:1], 0
    s_load_dwordx8 s[20:27], s[0:1], 64
    s_load_dwordx4 s[28:31], s[0:1], 96
    s_load_dwordx2 s[32:33], s[0:1], 112
    s_cmp_ge_u32 s2, {nwg}
    s_cbranch_scc1 {endlabel}
    v_lshrrev_b32 v1, 6, v0
    v_and_b32 v0, 63, v0
    v_readfirstlane_b32 s3, v1
    """)
def make_srd(a, srd, base, size):
    a.e(f"""
    s_mov_b32 s{srd}, s{base}
    s_and_b32 s{srd+1}, s{base+1}, 0xffff
    s_mov_b32 s{srd+2}, {size}
    s_mov_b32 s{srd+3}, 0x20000
    """)
```

```python
from common import *

KC_COPY = 4160
KC_CH = 4*KC_COPY
U_CH = 4608
U_PAD = 480

def conv_build_copies(a, C, tid_v, nthr, ldsKC_v, load_emit):
    nch = 260
    rounds = (nch + nthr - 1)//nthr
    d = C['d']; al = C['al']
    for rnd in range(rounds):
        a.e(f"v_add_u32 v{C['ck']}, {rnd*nthr}, v{tid_v}")
        a.e(f"v_cmp_gt_u32 vcc, {nch}, v{C['ck']}")
        a.e(f"s_and_saveexec_b64 s[66:67], vcc")
        load_emit(a, rnd, d)
        for i in range(5):
            a.e(f"v_alignbit_b32 v{al+i}, v{d+i+1}, v{d+i}, 16")
        a.e(f"v_lshl_add_u32 v{C['wa']}, v{C['ck']}, 4, v{ldsKC_v}")
        a.e(f"ds_write_b128 v{C['wa']}, {vr(d,4)}")
        a.e(f"ds_write_b128 v{C['wa']}, {vr(al,4)} offset:{KC_COPY}")
        a.e(f"v_add_u32 v{C['wb']}, {2*KC_COPY}, v{C['wa']}")
        a.e(f"ds_write2_b32 v{C['wb']}, v{d+1}, v{d+2} offset0:0 offset1:1")
        a.e(f"ds_write2_b32 v{C['wb']}, v{d+3}, v{d+4} offset0:2 offset1:3")
        a.e(f"v_add_u32 v{C['wb']}, {3*KC_COPY}, v{C['wa']}")
        a.e(f"ds_write2_b32 v{C['wb']}, v{al+1}, v{al+2} offset0:0 offset1:1")
        a.e(f"ds_write2_b32 v{C['wb']}, v{al+3}, v{al+4} offset0:2 offset1:3")
        a.e(f"s_mov_b64 exec, s[66:67]")

def conv_main(a, C, nr=4):
    A0, B0, A1, B1, acc = C['A0'], C['B0'], C['A1'], C['B1'], C['acc']
    def loads(A, B):
        L = []
        for m in range(8):
            L.append(f"ds_read_b128 {vr(B+4*m,4)}, v{C['ba']} offset:{512*m}")
            off = 512*(7-m)
            L.append(f"ds_read_b64 {vr(A+4*m,2)}, v{C['aa']} offset:{off}")
            L.append(f"ds_read_b64 {vr(A+4*m+2,2)}, v{C['aa']} offset:{off+8}")
        L.append(f"v_subrev_u32 v{C['aa']}, 64, v{C['aa']}")
        L.append(f"v_subrev_u32 v{C['ba']}, 64, v{C['ba']}")
        return L
    def mfmas(A, B, first):
        M = []
        for m in range(8):
            for G in range(m, 8):
                D = vr(acc+4*G,4)
                c = "0" if (first and m == 0) else D
                M.append(f"v_mfma_f32_16x16x32_bf16 {D}, {vr(A+4*m,4)}, {vr(B+4*(G-m),4)}, {c}")
        return M
    for l in loads(A0, B0): a.e(l)
    for r in range(nr):
        cur = (A0,B0) if r % 2 == 0 else (A1,B1)
        nxt = (A1,B1) if r % 2 == 0 else (A0,B0)
        a.e("s_waitcnt lgkmcnt(0)")
        M = mfmas(cur[0], cur[1], r == 0)
        L = loads(nxt[0], nxt[1]) if r < nr-1 else []
        li = 0
        for i, mm in enumerate(M):
            a.e(mm)
            if li < len(L): a.e(L[li]); li += 1
        while li < len(L): a.e(L[li]); li += 1

def conv_addr_setup(a, C, sKC, sU, sHalf, st):
    b, g, c = C['t0'], C['t1'], C['t2']
    a.e(f"""
    v_and_b32 v{b}, 15, v0
    v_lshrrev_b32 v{g}, 4, v0
    v_sub_u32 v{c}, 0, v{b}
    v_and_b32 v{c}, 3, v{c}                      ; c = (-b)&3
    v_mul_u32_u24 v{C['aa']}, {KC_COPY}, v{c}
    v_lshlrev_b32 v{C['t3']}, 3, v{g}            ; 8g
    v_sub_u32 v{C['t3']}, v{C['t3']}, v{b}
    v_sub_u32 v{C['t3']}, v{C['t3']}, v{c}       ; 8g - b - c
    v_add_u32 v{C['t3']}, {2032 - 32*56}, v{C['t3']}
    v_lshl_add_u32 v{C['aa']}, v{C['t3']}, 1, v{C['aa']}
    s_lshl_b32 s{st}, s{sHalf}, 8                ; 256*half
    s_sub_u32 s{st+1}, s{sKC}, s{st}
    v_add_u32 v{C['aa']}, s{st+1}, v{C['aa']}
    v_lshlrev_b32 v{C['ba']}, 5, v{b}
    v_lshl_add_u32 v{C['ba']}, v{g}, 4, v{C['ba']}
    s_sub_u32 s{st+1}, s{sU}, s{st}
    s_add_u32 s{st+1}, s{st+1}, 448
    v_add_u32 v{C['ba']}, s{st+1}, v{C['ba']}
    """)

def conv_vmap(base):
    C = {}
    n = base
    for k in ('aa','ba','t0','t1','t2','t3','ck','wa','wb','tid','ua'): C[k] = n; n += 1
    n = (n+3)//4*4
    C['acc'] = n; n += 32
    for k in ('A0','B0','A1','B1'): C[k] = n; n += 32
    C['d'] = C['A0']; C['al'] = C['A0'] + 8
    C['end'] = n
    return C

def conv_epilogue(a, C, sU, sD, sOutOff, srd, flags=""):
    t = C['A0']
    a.e(f"""
    v_and_b32 v{C['t0']}, 15, v0
    v_lshrrev_b32 v{C['t1']}, 4, v0
    v_lshlrev_b32 v{C['t2']}, 5, v{C['t0']}
    v_lshl_add_u32 v{C['t2']}, v{C['t1']}, 3, v{C['t2']}
    v_add_u32 v{C['ua']}, s{sU}, v{C['t2']}
    """)
    for G in range(8):
        a.e(f"ds_read_b64 {vr(t+2*G,2)}, v{C['ua']} offset:{U_PAD+512*G}")
    a.e("s_waitcnt lgkmcnt(0)")
    for G in range(8):
        y = C['acc'] + 4*G
        u0 = t + 2*G
        w = C['B0'] + 4*G
        a.e(f"""
        v_lshlrev_b32 v{w}, 16, v{u0}
        v_and_b32 v{w+1}, 0xffff0000, v{u0}
        v_lshlrev_b32 v{w+2}, 16, v{u0+1}
        v_and_b32 v{w+3}, 0xffff0000, v{u0+1}
        v_mul_f32 v{w}, s{sD}, v{w}
        v_mul_f32 v{w+1}, s{sD}, v{w+1}
        v_mul_f32 v{w+2}, s{sD}, v{w+2}
        v_mul_f32 v{w+3}, s{sD}, v{w+3}
        v_cvt_pk_bf16_f32 v{w}, v{w}, v{w+1}
        v_cvt_pk_bf16_f32 v{w+2}, v{w+2}, v{w+3}
        v_cvt_pk_bf16_f32 v{y}, v{y}, v{y+1}
        v_cvt_pk_bf16_f32 v{y+2}, v{y+2}, v{y+3}
        v_lshlrev_b32 v{w+1}, 16, v{w}
        v_and_b32 v{w}, 0xffff0000, v{w}
        v_lshlrev_b32 v{w+3}, 16, v{w+2}
        v_and_b32 v{w+2}, 0xffff0000, v{w+2}
        v_lshlrev_b32 v{y+1}, 16, v{y}
        v_and_b32 v{y}, 0xffff0000, v{y}
        v_lshlrev_b32 v{y+3}, 16, v{y+2}
        v_and_b32 v{y+2}, 0xffff0000, v{y+2}
        v_add_f32 v{w+1}, v{w+1}, v{y+1}
        v_add_f32 v{w}, v{w}, v{y}
        v_add_f32 v{w+3}, v{w+3}, v{y+3}
        v_add_f32 v{w+2}, v{w+2}, v{y+2}
        v_cvt_pk_bf16_f32 v{y}, v{w+1}, v{w}
        v_cvt_pk_bf16_f32 v{y+1}, v{w+3}, v{w+2}
        buffer_store_dwordx2 {vr(y,2)}, v{C['t2']}, {sq(srd)}, s{sOutOff} offen offset:{512*G} {flags}
        """)

def kernel_conv():
    a = Asm()
    C = conv_vmap(4)
    LDS_KC = 0; LDS_U = 2*KC_CH; LDS_RED = LDS_U + 2*U_CH
    prologue(a, 256, "Lcv_end")
    a.e(f"""
    s_lshr_b32 s52, s3, 1            ; ch
    s_lshl_b32 s53, s2, 1
    s_add_u32 s53, s53, s52          ; channel
    s_and_b32 s54, s3, 1             ; half
    s_mul_i32 s56, s52, {KC_CH}
    s_mul_i32 s57, s52, {U_CH}
    s_add_u32 s57, s57, {LDS_U}      ; U base
    v_lshl_add_u32 v{C['tid']}, s54, 6, v0
    s_waitcnt lgkmcnt(0)
    """)
    make_srd(a, SRD_WS, S_WS, WS_SIZE)
    a.e(f"""
    s_lshl_b32 s58, s53, 1
    v_mov_b32 v{C['t0']}, s58
    global_load_ushort v{C['t1']}, v{C['t0']}, {sp(S_DSK)}
    """)
    a.e(f"""
    s_lshl_b32 s59, s53, 12
    s_add_u32 s59, s59, {WS_XNT}
    v_lshlrev_b32 v{C['t2']}, 4, v{C['tid']}
    buffer_load_dwordx4 {vr(C['B0'],4)}, v{C['t2']}, {sq(SRD_WS)}, s59 offen
    buffer_load_dwordx4 {vr(C['B0']+4,4)}, v{C['t2']}, {sq(SRD_WS)}, s59 offen offset:2048
    s_mul_i32 s60, s53, {KR_STRIDE}
    s_add_u32 s60, s60, {WS_KR}
    """)
    a.e(f"""
    v_mov_b32 v{C['B1']}, 0
    v_mov_b32 v{C['B1']+1}, 0
    v_mov_b32 v{C['B1']+2}, 0
    v_mov_b32 v{C['B1']+3}, 0
    v_add_u32 v{C['t3']}, s57, v{C['t2']}
    v_cmp_gt_u32 vcc, 30, v{C['tid']}
    s_and_saveexec_b64 s[66:67], vcc
    ds_write_b128 v{C['t3']}, {vr(C['B1'],4)}
    s_mov_b64 exec, s[66:67]
    v_cmp_gt_u32 vcc, 2, v{C['tid']}
    s_and_saveexec_b64 s[66:67], vcc
    ds_write_b128 v{C['t3']}, {vr(C['B1'],4)} offset:{U_PAD+4096}
    s_mov_b64 exec, s[66:67]
    v_mov_b32 v{C['ua']}, s56
    """)
    def ld(a, rnd, d):
        a.e(f"""
        v_lshlrev_b32 v{C['wb']}, 4, v{C['ck']}
        buffer_load_dwordx4 {vr(d,4)}, v{C['wb']}, {sq(SRD_WS)}, s60 offen
        buffer_load_dwordx2 {vr(d+4,2)}, v{C['wb']}, {sq(SRD_WS)}, s60 offen offset:16
        s_waitcnt vmcnt(0)
        """)
    conv_build_copies(a, C, C['tid'], 128, C['ua'], ld)
    a.e(f"""
    s_waitcnt vmcnt(0)
    ds_write_b128 v{C['t3']}, {vr(C['B0'],4)} offset:{U_PAD}
    ds_write_b128 v{C['t3']}, {vr(C['B0']+4,4)} offset:{U_PAD+2048}
    v_lshlrev_b32 v{C['t1']}, 16, v{C['t1']}
    v_readfirstlane_b32 s61, v{C['t1']}
    """)
    conv_addr_setup(a, C, 56, 57, 54, 62)
    a.e("s_waitcnt lgkmcnt(0)")
    a.e("s_barrier")
    conv_main(a, C)
    a.e(f"""
    s_mul_i32 s62, s52, 8192
    s_add_u32 s62, s62, {LDS_RED}
    v_lshl_add_u32 v{C['t0']}, v0, 4, s62
    s_cmp_eq_u32 s54, 0
    s_cbranch_scc1 Lcv_nowr
    """)
    for G in range(8): a.e(f"ds_write_b128 v{C['t0']}, {vr(C['acc']+4*G,4)} offset:{1024*G}")
    a.e("s_waitcnt lgkmcnt(0)")
    a.label("Lcv_nowr")
    a.e("s_barrier")
    a.e("s_cmp_eq_u32 s54, 1")
    a.e("s_cbranch_scc1 Lcv_end")
    for G in range(8): a.e(f"ds_read_b128 {vr(C['A1']+4*G,4)}, v{C['t0']} offset:{1024*G}")
    a.e("s_waitcnt lgkmcnt(0)")
    for i in range(32): a.e(f"v_add_f32 v{C['acc']+i}, v{C['acc']+i}, v{C['A1']+i}")
    a.e(f"s_lshl_b32 s59, s53, 12")
    a.e(f"s_add_u32 s59, s59, {WS_AOT}")
    conv_epilogue(a, C, 57, 61, 59, SRD_WS)
    a.e("s_waitcnt vmcnt(0)")
    a.label("Lcv_end")
    a.e("s_endpgm")
    return ("cv_kernel", a.text(), C['end'], 80), LDS_RED + 16384
```

```python
from common import *
from kgen import rbf

LDS_X = 0
W1_SLOT = [65536, 90112, 0, 24576]
LDS_KG = 114688
LDS_STATS = 149504
LDS_CS = 150528
LDS_B1 = 151296
LDS_XT = 153856
G1_LDS = 162048

C0 = -2.0*LOG2E*math.sqrt(2.0/math.pi)
C1 = C0*0.044715

S_RT=52; S_CT=53; S_P=54; S_NP=55; S_ROT=56; S_LH=57; S_FH=58; S_LTA=59; S_LTB=60; S_T=62
S_GC=70
S_ONE=72

def g1_map(a):
    a.e(f"""
    s_and_b32 s{S_T}, s2, 7
    s_lshr_b32 s{S_T+1}, s2, 3
    s_lshr_b32 s{S_RT}, s{S_T}, 1
    s_lshl_b32 s{S_RT}, s{S_RT}, 3
    s_and_b32 s{S_T+2}, s{S_T+1}, 7
    s_add_u32 s{S_RT}, s{S_RT}, s{S_T+2}
    s_and_b32 s{S_CT}, s{S_T}, 1
    s_lshl_b32 s{S_CT}, s{S_CT}, 2
    s_lshr_b32 s{S_T+2}, s{S_T+1}, 3
    s_add_u32 s{S_CT}, s{S_CT}, s{S_T+2}
    s_mul_i32 s{S_P}, s{S_CT}, 43
    s_add_u32 s{S_NP}, s{S_P}, 48
    s_add_u32 s{S_P}, s{S_P}, 5
    s_lshr_b32 s{S_P}, s{S_P}, 3
    s_lshr_b32 s{S_NP}, s{S_NP}, 3
    s_sub_u32 s{S_NP}, s{S_NP}, s{S_P}
    s_lshl_b32 s{S_ROT}, s{S_CT}, 1
    s_add_u32 s{S_ROT}, s{S_ROT}, s{S_RT}
    s_and_b32 s{S_ROT}, s{S_ROT}, 7
    """)

def x_dma(a, vt0, vt1):
    a.e(f"""
    s_lshl_b32 s{S_T}, s{S_RT}, 16
    s_lshl_b32 s{S_T+1}, s3, 13
    s_add_u32 s{S_T}, s{S_T}, s{S_T+1}
    s_and_b32 s{S_T+2}, s3, 1
    s_lshl_b32 s{S_T+2}, s{S_T+2}, 3            ; (8w)&15
    s_lshl_b32 s{S_T+3}, s{S_ROT}, 3            ; 8*rot
    """)
    for i in range(8):
        a.e(f"""
        s_add_u32 s{S_T+4}, s{S_T+2}, {i}
        v_xor_b32 v{vt0}, s{S_T+4}, v0
        v_add_u32 v{vt0}, s{S_T+3}, v{vt0}
        v_and_b32 v{vt0}, 63, v{vt0}
        v_lshlrev_b32 v{vt0+i%2 if False else vt0}, 4, v{vt0}
        s_add_u32 m0, s{S_T+1}, {LDS_X + i*1024}
        s_add_u32 s{S_T+5}, s{S_T}, {i*1024}
        buffer_load_dwordx4 v{vt0}, {sq(SRD_X)}, s{S_T+5} offen lds
        """)

def w1_lane_setup(a, vp, vt):
    for p in range(3):
        a.e(f"""
        v_add_u32 v{vt}, {64*p}, v0
        v_mul_u32_u24 v{vt+1}, 2731, v{vt}
        v_lshrrev_b32 v{vt+1}, 16, v{vt+1}
        v_mul_u32_u24 v{vt+2}, 24, v{vt+1}
        v_sub_u32 v{vt+2}, v{vt}, v{vt+2}           ; c'
        v_lshrrev_b32 v{vt+3}, 1, v{vt+1}
        v_and_b32 v{vt+3}, 3, v{vt+3}
        v_lshlrev_b32 v{vt+3}, 1, v{vt+3}
        v_xor_b32 v{vt+2}, v{vt+2}, v{vt+3}         ; c = c' ^ (sigma<<1)
        v_lshrrev_b32 v{vt+3}, 2, v{vt+1}
        v_lshlrev_b32 v{vt+3}, 3, v{vt+3}           ; 8*(rho8>>2)
        v_and_b32 v{vt+1}, 3, v{vt+1}
        v_add_u32 v{vt+1}, v{vt+1}, v{vt+3}
        v_mul_u32_u24 v{vt+1}, 2752, v{vt+1}
        v_lshl_add_u32 v{vp+p}, v{vt+2}, 4, v{vt+1}
        """)

def w1_issue(a, st, vp, sHW):
    slot = W1_SLOT[st % 4]
    t = S_T
    a.e(f"""
    s_add_u32 s{t}, s{S_ROT}, {st}
    s_and_b32 s{t}, s{t}, 7
    s_lshl_b32 s{t}, s{t}, 6                 ; 64*kc
    s_lshr_b32 s{t+1}, s{sHW}, 1
    s_lshl_b32 s{t+1}, s{t+1}, 5
    s_add_u32 s{t}, s{t}, s{t+1}
    s_and_b32 s{t+1}, s{sHW}, 1
    s_lshl_b32 s{t+1}, s{t+1}, 2             ; 4*((G>>1)&1) = 4*(hw&1)
    s_add_u32 s{t}, s{t}, s{t+1}
    s_mul_i32 s{t}, s{t}, 2752
    s_lshl_b32 s{t+1}, s{S_P}, 6
    s_add_u32 s{t}, s{t}, s{t+1}
    s_mul_i32 s{t+2}, s{sHW}, 6144
    """)
    for gg in range(2):
        if gg == 1: a.e(f"s_add_u32 s{t}, s{t}, {16*2752}")
        for p in range(3):
            a.e(f"s_add_u32 m0, s{t+2}, {slot + (gg*3+p)*1024}")
            a.e(f"buffer_load_dwordx4 v{vp+p}, {sq(SRD_W)}, s{t} offen lds")

XF = 128; ACC = 80; AF0 = 32; AF1 = 56; CSA = 8; ADR = 12
def xf(lt, s): return XF + 64*lt + 4*s
def acc(f, lt): return ACC + (2*f + lt)*4

def ln_scalars(a, S, Q, mean, r12, mbf, r1, t0, t1):
    a.e(f"""
    v_mul_f32 v{mean}, {hx(1/512)}, v{S}
    v_mul_f32 v{t0}, {hx(1/512)}, v{Q}
    v_fma_f32 v{t0}, -v{mean}, v{mean}, v{t0}
    v_max_f32 v{t0}, 0, v{t0}                     ; var
    """)
    rbf(a, mbf, mean)
    rbf(a, t1, t0)
    a.e(f"v_add_f32 v{t1}, {hx(1e-5)}, v{t1}")
    rbf(a, t1, t1)
    a.e(f"v_sqrt_f32 v{t1}, v{t1}")
    rbf(a, t1, t1)
    a.e(f"v_rcp_f32 v{r1}, v{t1}")
    a.e(f"v_mul_f32 v{t0}, v{t0}, v{r1}")
    a.e(f"v_mul_f32 v{t0}, v{t0}, v{r1}")
    rbf(a, t0, t0)
    a.e(f"v_add_f32 v{t0}, {hx(1e-5)}, v{t0}")
    rbf(a, t0, t0)
    a.e(f"v_sqrt_f32 v{t0}, v{t0}")
    rbf(a, t0, t0)
    a.e(f"v_rcp_f32 v{t0}, v{t0}")
    a.e(f"v_mul_f32 v{r12}, v{r1}, v{t0}")

def xsum4(a, v, t):
    a.e(f"""
    v_mov_b32 v{t}, v{v}
    v_permlane16_swap_b32 v{v}, v{t}
    v_add_f32 v{v}, v{v}, v{t}
    v_mov_b32 v{t}, v{v}
    v_permlane32_swap_b32 v{v}, v{t}
    v_add_f32 v{v}, v{v}, v{t}
    """)

def gemm_wave_setup(a):
    a.e(f"""
    s_and_b32 s{S_LH}, s3, 1
    s_lshr_b32 s{S_FH}, s3, 1
    s_lshl_b32 s{S_LTA}, s{S_LH}, 1
    s_add_u32 s{S_LTB}, s{S_LTA}, 1
    s_sub_u32 s{S_LTB}, s{S_LTB}, s{S_FH}
    s_add_u32 s{S_LTA}, s{S_LTA}, s{S_FH}
    s_mov_b32 s{S_GC}, {hx(C0)}
    s_mov_b32 s{S_GC+1}, {hx(C1)}
    s_mov_b32 s{S_ONE}, 1.0
    s_mov_b32 s{S_ONE+1}, 1.0
    """)
    a.e(f"""
    v_lshrrev_b32 v1, 2, v0                 ; 4g + r
    v_mul_u32_u24 v2, 384, v1
    v_and_b32 v3, 3, v0
    v_lshl_add_u32 v2, v3, 3, v2            ; row*384 + 8c
    v_lshrrev_b32 v3, 1, v1
    v_and_b32 v3, 3, v3
    s_mul_i32 s{S_T}, s{S_FH}, 6
    s_lshl_b32 s{S_T+1}, s{S_LH}, 2         ; 4*lh
    """)
    for f in range(6):
        a.e(f"""
        s_add_u32 s{S_T+2}, s{S_T+1}, {f}
        s_cmp_ge_u32 s{S_T+2}, 6
        s_cselect_b32 s{S_T+3}, 6, 0
        s_sub_u32 s{S_T+2}, s{S_T+2}, s{S_T+3}
        s_add_u32 s{S_T+2}, s{S_T+2}, s{S_T}
        v_xor_b32 v4, s{S_T+2}, v3
        v_lshl_add_u32 v{ADR+f}, v4, 5, v2
        v_add_u32 v{ADR+f}, {W1_SLOT[0]}, v{ADR+f}
        """)

def gemm_load_x(a):
    a.e(f"""
    v_and_b32 v1, 15, v0
    v_lshrrev_b32 v2, 4, v0
    v_lshlrev_b32 v3, 10, v1
    s_lshl_b32 s{S_T}, s{S_LTA}, 14
    s_lshl_b32 s{S_T+1}, s{S_LTB}, 14
    """)
    for q in range(4):
        a.e(f"""
        v_add_u32 v18, {4*q}, v2
        v_xor_b32 v18, v18, v1
        v_lshl_add_u32 v18, v18, 4, v3
        v_add_u32 v{20+q}, s{S_T}, v18
        v_add_u32 v{24+q}, s{S_T+1}, v18
        """)
    n = 0
    for lt in range(2):
        for s in range(16):
            a.e(f"ds_read_b128 {vr(xf(lt,s),4)}, v{20+4*lt+(s&3)} offset:{LDS_X + (s>>2)*256}")
            n += 1
            if n % 12 == 0: a.e("s_waitcnt lgkmcnt(4)")
    a.e("v_mov_b32 v18, 0x3f803f80")
    for i in range(2, 6): a.e(f"v_mov_b32 v{i}, 0")
    a.e("s_waitcnt lgkmcnt(0)")
    for s in range(16):
        for d in range(4):
            r = xf(0,s)+d
            a.e(f"v_dot2c_f32_bf16 v{2+(d&1)}, v{r}, v18")
            a.e(f"v_dot2c_f32_bf16 v{4+(d&1)}, v{r}, v{r}")
    a.e("v_add_f32 v2, v2, v3")
    a.e("v_add_f32 v4, v4, v5")
    xsum4(a, 2, 3); xsum4(a, 4, 5)
    ln_scalars(a, 2, 4, 28, 29, 30, 31, 6, 7)
    a.e(f"""
    s_lshl_b32 s{S_T}, s{S_LTA}, 8
    s_add_u32 s{S_T}, s{S_T}, {LDS_STATS}
    v_lshl_add_u32 v6, v1, 4, s{S_T}
    v_cmp_gt_u32 vcc, 16, v0
    s_and_saveexec_b64 s[{S_T+2}:{S_T+3}], vcc
    ds_write_b128 v6, v[28:31]
    s_mov_b64 exec, s[{S_T+2}:{S_T+3}]
    s_waitcnt lgkmcnt(0)
    """)

def gemm_stage(a, st):
    if st > 0:
        d = W1_SLOT[st%4] - W1_SLOT[(st-1)%4]
        for f in range(6): a.e(f"v_add_u32 v{ADR+f}, {d & 0xffffffff:#x}, v{ADR+f}")
    def reads(sp_, buf):
        L = []
        for f in range(6):
            for h in range(2):
                L.append(f"ds_read_b64_tr_b16 {vr(buf+4*f+2*h,2)}, v{ADR+f} offset:{(32*sp_+16*h)*384}")
        return L
    def mm(sp_, buf):
        M = []
        s = 2*st + sp_
        for f in range(6):
            for lt in range(2):
                c = "0" if s == 0 else vr(acc(f,lt),4)
                M.append(f"v_mfma_f32_16x16x32_bf16 {vr(acc(f,lt),4)}, {vr(buf+4*f,4)}, {vr(xf(lt,s),4)}, {c}")
        return M
    def dots(buf):
        return [f"v_dot2c_f32_bf16 v{CSA+f}, v{buf+4*f+d}, v18" for d in range(4) for f in range(4)]
    for l in reads(0, AF0): a.e(l)
    a.e("s_waitcnt lgkmcnt(0)")
    M = mm(0, AF0); L = reads(1, AF1); D = dots(AF0)
    for i in range(12):
        a.e(M[i]); a.e(L[i])
        if i < len(D): a.e(D[i])
    for x in D[12:]: a.e(x)
    a.e("s_waitcnt lgkmcnt(0)")
    M = mm(1, AF1); D = dots(AF1)
    for i in range(12):
        a.e(M[i])
        a.e(D[i])
    for x in D[12:]: a.e(x)

def gelu_pair(a, X, T, U):
    a.e(f"""
    v_pk_mul_f32 {vr(T,2)}, {vr(X,2)}, {vr(X,2)}
    v_pk_fma_f32 {vr(T,2)}, {vr(T,2)}, s[{S_GC}:{S_GC+1}], s[{S_GC}:{S_GC+1}] op_sel:[0,1,0] op_sel_hi:[1,1,0]
    v_pk_mul_f32 {vr(T,2)}, {vr(T,2)}, {vr(X,2)}
    v_exp_f32 v{T}, v{T}
    v_exp_f32 v{T+1}, v{T+1}
    v_pk_add_f32 {vr(T,2)}, {vr(T,2)}, s[{S_ONE}:{S_ONE+1}]
    v_rcp_f32 v{T}, v{T}
    v_rcp_f32 v{T+1}, v{T+1}
    v_pk_mul_f32 {vr(X,2)}, {vr(X,2)}, {vr(T,2)}
    """)

def gemm_epilogue(a, flags=""):
    R = [32, 34]
    a.e(f"""
    v_and_b32 v1, 15, v0
    s_lshl_b32 s{S_T}, s{S_LTB}, 8
    s_add_u32 s{S_T}, s{S_T}, {LDS_STATS}
    v_lshl_add_u32 v6, v1, 4, s{S_T}
    ds_read_b64 v[36:37], v6
    v_mov_b32 v{R[0]}, v29
    v_mul_f32 v{R[0]+1}, v28, v29
    v_sub_f32 v{R[0]+1}, 0, v{R[0]+1}
    v_lshrrev_b32 v2, 4, v0
    v_lshlrev_b32 v2, 4, v2
    v_add_u32 v2, {LDS_CS}, v2
    s_waitcnt lgkmcnt(0)
    v_mov_b32 v{R[1]}, v37
    v_mul_f32 v{R[1]+1}, v36, v37
    v_sub_f32 v{R[1]+1}, 0, v{R[1]+1}
    v_lshlrev_b32 v3, 4, v0                   ; lane*16 for H store
    s_mul_i32 s{S_T+4}, s{S_RT}, {H_RT}
    s_add_u32 s{S_T+4}, s{S_T+4}, {WS_H}
    """)
    CSr, B1r, TT = 40, 48, 56
    OUT = 64
    for pp in range(3):
        t = S_T
        a.e(f"""
        s_lshl_b32 s{t}, s{S_LH}, 1
        s_add_u32 s{t}, s{t}, {pp}
        s_cmp_ge_u32 s{t}, 3
        s_cselect_b32 s{t+1}, 3, 0
        s_sub_u32 s{t}, s{t}, s{t+1}
        s_mul_i32 s{t+1}, s{S_FH}, 3
        s_add_u32 s{t}, s{t}, s{t+1}
        s_lshl_b32 s{t+1}, s{t}, 7                 ; *32 floats*4B
        v_add_u32 v4, s{t+1}, v2
        """)
        for h in range(2):
            a.e(f"ds_read_b128 {vr(CSr+4*h,4)}, v4 offset:{64*h}")
            a.e(f"ds_read_b128 {vr(B1r+4*h,4)}, v4 offset:{LDS_B1 - LDS_CS + 64*h}")
        Lskip = a.newlabel("Lg1skip")
        a.e(f"""
        s_cmp_ge_u32 s{t}, s{S_NP}
        s_cbranch_scc1 {Lskip}
        s_add_u32 s{t+2}, s{t}, s{S_P}
        s_lshl_b32 s{t+2}, s{t+2}, 12              ; ks*4096
        s_add_u32 s{t+2}, s{t+2}, s{S_T+4}
        s_waitcnt lgkmcnt(0)
        """)
        for lt in range(2):
            for h in range(2):
                A_ = acc(2*pp+h, lt)
                for q in range(2):
                    X = A_ + 2*q
                    a.e(f"v_pk_fma_f32 {vr(TT,2)}, {vr(CSr+4*h+2*q,2)}, {vr(R[lt],2)}, {vr(B1r+4*h+2*q,2)} op_sel:[0,1,0] op_sel_hi:[1,1,1]")
                    a.e(f"v_pk_fma_f32 {vr(X,2)}, {vr(X,2)}, {vr(R[lt],2)}, {vr(TT,2)} op_sel:[0,0,0] op_sel_hi:[1,0,1]")
                    gelu_pair(a, X, TT+2+2*q, None)
                    a.e(f"v_cvt_pk_bf16_f32 v{OUT+4*lt+2*h+q}, v{X}, v{X+1}")
            sl = S_LTA if lt == 0 else S_LTB
            a.e(f"""
            s_lshl_b32 s{t+3}, s{sl}, 10
            s_add_u32 s{t+3}, s{t+3}, s{t+2}
            buffer_store_dwordx4 {vr(OUT+4*lt,4)}, v3, {sq(SRD_WS)}, s{t+3} offen {flags}
            """)
        a.label(Lskip)
        a.e("s_waitcnt lgkmcnt(0)")

def cs_write(a):
    for f in range(4): xsum4(a, CSA+f, 2)
    a.e(f"""
    v_and_b32 v1, 15, v0
    v_lshlrev_b32 v1, 2, v1
    v_add_u32 v1, {LDS_CS}, v1
    s_mul_i32 s{S_T}, s{S_FH}, 6
    s_lshl_b32 s{S_T+1}, s{S_LH}, 2
    v_cmp_gt_u32 vcc, 16, v0
    s_and_saveexec_b64 s[{S_T+4}:{S_T+5}], vcc
    """)
    for f in range(4):
        a.e(f"""
        s_add_u32 s{S_T+2}, s{S_T+1}, {f}
        s_cmp_ge_u32 s{S_T+2}, 6
        s_cselect_b32 s{S_T+3}, 6, 0
        s_sub_u32 s{S_T+2}, s{S_T+2}, s{S_T+3}
        s_add_u32 s{S_T+2}, s{S_T+2}, s{S_T}
        s_lshl_b32 s{S_T+2}, s{S_T+2}, 6
        v_add_u32 v3, s{S_T+2}, v1
        ds_write_b32 v3, v{CSA+f}
        """)
    a.e(f"s_mov_b64 exec, s[{S_T+4}:{S_T+5}]")
    a.e("s_waitcnt lgkmcnt(0)")

def xn_slice(a, sHW, flags=""):
    a.e(f"""
    s_lshl_b32 s{S_T}, s{sHW}, 4
    v_lshrrev_b32 v10, 2, v0
    v_add_u32 v10, s{S_T}, v10               ; row
    v_and_b32 v11, 3, v0                     ; u
    s_sub_u32 s{S_T+1}, s{S_CT}, s{S_ROT}
    s_and_b32 s{S_T+1}, s{S_T+1}, 7
    s_lshl_b32 s{S_T+1}, s{S_T+1}, 3         ; 8*((ct-rot)&7)
    v_lshlrev_b32 v12, 1, v11
    v_add_u32 v12, s{S_T+1}, v12             ; logical chunk (first)
    v_and_b32 v13, 15, v10
    v_xor_b32 v14, v12, v13
    v_add_u32 v15, 1, v12
    v_xor_b32 v15, v15, v13
    v_lshlrev_b32 v16, 10, v10
    v_lshl_add_u32 v14, v14, 4, v16
    v_lshl_add_u32 v15, v15, 4, v16
    ds_read_b128 v[20:23], v14 offset:{LDS_X}
    ds_read_b128 v[24:27], v15 offset:{LDS_X}
    v_lshlrev_b32 v16, 4, v10
    v_add_u32 v16, {LDS_STATS}, v16
    ds_read_b64 v[28:29], v16 offset:8      ; mbf, r1
    v_lshrrev_b32 v17, 1, v10
    v_and_b32 v17, 3, v17
    v_xor_b32 v17, v17, v11
    v_lshlrev_b32 v17, 5, v17
    v_lshl_add_u32 v17, v10, 7, v17
    v_add_u32 v17, {LDS_XT}, v17
    s_waitcnt lgkmcnt(0)
    """)
    for i in range(8):
        r = 20 + i
        a.e(f"""
        v_lshlrev_b32 v30, 16, v{r}
        v_and_b32 v31, 0xffff0000, v{r}
        v_sub_f32 v30, v30, v28
        v_sub_f32 v31, v31, v28
        v_cvt_pk_bf16_f32 v30, v30, v31
        v_and_b32 v31, 0xffff0000, v30
        v_lshlrev_b32 v30, 16, v30
        v_mul_f32 v30, v30, v29
        v_mul_f32 v31, v31, v29
        v_cvt_pk_bf16_f32 v{r}, v30, v31
        """)
    a.e(f"""
    ds_write_b128 v17, v[20:23]
    ds_write_b128 v17, v[24:27] offset:16
    s_waitcnt lgkmcnt(0)
    """)

def xn_store(a, sHW, flags=""):
    a.e(f"""
    v_lshrrev_b32 v10, 4, v0                 ; gq
    v_and_b32 v11, 15, v0
    v_lshrrev_b32 v12, 2, v11                ; r
    v_and_b32 v13, 3, v0                     ; c
    v_lshl_add_u32 v14, v10, 3, v12
    v_lshlrev_b32 v14, 7, v14
    v_lshl_add_u32 v14, v13, 3, v14          ; + 8c
    v_add_u32 v14, {LDS_XT}, v14
    v_lshrrev_b32 v15, 1, v12                ; r>>1
    v_xor_b32 v16, s{sHW}, v15
    v_lshl_add_u32 v16, v16, 5, v14
    v_add_u32 v15, 2, v15
    v_xor_b32 v17, s{sHW}, v15
    v_lshl_add_u32 v17, v17, 5, v14
    """)
    for half in range(2):
        a.e(f"ds_read_b64_tr_b16 {vr(20+4*half,2)}, v16 offset:{half*32*128}")
        a.e(f"ds_read_b64_tr_b16 {vr(22+4*half,2)}, v17 offset:{half*32*128 + 4*128}")
    a.e(f"""
    v_lshlrev_b32 v18, 12, v11
    v_lshl_add_u32 v18, v10, 4, v18          ; d'*4096 + 8gq*2
    s_lshl_b32 s{S_T}, s{S_CT}, 6
    s_lshl_b32 s{S_T+1}, s{sHW}, 4
    s_add_u32 s{S_T}, s{S_T}, s{S_T+1}
    s_lshl_b32 s{S_T}, s{S_T}, 12
    s_lshl_b32 s{S_T+1}, s{S_RT}, 7
    s_add_u32 s{S_T}, s{S_T}, s{S_T+1}
    s_add_u32 s{S_T}, s{S_T}, {WS_XNT}
    s_waitcnt lgkmcnt(0)
    buffer_store_dwordx4 v[20:23], v18, {sq(SRD_WS)}, s{S_T} offen {flags}
    buffer_store_dwordx4 v[24:27], v18, {sq(SRD_WS)}, s{S_T} offen offset:64 {flags}
    """)

def b1_load(a, sHW):
    a.e(f"""
    s_lshl_b32 s{S_T}, s{sHW}, 6
    v_add_u32 v8, s{S_T}, v0                 ; t (0..255)
    s_lshl_b32 s{S_T+1}, s{S_P}, 5
    v_add_u32 v9, s{S_T+1}, v8
    v_min_u32 v9, 1375, v9
    v_lshlrev_b32 v9, 1, v9
    global_load_ushort v9, v9, {sp(S_B1)}
    """)
def b1_write(a):
    a.e(f"""
    v_lshlrev_b32 v9, 16, v9
    v_lshlrev_b32 v7, 2, v8
    v_add_u32 v7, {LDS_B1}, v7
    v_cmp_gt_u32 vcc, 192, v8
    s_and_saveexec_b64 s[{S_T}:{S_T+1}], vcc
    ds_write_b32 v7, v9
    s_mov_b64 exec, s[{S_T}:{S_T+1}]
    """)

def kernel_g1():
    a = Asm()
    prologue(a, 256, "Lg1_end")
    g1_map(a)
    a.e("s_waitcnt lgkmcnt(0)")
    make_srd(a, SRD_X, S_X, 2097152)
    make_srd(a, SRD_W, S_W1, 1409024)
    make_srd(a, SRD_WS, S_WS, WS_SIZE)
    x_dma(a, 1, 2)
    a.e("s_cmp_ge_u32 s3, 4")
    a.e("s_cbranch_scc1 Lg1_helper")
    gemm_wave_setup(a)
    for f in range(4): a.e(f"v_mov_b32 v{CSA+f}, 0")
    a.e("s_waitcnt vmcnt(0)")
    a.e("s_barrier")
    gemm_load_x(a)
    a.e("s_barrier")
    for st in range(8):
        a.e("s_barrier")
        gemm_stage(a, st)
    cs_write(a)
    a.e("s_barrier")
    gemm_epilogue(a)
    a.e("s_waitcnt vmcnt(0)")
    a.e("s_endpgm")
    a.label("Lg1_helper")
    HW = 61
    a.e(f"s_sub_u32 s{HW}, s3, 4")
    w1_lane_setup(a, 40, 44)
    b1_load(a, HW)
    w1_issue(a, 0, 40, HW)
    w1_issue(a, 1, 40, HW)
    a.e("s_waitcnt vmcnt(12)")
    b1_write(a)
    a.e("s_waitcnt lgkmcnt(0)")
    a.e("s_barrier")
    a.e("s_barrier")
    xn_slice(a, HW)
    a.e("s_waitcnt vmcnt(6)")
    a.e("s_barrier")
    xn_store(a, HW)
    w1_issue(a, 2, 40, HW)
    w1_issue(a, 3, 40, HW)
    pend = [('st',1,6),('x',0,2),('st',2,6),('st',3,6)]
    for st in range(1, 8):
        idx = [i for i,p in enumerate(pend) if p[0]=='st' and p[1]==st][0]
        rem = sum(p[2] for p in pend[idx+1:])
        pend = pend[idx+1:]
        a.e(f"s_waitcnt vmcnt({rem})")
        a.e("s_barrier")
        if st + 3 < 8:
            w1_issue(a, st+3, 40, HW)
            pend.append(('st', st+3, 6))
    a.e("s_barrier")
    a.e("s_waitcnt vmcnt(0)")
    a.label("Lg1_end")
    a.e("s_endpgm")
    return ("g1_kernel", a.text(), 256, 96)
```

```python
from common import *

P_STRIDE = 272
P_WAVE = 64*P_STRIDE
LDS_AO = 8*P_WAVE
G2_LDS = LDS_AO + 8192
W2_STAGE = 12288

S_RT2=52; S_DT=53; S_S0=54; S_NS=55; S_DR=56; S_LR=57; S_T=62
W2F = 64; ACC2 = 160
HFB = [16, 32, 48, 224, 240]
def w2f(s, d): return W2F + (4*s + d)*4
def acc2(d, l): return ACC2 + (4*d + l)*4

def g2_map(a):
    a.e(f"""
    s_and_b32 s{S_T}, s2, 7
    s_lshr_b32 s{S_T+1}, s2, 3
    s_lshl_b32 s{S_RT2}, s{S_T}, 2
    s_and_b32 s{S_T+2}, s{S_T+1}, 3
    s_add_u32 s{S_RT2}, s{S_RT2}, s{S_T+2}
    s_lshr_b32 s{S_DT}, s{S_T+1}, 2
    s_mul_i32 s{S_S0}, s3, 43
    s_add_u32 s{S_NS}, s{S_S0}, 48
    s_add_u32 s{S_S0}, s{S_S0}, 5
    s_lshr_b32 s{S_S0}, s{S_S0}, 3
    s_lshr_b32 s{S_NS}, s{S_NS}, 3
    s_sub_u32 s{S_NS}, s{S_NS}, s{S_S0}
    s_lshr_b32 s{S_DR}, s3, 1               ; d rotation
    s_and_b32 s{S_LR}, s3, 1
    s_lshl_b32 s{S_LR}, s{S_LR}, 1          ; l rotation
    """)

def w2_lane_setup(a, vD, vA):
    a.e(f"""
    v_lshrrev_b32 v1, 3, v0
    v_lshlrev_b32 v1, 10, v1
    v_lshrrev_b32 v2, 4, v0
    v_and_b32 v2, 3, v2
    v_lshlrev_b32 v2, 1, v2
    v_and_b32 v3, 7, v0
    v_xor_b32 v2, v2, v3
    v_lshl_add_u32 v{vD}, v2, 4, v1
    v_lshrrev_b32 v1, 2, v0                 ; 4g + r
    v_lshlrev_b32 v2, 7, v1
    v_and_b32 v3, 3, v0
    v_lshl_add_u32 v2, v3, 3, v2            ; row*128 + 8c
    v_lshrrev_b32 v3, 1, v1
    v_and_b32 v3, 3, v3                     ; sigma
    s_mul_i32 s{S_T}, s3, {W2_STAGE}
    v_add_u32 v2, s{S_T}, v2
    """)
    for ds in range(4):
        a.e(f"""
        s_add_u32 s{S_T+1}, s{S_DR}, {ds}
        s_and_b32 s{S_T+1}, s{S_T+1}, 3
        v_xor_b32 v1, s{S_T+1}, v3
        v_lshl_add_u32 v{vA+ds}, v1, 5, v2
        """)

def w2_dma(a, steps, vD):
    for s in steps:
        a.e(f"""
        s_add_u32 s{S_T}, s{S_S0}, {s}
        s_lshl_b32 s{S_T}, s{S_T}, 15            ; 32 rows * 1024
        s_lshl_b32 s{S_T+1}, s{S_DT}, 7
        s_add_u32 s{S_T}, s{S_T}, s{S_T+1}
        s_mul_i32 s{S_T+2}, s3, {W2_STAGE}
        """)
        for q in range(4):
            a.e(f"s_add_u32 m0, s{S_T+2}, {(s%3)*4096 + q*1024}")
            a.e(f"s_add_u32 s{S_T+1}, s{S_T}, {q*8192}")
            a.e(f"buffer_load_dwordx4 v{vD}, {sq(SRD_W)}, s{S_T+1} offen lds")

def w2_read(a, steps, vA):
    n = 0
    for s in steps:
        for ds in range(4):
            for h in range(2):
                a.e(f"ds_read_b64_tr_b16 {vr(w2f(s,ds)+2*h,2)}, v{vA+ds} offset:{(s%3)*4096 + h*2048}")
                n += 1
                if n % 12 == 0: a.e("s_waitcnt lgkmcnt(3)")
    a.e("s_waitcnt lgkmcnt(0)")

def h_load(a, s, vL, flags=""):
    buf = HFB[s % 5]
    for ls in range(4):
        a.e(f"""
        s_add_u32 s{S_T}, s{S_LR}, {ls}
        s_and_b32 s{S_T}, s{S_T}, 3
        s_lshl_b32 s{S_T}, s{S_T}, 10
        s_add_u32 s{S_T}, s{S_T}, s{S_T+6}
        s_add_u32 s{S_T}, s{S_T}, {s*4096}
        buffer_load_dwordx4 {vr(buf+4*ls,4)}, v{vL}, {sq(SRD_WS)}, s{S_T} offen {flags}
        """)

def g2_mfma(a, s):
    buf = HFB[s % 5]
    for ds in range(4):
        for ls in range(4):
            c = "0" if s == 0 else vr(acc2(ds,ls),4)
            a.e(f"v_mfma_f32_16x16x32_bf16 {vr(acc2(ds,ls),4)}, {vr(w2f(s,ds),4)}, {vr(buf+4*ls,4)}, {c}")

def ao_stage(a, vt, flags=""):
    a.e(f"""
    s_lshl_b32 s{S_T}, s3, 3
    v_lshrrev_b32 v{vt+4}, 3, v0
    v_add_u32 v{vt+4}, s{S_T}, v{vt+4}          ; d (0..63)
    v_lshlrev_b32 v{vt+5}, 12, v{vt+4}
    v_and_b32 v{vt+6}, 7, v0
    v_lshl_add_u32 v{vt+5}, v{vt+6}, 4, v{vt+5}
    s_lshl_b32 s{S_T}, s{S_DT}, 18              ; 64*dt*4096
    s_lshl_b32 s{S_T+1}, s{S_RT2}, 7
    s_add_u32 s{S_T}, s{S_T}, s{S_T+1}
    s_add_u32 s{S_T}, s{S_T}, {WS_AOT}
    buffer_load_dwordx4 {vr(vt,4)}, v{vt+5}, {sq(SRD_WS)}, s{S_T} offen {flags}
    """)
def ao_write(a, vt):
    a.e(f"""
    v_lshrrev_b32 v{vt+5}, 1, v{vt+4}
    v_and_b32 v{vt+5}, 3, v{vt+5}
    v_lshlrev_b32 v{vt+5}, 1, v{vt+5}
    v_xor_b32 v{vt+5}, v{vt+5}, v{vt+6}
    v_lshlrev_b32 v{vt+5}, 4, v{vt+5}
    v_lshl_add_u32 v{vt+5}, v{vt+4}, 7, v{vt+5}
    v_add_u32 v{vt+5}, {LDS_AO}, v{vt+5}
    ds_write_b128 v{vt+5}, {vr(vt,4)}
    """)
def ao_add(a):
    a.e(f"""
    v_lshrrev_b32 v1, 2, v0                  ; 4rg + r
    s_lshl_b32 s{S_T}, s{S_DR}, 4
    v_add_u32 v1, s{S_T}, v1                 ; row d
    v_lshlrev_b32 v2, 7, v1
    v_and_b32 v3, 3, v0
    v_lshl_add_u32 v2, v3, 3, v2
    v_add_u32 v2, {LDS_AO}, v2
    v_lshrrev_b32 v3, 1, v1
    v_and_b32 v3, 3, v3                      ; sigma
    v_xor_b32 v4, s{S_LR}, v3
    v_lshl_add_u32 v4, v4, 5, v2
    s_add_u32 s{S_T}, s{S_LR}, 1
    v_xor_b32 v5, s{S_T}, v3
    v_lshl_add_u32 v5, v5, 5, v2
    ds_read_b64_tr_b16 v[6:7], v4
    ds_read_b64_tr_b16 v[8:9], v5
    s_waitcnt lgkmcnt(0)
    """)
    for ls in range(2):
        A_ = acc2(0, ls); u = 6 + 2*ls
        a.e(f"""
        v_lshlrev_b32 v10, 16, v{u}
        v_and_b32 v11, 0xffff0000, v{u}
        v_lshlrev_b32 v12, 16, v{u+1}
        v_and_b32 v13, 0xffff0000, v{u+1}
        v_add_f32 v{A_}, v{A_}, v10
        v_add_f32 v{A_+1}, v{A_+1}, v11
        v_add_f32 v{A_+2}, v{A_+2}, v12
        v_add_f32 v{A_+3}, v{A_+3}, v13
        """)

def p_write(a):
    a.e(f"""
    v_and_b32 v1, 15, v0
    v_mul_u32_u24 v1, {P_STRIDE}, v1
    v_lshrrev_b32 v2, 4, v0
    v_lshl_add_u32 v1, v2, 4, v1              ; l'*272 + rg*16
    s_mul_i32 s{S_T}, s3, {P_WAVE}
    v_add_u32 v1, s{S_T}, v1
    """)
    for ls in range(4):
        a.e(f"""
        s_add_u32 s{S_T}, s{S_LR}, {ls}
        s_and_b32 s{S_T}, s{S_T}, 3
        s_mul_i32 s{S_T+1+ls}, s{S_T}, {16*P_STRIDE}
        """)
    for ds in range(4):
        a.e(f"""
        s_add_u32 s{S_T}, s{S_DR}, {ds}
        s_and_b32 s{S_T}, s{S_T}, 3
        s_lshl_b32 s{S_T}, s{S_T}, 6
        """)
        for ls in range(4):
            a.e(f"""
            s_add_u32 s{S_T+5}, s{S_T}, s{S_T+1+ls}
            v_add_u32 v{2+(ls&1)}, s{S_T+5}, v1
            ds_write_b128 v{2+(ls&1)}, {vr(acc2(ds,ls),4)}
            """)
    a.e("s_waitcnt lgkmcnt(0)")

def final_prefetch(a, vx):
    a.e(f"""
    s_lshl_b32 s{S_T}, s3, 3
    v_lshrrev_b32 v{vx+8}, 3, v0
    v_add_u32 v{vx+8}, s{S_T}, v{vx+8}          ; l
    v_lshlrev_b32 v{vx+8}, 10, v{vx+8}
    v_and_b32 v{vx+9}, 7, v0
    v_lshl_add_u32 v{vx+8}, v{vx+9}, 4, v{vx+8}
    s_lshl_b32 s{S_T}, s{S_RT2}, 16
    s_lshl_b32 s{S_T+1}, s{S_DT}, 7
    s_add_u32 s{S_T}, s{S_T}, s{S_T+1}
    v_add_u32 v{vx+8}, s{S_T}, v{vx+8}
    buffer_load_dwordx4 {vr(vx,4)}, v{vx+8}, {sq(SRD_X)}, 0 offen
    v_lshlrev_b32 v{vx+9}, 4, v{vx+9}
    v_add_u32 v{vx+9}, s{S_T+1}, v{vx+9}
    global_load_dwordx4 {vr(vx+4,4)}, v{vx+9}, {sp(S_B2)}
    """)

def final(a, vx):
    T = ACC2
    a.e(f"""
    s_lshl_b32 s{S_T}, s3, 3
    v_lshrrev_b32 v1, 3, v0
    v_add_u32 v1, s{S_T}, v1
    v_mul_u32_u24 v1, {P_STRIDE}, v1
    v_and_b32 v2, 7, v0
    v_lshl_add_u32 v1, v2, 5, v1
    """)
    a.e(f"v_add_u32 v2, {4*P_WAVE}, v1")
    for w in range(8):
        base = 1 if w < 4 else 2
        a.e(f"ds_read_b128 {vr(T+8*w,4)}, v{base} offset:{(w%4)*P_WAVE}")
        a.e(f"ds_read_b128 {vr(T+8*w+4,4)}, v{base} offset:{(w%4)*P_WAVE+16}")
        if w == 5: a.e("s_waitcnt lgkmcnt(4)")
    a.e("s_waitcnt lgkmcnt(0)")
    for step in (4,2,1):
        for w in range(step):
            for e in range(0,8,2):
                a.e(f"v_pk_add_f32 {vr(T+8*w+e,2)}, {vr(T+8*w+e,2)}, {vr(T+8*(w+step)+e,2)}")
    a.e("s_waitcnt vmcnt(0)")
    U = T + 8
    for q in range(4):
        a.e(f"""
        v_lshlrev_b32 v{U}, 16, v{vx+q}
        v_and_b32 v{U+1}, 0xffff0000, v{vx+q}
        v_lshlrev_b32 v{U+2}, 16, v{vx+4+q}
        v_and_b32 v{U+3}, 0xffff0000, v{vx+4+q}
        v_pk_add_f32 {vr(U,2)}, {vr(U,2)}, {vr(U+2,2)}
        v_pk_add_f32 {vr(U,2)}, {vr(U,2)}, {vr(T+2*q,2)}
        v_cvt_pk_bf16_f32 v{U+4+q}, v{U}, v{U+1}
        """)
    a.e(f"buffer_store_dwordx4 {vr(U+4,4)}, v{vx+8}, {sq(SRD_OUT)}, 0 offen")

def kernel_g2():
    a = Asm()
    prologue(a, 256, "Lg2_end")
    g2_map(a)
    a.e("s_waitcnt lgkmcnt(0)")
    make_srd(a, SRD_X, S_X, 2097152)
    make_srd(a, SRD_W, S_W2, 1409024)
    make_srd(a, SRD_WS, S_WS, WS_SIZE)
    make_srd(a, SRD_OUT, S_OUT, 2097152)
    vD, vA, vL = 4, 5, 9
    w2_lane_setup(a, vD, vA)
    a.e(f"v_lshlrev_b32 v{vL}, 4, v0")
    a.e(f"""
    s_mul_i32 s{S_T+6}, s{S_RT2}, 43
    s_add_u32 s{S_T+6}, s{S_T+6}, s{S_S0}
    s_lshl_b32 s{S_T+6}, s{S_T+6}, 12
    s_add_u32 s{S_T+6}, s{S_T+6}, {WS_H}
    """)
    w2_dma(a, [0,1,2], vD)
    a.e("s_waitcnt vmcnt(0)")
    w2_read(a, [0,1,2], vA)
    w2_dma(a, [3,4], vD)
    a.e(f"s_cmp_lt_u32 s{S_NS}, 6")
    a.e("s_cbranch_scc1 Lg2_no6a")
    w2_dma(a, [5], vD)
    a.label("Lg2_no6a")
    for s in range(5): h_load(a, s, vL)
    a.e("s_waitcnt vmcnt(20)")
    w2_read(a, [3,4,5], vA)
    for s in range(5):
        a.e(f"s_waitcnt vmcnt({4*(4-s)})")
        g2_mfma(a, s)
    a.e(f"s_cmp_lt_u32 s{S_NS}, 6")
    a.e("s_cbranch_scc1 Lg2_no6b")
    h_load(a, 5, vL)
    a.e("s_waitcnt vmcnt(0)")
    g2_mfma(a, 5)
    a.label("Lg2_no6b")
    VX = 16; VAO = 32
    ao_stage(a, VAO)
    final_prefetch(a, VX)
    a.e("s_waitcnt vmcnt(2)")
    ao_write(a, VAO)
    a.e("s_waitcnt lgkmcnt(0)")
    a.e("s_barrier")
    ao_add(a)
    p_write(a)
    a.e("s_barrier")
    final(a, VX)
    a.e("s_waitcnt vmcnt(0)")
    a.label("Lg2_end")
    a.e("s_endpgm")
    return ("g2_kernel", a.text(), 256, 96)
```

```python
from common import *

KG_TAB = 8704

def cmul(a, X, W, T):
    a.e(f"v_pk_mul_f32 {vr(T,2)}, {vr(X,2)}, {vr(W,2)} op_sel:[0,0] op_sel_hi:[1,0]")
    a.e(f"v_pk_fma_f32 {vr(X,2)}, {vr(X,2)}, {vr(W,2)}, {vr(T,2)} op_sel:[1,1,0] op_sel_hi:[0,1,1] neg_lo:[1,0,0]")

def acc_exp(a, dst, x, t, u, sL, sLlo, sLn2):
    a.e(f"""
    v_mul_f32 v{t}, s{sL}, v{x}
    v_fma_f32 v{u}, v{x}, s{sL}, -v{t}
    v_fma_f32 v{u}, v{x}, s{sLlo}, v{u}
    v_exp_f32 v{dst}, v{t}
    v_mul_f32 v{u}, s{sLn2}, v{u}
    v_fma_f32 v{dst}, v{dst}, v{u}, v{dst}
    """)
def rbf(a, dst, x):
    a.e(f"v_cvt_pk_bf16_f32 v{dst}, v{x}, v{x}")
    a.e(f"v_and_b32 v{dst}, 0xffff0000, v{dst}")

def cexp(a, Z, k, arl, rv, t0, t1, conj=False):
    a.e(f"v_mul_f32 v{t0}, {hx(float(k))}, v{arl}")
    a.e(f"v_mul_f32 v{t1}, {hx(float(-k if conj else k))}, v{rv}")
    a.e(f"v_exp_f32 v{t0}, v{t0}")
    a.e(f"v_fract_f32 v{t1}, v{t1}")
    a.e(f"v_cos_f32 v{Z}, v{t1}")
    a.e(f"v_sin_f32 v{Z+1}, v{t1}")
    a.e(f"v_mul_f32 v{Z}, v{Z}, v{t0}")
    a.e(f"v_mul_f32 v{Z+1}, v{Z+1}, v{t0}")

def kgen_load(a, V, sC, sNH, st):
    a.e(f"""
    s_lshl_b32 s{st}, s{sC}, 8
    s_lshl_b32 s{st+1}, s{sNH}, 7
    s_add_u32 s{st}, s{st}, s{st+1}
    v_lshl_add_u32 v{V['t0']}, v0, 1, s{st}
    s_lshl_b32 s{st}, s{sC}, 1
    v_mov_b32 v{V['t1']}, s{st}
    global_load_ushort v{V['la']}, v{V['t0']}, {sp(S_LOGA)}
    global_load_ushort v{V['ai']}, v{V['t0']}, {sp(S_AIM)}
    global_load_ushort v{V['cr']}, v{V['t0']}, {sp(S_CRE)}
    global_load_ushort v{V['ci']}, v{V['t0']}, {sp(S_CIM)}
    global_load_ushort v{V['dt']}, v{V['t1']}, {sp(S_LDT)}
    """)

def kgen_chunks(V, sK, tabbase_v):
    sL, sLlo, sLn2 = sK, sK+1, sK+2
    ch = []
    def setup(a):
        a.e(f"""
        s_mov_b32 s{sL}, {hx(LOG2E_F)}
        s_mov_b32 s{sLlo}, {hx(LOG2E_LO)}
        s_mov_b32 s{sLn2}, {hx(LN2)}
        v_lshlrev_b32 v{V['la']}, 16, v{V['la']}
        v_lshlrev_b32 v{V['ai']}, 16, v{V['ai']}
        v_lshlrev_b32 v{V['cr']}, 16, v{V['cr']}
        v_lshlrev_b32 v{V['ci']}, 16, v{V['ci']}
        v_lshlrev_b32 v{V['dt']}, 16, v{V['dt']}
        """)
        t0,t1,t2 = V['t0'],V['t1'],V['t2']
        acc_exp(a, t2, V['dt'], t0, t1, sL, sLlo, sLn2); rbf(a, V['dt'], t2)
        acc_exp(a, t2, V['la'], t0, t1, sL, sLlo, sLn2); rbf(a, V['la'], t2)
        a.e(f"""
        v_mul_f32 v{V['la']}, v{V['la']}, v{V['dt']}
        v_mul_f32 v{V['ai']}, v{V['ai']}, v{V['dt']}
        v_mul_f32 v{V['cr']}, v{V['cr']}, v{V['dt']}
        v_mul_f32 v{V['ci']}, v{V['ci']}, v{V['dt']}
        v_mul_f32 v{V['la']}, {hx(-LOG2E_F)}, v{V['la']}
        v_mul_f32 v{V['ai']}, {hx(1.0/(2*math.pi))}, v{V['ai']}
        """)
        arl, rv = V['la'], V['ai']
        cexp(a, V['Yo'], 1, arl, rv, t0, t1)
        cexp(a, V['Z2'], 2, arl, rv, t0, t1)
        cexp(a, V['Wc'], 32, arl, rv, t0, t1, conj=True)
        cexp(a, V['W2'], 64, arl, rv, t0, t1, conj=True)
        a.e(f"""
        v_mov_b32 v{V['Ye']}, 1.0
        v_mov_b32 v{V['Ye']+1}, 0
        v_add_f32 v{V['Xe']}, v{V['cr']}, v{V['cr']}
        v_mul_f32 v{V['Xe']+1}, -2.0, v{V['ci']}
        v_add_f32 v{V['Xo']}, v{V['cr']}, v{V['cr']}
        v_mul_f32 v{V['Xo']+1}, -2.0, v{V['ci']}
        """)
        cmul(a, V['Xo'], V['Wc'], V['T0'])
    ch.append(setup)
    def chain_step(E, O, M, row, last=False):
        def f(a):
            a.e(f"v_cvt_pk_bf16_f32 v{V['p0']}, v{E}, v{E+1}")
            a.e(f"v_cvt_pk_bf16_f32 v{V['p1']}, v{O}, v{O+1}")
            cmul(a, E, M, V['T0'])
            a.e(f"ds_write_b32 v{tabbase_v}, v{V['p0']} offset:{row*272}")
            if not last: cmul(a, O, M, V['T1'])
            a.e(f"ds_write_b32 v{tabbase_v}, v{V['p1']} offset:{(row+1)*272}")
        return f
    for i in range(16): ch.append(chain_step(V['Ye'], V['Yo'], V['Z2'], 2*i, last=(i==15)))
    def readB(a):
        a.e("s_waitcnt lgkmcnt(0)")
        for s in range(8): a.e(f"ds_read_b128 {vr(V['B']+4*s,4)}, v{V['rd']} offset:{32*s}")
        a.e("s_waitcnt lgkmcnt(0)")
    ch.append(readB)
    for t in range(2):
        for i in range(16): ch.append(chain_step(V['Xe'], V['Xo'], V['W2'], 2*i, last=(t==1 and i==15)))
        def mm(a, t=t):
            a.e("s_waitcnt lgkmcnt(0)")
            for s in range(8): a.e(f"ds_read_b128 {vr(V['A']+4*s,4)}, v{V['rd']} offset:{32*s}")
            D = V['D'] + 16*t
            for s in range(8):
                a.e(f"s_waitcnt lgkmcnt({7-s})")
                c = "0" if s == 0 else vr(D,16)
                a.e(f"v_mfma_f32_32x32x16_bf16 {vr(D,16)}, {vr(V['A']+4*s,4)}, {vr(V['B']+4*s,4)}, {c}")
        ch.append(mm)
    def fin(a):
        x = V['Xe']
        for sh in (1,2,4,8):
            a.e(f"v_add_f32_dpp v{x}, v{x}, v{x} row_shr:{sh} row_mask:0xf bank_mask:0xf bound_ctrl:0")
        a.e(f"v_add_f32_dpp v{x}, v{x}, v{x} row_bcast:15 row_mask:0xa bank_mask:0xf")
        a.e(f"v_add_f32_dpp v{x}, v{x}, v{x} row_bcast:31 row_mask:0xc bank_mask:0xf")
        for t in range(2):
            for r in range(16):
                a.e(f"ds_write_b32 v{V['fw']}, v{V['D']+16*t+r} offset:{4096*t + 128*(8*(r>>2)+(r&3))}")
        a.e(f"""
        v_cmp_eq_u32 vcc, 63, v0
        s_and_saveexec_b64 s[{sK+4}:{sK+5}], vcc
        ds_write_b32 v{V['f2k']}, v{x}
        s_mov_b64 exec, s[{sK+4}:{sK+5}]
        s_waitcnt lgkmcnt(0)
        """)
    ch.append(fin)
    return ch

def kgen_addr_setup(a, V, sTab):
    a.e(f"""
    v_lshl_add_u32 v{V['wr']}, v0, 2, s{sTab}
    v_and_b32 v{V['t0']}, 31, v0
    v_lshrrev_b32 v{V['t1']}, 5, v0
    v_mul_u32_u24 v{V['rd']}, 272, v{V['t0']}
    v_lshl_add_u32 v{V['rd']}, v{V['t1']}, 4, v{V['rd']}
    v_add_u32 v{V['rd']}, s{sTab}, v{V['rd']}
    v_lshlrev_b32 v{V['fw']}, 2, v{V['t0']}
    v_lshl_add_u32 v{V['fw']}, v{V['t1']}, 9, v{V['fw']}
    v_add_u32 v{V['fw']}, s{sTab}, v{V['fw']}
    v_mov_b32 v{V['f2k']}, s{sTab}
    v_add_u32 v{V['f2k']}, 8192, v{V['f2k']}
    """)

def kgen_vmap(base):
    V = {}
    n = base
    for k in ('la','ai','cr','ci','dt','t0','t1','t2','p0','p1','wr','rd','fw','f2k'): V[k] = n; n += 1
    n = (n+1)//2*2
    for k in ('Ye','Yo','Z2','Wc','W2','Xe','Xo','T0','T1'): V[k] = n; n += 2
    n = (n+3)//4*4
    V['B'] = n; n += 32
    V['A'] = n; n += 32
    V['D'] = n; n += 32
    V['end'] = n
    return V

def gather(a, G, tid_v, tabF0, nthreads_per_ch, emit_store):
    nch = 258
    rounds = (nch + nthreads_per_ch - 1)//nthreads_per_ch
    for rnd in range(rounds):
        a.e(f"v_add_u32 v{G['ck']}, {rnd*nthreads_per_ch}, v{tid_v}")
        a.e(f"v_lshlrev_b32 v{G['j']}, 3, v{G['ck']}")
        a.e(f"v_sub_u32 v{G['j']}, 2048, v{G['j']}")
        for e in range(8):
            t = G['t'] + e
            a.e(f"v_subrev_u32 v{t}, {e}, v{G['j']}")
            a.e(f"v_max_i32 v{t}, 0, v{t}")
            a.e(f"v_min_i32 v{t}, 2047, v{t}")
            a.e(f"v_cvt_f32_u32 v{t}, v{t}")
            a.e(f"v_cvt_pk_bf16_f32 v{t}, v{t}, v{t}")
            a.e(f"v_and_b32 v{t}, 0xffff0000, v{t}")
            a.e(f"v_cvt_u32_f32 v{t}, v{t}")
            a.e(f"v_lshl_add_u32 v{t}, v{t}, 2, v{tabF0}")
        for e in range(8):
            t = G['t'] + e
            a.e(f"ds_read_b32 v{G['f0']+e}, v{t}")
            a.e(f"ds_read_b32 v{G['f1']+e}, v{t} offset:{KG_TAB}")
        a.e("s_waitcnt lgkmcnt(0)")
        for e in range(8):
            a.e(f"v_add_f32 v{G['f0']+e}, v{G['f0']+e}, v{G['f1']+e}")
            t = G['t'] + e
            a.e(f"v_subrev_u32 v{t}, {e}, v{G['j']}")
            a.e(f"v_cmp_gt_u32 vcc, 2048, v{t}")
            a.e(f"v_cndmask_b32 v{G['f0']+e}, 0, v{G['f0']+e}, vcc")
        for q in range(4):
            a.e(f"v_cvt_pk_bf16_f32 v{G['o']+q}, v{G['f0']+2*q}, v{G['f0']+2*q+1}")
        emit_store(a, rnd)

def kernel_kgen():
    a = Asm()
    V = kgen_vmap(8)
    prologue(a, 256, "Lkg_end")
    a.e(f"""
    s_lshr_b32 s52, s3, 1
    s_lshl_b32 s53, s2, 1
    s_add_u32 s53, s53, s52          ; channel
    s_and_b32 s54, s3, 1             ; nh
    s_mul_i32 s56, s3, {KG_TAB}
    s_waitcnt lgkmcnt(0)
    """)
    kgen_load(a, V, 53, 54, 58)
    kgen_addr_setup(a, V, 56)
    make_srd(a, SRD_WS, S_WS, WS_SIZE)
    a.e("s_waitcnt vmcnt(0)")
    for f in kgen_chunks(V, 60, V['wr']): f(a)
    a.e("s_barrier")
    G = dict(ck=V['B'], j=V['B']+1, tid=V['B']+2, tab=V['B']+3, off=V['B']+4, t=V['B']+8, f0=V['A'], f1=V['A']+8, o=V['A']+16)
    a.e(f"""
    v_lshl_add_u32 v{G['tid']}, s54, 6, v0
    s_mul_i32 s57, s52, {2*KG_TAB}
    v_mov_b32 v{G['tab']}, s57
    s_mul_i32 s57, s53, {KR_STRIDE}
    s_add_u32 s57, s57, {WS_KR}
    """)
    def st(a, rnd):
        a.e(f"""
        v_lshlrev_b32 v{G['off']}, 4, v{G['ck']}
        v_cmp_gt_u32 vcc, 264, v{G['ck']}
        s_and_saveexec_b64 s[66:67], vcc
        buffer_store_dwordx4 {vr(G['o'],4)}, v{G['off']}, {sq(SRD_WS)}, s57 offen
        s_mov_b64 exec, s[66:67]
        """)
    gather(a, G, G['tid'], G['tab'], 128, st)
    a.e("s_waitcnt vmcnt(0)")
    a.label("Lkg_end")
    a.e("s_endpgm")
    return ("kg_kernel", a.text(), V['end'], 80)
```

```python
from kgen import *
from conv import *
from g1 import *
from g2 import *
k = kernel_kgen(); c, clds = kernel_conv(); g = kernel_g1(); h = kernel_g2()
hdr = "".join(l for l in open("parallel_sum__ssm_conv_s4d__mixer_channel_mlp__prompt.s.ref").read().splitlines(True) if l.startswith(";") and "@launch" not in l and "Override launch" not in l and "grid=ceil" not in l)
s = build_file(hdr, [("kg_kernel",256,256,4*KG_TAB),("g1_kernel",256,512,G1_LDS),("cv_kernel",256,256,clds),("g2_kernel",256,512,G2_LDS)], [k, g, c, h])
open("t_all.s","w").write(s)
print(len(s.splitlines()), len(s))
```

```python
from kgen import *
from conv import *
from g1 import *
from g2 import *
k = kernel_kgen(); c, clds = kernel_conv(); g = kernel_g1(); h = kernel_g2()
hdr = "".join(l for l in open("parallel_sum__ssm_conv_s4d__mixer_channel_mlp__prompt.s.ref").read().splitlines(True) if l.startswith(";") and "@launch" not in l and "Override launch" not in l and "grid=ceil" not in l)
e = ("em_kernel", "    s_endpgm\n", 32, 32)
L = [("kg_kernel",256,256,4*KG_TAB),("g1_kernel",256,512,G1_LDS),("cv_kernel",256,256,clds),("g2_kernel",256,512,G2_LDS)]
E = ("em_kernel",256,256,0)
open("v_base.s","w").write(build_file(hdr, L, [k, g, c, h]))
open("v_e1.s","w").write(build_file(hdr, L+[E], [k, g, c, h, e]))
open("v_e2.s","w").write(build_file(hdr, L+[E,E], [k, g, c, h, e]))
open("v_e0.s","w").write(build_file(hdr, [E]+L, [k, g, c, h, e]))
```

```python
import re

TRANS = ("v_exp_f32","v_log_f32","v_rcp_f32","v_rsq_f32","v_sqrt_f32","v_sin_f32","v_cos_f32","v_rcp_iflag_f32")

def regs_of(op):
    op = op.strip()
    op = re.sub(r'^-', '', op); op = re.sub(r'^abs\((.*)\)$', r'\1', op); op = op.strip('|')
    m = re.fullmatch(r'([vsa])\[(\d+):(\d+)\]', op)
    if m: return [(m.group(1), i) for i in range(int(m.group(2)), int(m.group(3))+1)]
    m = re.fullmatch(r'([vsa])(\d+)', op)
    if m: return [(m.group(1), int(m.group(2)))]
    if op == 'vcc': return [('s','vcc_lo'),('s','vcc_hi')]
    if op in ('vcc_lo','vcc_hi'): return [('s',op)]
    if op in ('exec','exec_lo','exec_hi'): return [('s','exec')]
    if op == 'm0': return [('s','m0')]
    return []

class Ins:
    def __init__(self, text):
        self.text = text
        t = text.split(';')[0].strip()
        self.is_label = t.endswith(':')
        self.is_dir = t.startswith('.')
        self.op = ''
        self.dst = []; self.src = []
        self.base = ''; self.dpp = False; self.mods = ''
        if self.is_label or self.is_dir or not t:
            self.kind = 'none'; return
        parts = t.split(None, 1)
        op = parts[0]; self.op = op
        rest = parts[1] if len(parts) > 1 else ''
        ops = [o.strip() for o in re.split(r',(?![^\[]*\])', rest)] if rest else []
        clean = []
        self.mods = ''
        for i,o in enumerate(ops):
            toks = o.split()
            if not toks: continue
            clean.append(toks[0])
            if len(toks) > 1: self.mods += ' ' + ' '.join(toks[1:])
        self.ops = clean
        base = re.sub(r'_(e32|e64|dpp|sdwa)$', '', op)
        self.base = base
        self.dpp = op.endswith('_dpp') or 'quad_perm' in self.mods or 'row_' in self.mods or 'wave_' in self.mods
        R = lambda idxs: [r for i in idxs if i < len(clean) for r in regs_of(clean[i])]
        if base.startswith('v_mfma'):
            self.kind = 'mfma'
            self.dst = R([0]); self.srcab = R([1,2]); self.srcc = R([3]); self.src = self.srcab + self.srcc
            self.passes = 8 if '32x32' in base else 4
            if '32x32x2_f32' in base or '16x16x4_f32' in base: raise Exception('sgemm unsupported')
        elif base.startswith('v_cmp'):
            self.kind = 'valu'; self.dst = R([0]); self.src = R(range(1,len(clean)))
            if base.startswith('v_cmpx'): self.dst += [('s','exec')]
        elif base in ('v_readfirstlane_b32','v_readlane_b32'):
            self.kind = 'valu'; self.dst = R([0]); self.src = R(range(1,len(clean))); self.lane_read = True
        elif base.startswith('v_permlane') and 'swap' in base:
            self.kind = 'valu'; self.dst = R([0,1]); self.src = R([0,1]); self.perm = True
        elif base.startswith('v_'):
            self.kind = 'valu'
            self.dst = R([0]); self.src = R(range(1,len(clean)))
            if base in ('v_add_co_u32','v_sub_co_u32','v_addc_co_u32','v_subb_co_u32','v_subrev_co_u32','v_mad_u64_u32','v_div_scale_f32'):
                self.dst = R([0,1]); self.src = R(range(2,len(clean)))
            if base in ('v_fmac_f32','v_dot2c_f32_bf16','v_pk_fmac_f16','v_fmac_f16','v_writelane_b32'): self.src += self.dst
            if base == 'v_cndmask_b32' and len(clean) == 3: self.src += regs_of('vcc')
            if base in ('v_cndmask_b32',) : self.maskread = True
            if self.dpp and base == 'v_mov_b32': self.src += self.dst
        elif base.startswith('ds_'):
            self.kind = 'ds'
            if base.startswith('ds_read') or base.startswith('ds_bpermute') or base.startswith('ds_permute') or base.startswith('ds_swizzle'):
                self.dst = R([0]); self.src = R(range(1,len(clean)))
            else:
                self.src = R(range(0,len(clean)))
            if 'addtid' in base: self.src += [('s','m0')]
        elif base.startswith('buffer_') or base.startswith('global_') or base.startswith('flat_'):
            self.kind = 'vmem'
            lds = (' lds' in (' '+self.mods+' ')) or '_lds_' in base
            self.lds = lds
            if base.startswith('buffer_wbl2') or base.startswith('buffer_inv'):
                pass
            elif 'store' in base:
                self.src = R(range(0,len(clean))); self.store = True
                self.wide = ('x3' in base or 'x4' in base)
                if base.startswith('buffer_'): self.sdata = R([0])
                else: self.sdata = R([1])
            elif 'atomic' in base:
                if 'sc0' in self.mods: self.dst = R([0]); self.src = R(range(1,len(clean)))
                else: self.src = R(range(0,len(clean)))
            elif lds:
                self.src = R(range(0,len(clean))) + [('s','m0')]
            else:
                self.dst = R([0]); self.src = R(range(1,len(clean)))
        elif base.startswith('s_'):
            self.kind = 'salu'
            if base in ('s_waitcnt','s_nop','s_barrier','s_endpgm','s_branch','s_sleep','s_setprio') or base.startswith('s_cbranch') or base.startswith('s_cmp') or base.startswith('s_bitcmp'):
                self.src = R(range(0,len(clean)))
            else:
                self.dst = R([0]); self.src = R(range(1,len(clean)))
                if 'saveexec' in base: self.dst += [('s','exec')]
        else:
            raise Exception('unknown op '+text)
    def slots(self):
        if self.kind == 'none': return 0
        if self.op == 's_nop': return int(self.ops[0], 0) + 1
        return 1

def check_pk(lines):
    for l in lines:
        m = re.match(r'\s*v_pk_\w+_f32\s+([^;]*)', l)
        if m:
            ops = [o.strip() for o in re.split(r',(?![^\[]*\])', m.group(1))]
            mm = re.search(r'op_sel:\[(\d),(\d)', l)
            if mm and mm.group(2) == '1' and ops[2].startswith('v'):
                raise Exception('unsafe op_sel on src1: ' + l)

def fix_hazards(lines, verbose=False):
    check_pk(lines)
    ins = [Ins(l) for l in lines]
    out = []
    hist = []
    def need(cur):
        req = 0
        dist = 0
        for p in reversed(hist):
            if dist >= 20: break
            if p.kind in ('none',): continue
            w = 0
            pd = set(p.dst)
            if p.kind == 'valu' or p.kind == 'mfma':
                vd = {r for r in pd if r[0] in 'va'}
                sd = {r for r in pd if r[0] == 's'}
            if p.kind == 'valu':
                if p.base.startswith('v_dot'):
                    if cur.base == p.base:
                        ab = set(cur.src) - set(cur.dst)
                        if vd & ab: w = max(w, 3)
                    elif vd & (set(cur.src) | set(cur.dst)): w = max(w, 3)
                if cur.kind == 'mfma' and vd & set(cur.src): w = max(w, 2)
                if cur.kind == 'valu':
                    if getattr(cur,'lane_read',False) and vd & set(cur.src): w = max(w, 1)
                    if getattr(cur,'perm',False) and vd & set(cur.src): w = max(w, 2)
                    if cur.dpp and vd & set(cur.src): w = max(w, 2)
                    if p.base in TRANS and vd & set(cur.src) and cur.base not in TRANS: w = max(w, 1)
                    if p.base in TRANS and vd & set(cur.src) and cur.base in TRANS: w = max(w, 1)
                    if sd & set(cur.src) - {('s','exec')}: w = max(w, 2)
                    if ('s','exec') in sd and (cur.dpp): w = max(w, 5)
                    if ('s','exec') in sd and (getattr(cur,'lane_read',False) or getattr(cur,'perm',False)): w = max(w, 4)
                    if getattr(cur,'lane_read',False) and sd & set(cur.src): w = max(w,4)
                    if ('op_sel' in p.mods and not p.base.startswith('v_pk')) or 'sdwa' in p.op:
                        if vd & set(cur.src): w = max(w,1)
                if cur.kind == 'vmem' and sd & set(cur.src): w = max(w, 5)
                if cur.kind == 'mfma' and ('s','exec') in sd: w = max(w, 4)
                if cur.kind == 'salu' and sd & set(cur.src): w = max(w, 3)
            if p.kind == 'mfma':
                n_ab = {4:8, 8:12}[p.passes]; n_rd = {4:8, 8:12}[p.passes]; n_part = {4:6, 8:10}[p.passes]; n_war = {4:3, 8:7}[p.passes]
                if cur.kind == 'mfma':
                    if vd & set(cur.srcab): w = max(w, n_ab)
                    if vd & set(cur.srcc):
                        if not (cur.srcc == p.dst and cur.passes == p.passes): w = max(w, n_part)
                    if vd & set(cur.dst) and not (cur.srcc == p.dst and cur.dst == p.dst and cur.passes == p.passes):
                        w = max(w, n_part)
                elif cur.kind in ('valu','ds','vmem'):
                    if vd & (set(cur.src) | set(cur.dst)): w = max(w, n_rd)
                    if cur.kind == 'valu' and set(p.srcc) & set(cur.dst): w = max(w, n_war)
            if p.kind == 'salu':
                if ('s','m0') in pd and ('s','m0') in cur.src and cur.kind in ('vmem','ds'): w = max(w, 1)
                if ('s','exec') in pd and cur.kind == 'valu' and cur.dpp: w = max(w, 1)
            if p.kind == 'vmem' and getattr(p,'store',False) and getattr(p,'wide',False):
                if set(p.sdata) & set(cur.dst) and cur.kind in ('valu','mfma','ds','vmem'): w = max(w, 2)
            if w > dist: req = max(req, w - dist)
            dist += p.slots()
        return req
    for i, c in enumerate(ins):
        if c.kind != 'none':
            r = need(c)
            while r > 0:
                k = min(r, 16)
                n = Ins(f"    s_nop {k-1}")
                out.append(n); hist.append(n); r -= k
        out.append(c)
        if c.kind != 'none': hist.append(c)
        if len(hist) > 64: hist = hist[-40:]
    labels = {}
    for i,c in enumerate(out):
        if c.is_label: labels[c.text.split(';')[0].strip()[:-1]] = i
    problems = []
    for i,c in enumerate(out):
        if c.kind == 'salu' and (c.base.startswith('s_cbranch') or c.base == 's_branch'):
            tgt = c.ops[0]
            if tgt in labels:
                j = labels[tgt]
                hist = [x for x in out[max(0,i-40):i+1] if x.kind != 'none']
                for k in range(j, min(j+30, len(out))):
                    x = out[k]
                    if x.kind == 'none': continue
                    r = need(x)
                    if r > 0: problems.append((c.text.strip(), x.text.strip(), r))
                    hist.append(x)
    if problems:
        for p in problems: print("HAZARD across branch:", p)
        raise Exception("hazards across branches")
    return [c.text for c in out]

class Asm:
    def __init__(self):
        self.lines = []
        self.uid = 0
    def e(self, s):
        for l in s.split('\n'):
            if l.strip(): self.lines.append('    ' + l.strip() if not l.strip().endswith(':') else l.strip())
    def label(self, name): self.lines.append(name + ':')
    def newlabel(self, p='L'):
        self.uid += 1; return f"{p}_{self.uid}"
    def c(self, s): self.lines.append('    ; ' + s)
    def text(self, fix=True):
        ls = fix_hazards(self.lines) if fix else self.lines
        return '\n'.join(ls) + '\n'

D_FMT = """.amdhsa_kernel {name}
  .amdhsa_next_free_vgpr {vgpr}
  .amdhsa_next_free_sgpr {sgpr}
  .amdhsa_accum_offset {accum}
  .amdhsa_group_segment_fixed_size 0
  .amdhsa_kernarg_size 120
  .amdhsa_user_sgpr_count 2
  .amdhsa_user_sgpr_kernarg_segment_ptr 1
  .amdhsa_system_sgpr_workgroup_id_x 1
  .amdhsa_float_denorm_mode_32 3
  .amdhsa_float_denorm_mode_16_64 3
.end_amdhsa_kernel
"""
def build_file(header, launches, kernels):
    s = header
    for (n,g,b,l) in launches:
        s += f"; @launch kernel={n} grid=({g},1,1) block=({b},1,1) lds={l}\n"
    s += '.amdgcn_target "amdgcn-amd-amdhsa--gfx950"\n.text\n'
    for (n, body, vg, sg) in kernels:
        s += f".globl {n}\n.p2align 8\n.type {n},@function\n{n}:\n" + body + "\n"
    s += '.section .rodata,"a"\n'
    for (n, body, vg, sg) in kernels:
        s += ".p2align 6\n" + D_FMT.format(name=n, vgpr=vg, sgpr=sg, accum=min(256,(vg+3)//4*4))
    return s
```

```python
from asm import *
import struct, math
def f2u(f): return struct.unpack('<I', struct.pack('<f', f))[0]
def hx(f): return f"0x{f2u(f):08x}"

WS_H   = 0x100000
WS_XNT = 0x800000
WS_AOT = 0xA00000
WS_KR  = 0xC00000
WS_SIZE = 0x1000000
KR_STRIDE = 4224
H_RT = 43*4096

LOG2E = 1.4426950408889634
LOG2E_F = struct.unpack('<f', struct.pack('<f', LOG2E))[0]
LOG2E_LO = LOG2E - LOG2E_F
LN2 = math.log(2.0)

S_WG=2; S_WAVE=3
S_X=4; S_LOGA=6; S_AIM=8; S_CRE=10; S_CIM=12; S_LDT=14; S_DSK=16; S_BX=18
S_W1=20; S_B1=22; S_W2=24; S_B2=26; S_OUT=28; S_DBG=30; S_WS=32
SRD_X=36; SRD_W=40; SRD_WS=44; SRD_OUT=48
def sp(n): return f"s[{n}:{n+1}]"
def sq(n): return f"s[{n}:{n+3}]"
def vr(n, k): return f"v[{n}:{n+k-1}]"

def prologue(a, nwg, endlabel):
    a.e(f"""
    s_load_dwordx16 s[4:19], s[0:1], 0
    s_load_dwordx8 s[20:27], s[0:1], 64
    s_load_dwordx4 s[28:31], s[0:1], 96
    s_load_dwordx2 s[32:33], s[0:1], 112
    s_cmp_ge_u32 s2, {nwg}
    s_cbranch_scc1 {endlabel}
    v_lshrrev_b32 v1, 6, v0
    v_and_b32 v0, 63, v0
    v_readfirstlane_b32 s3, v1
    """)
def make_srd(a, srd, base, size):
    a.e(f"""
    s_mov_b32 s{srd}, s{base}
    s_and_b32 s{srd+1}, s{base+1}, 0xffff
    s_mov_b32 s{srd+2}, {size}
    s_mov_b32 s{srd+3}, 0x20000
    """)

STAMP_OFF = 0xF00000
class Stamps:
    def __init__(self, a, on, base=76):
        self.a = a; self.on = on; self.n = 0; self.base = base; self.names = []
    want = None
    def mark(self, name):
        if not self.on: return
        if Stamps.want is not None and name not in Stamps.want: return
        assert self.base + 2*self.n + 1 <= 99, name
        r = self.base + 2*self.n
        self.a.e(f"s_memtime s[{r}:{r+1}]")
        self.names.append(name); self.n += 1
    def dump(self, vt=1):
        if not self.on: return
        a = self.a
        a.e("s_waitcnt lgkmcnt(0)")
        a.e(f"s_lshl_b32 s100, s2, 3")
        a.e(f"s_add_u32 s100, s100, s3")
        a.e(f"s_lshl_b32 s100, s100, 6")
        a.e(f"s_add_u32 s100, s100, {STAMP_OFF}")
        a.e(f"s_mov_b64 s[74:75], exec")
        a.e(f"s_mov_b64 exec, 1")
        for i in range(self.n):
            r = self.base + 2*i
            a.e(f"v_mov_b32 v{vt}, s{r}")
            a.e(f"v_mov_b32 v{vt+1}, {4*i}")
            a.e(f"buffer_store_dword v{vt}, v{vt+1}, {sq(SRD_WS)}, s100 offen")
        a.e("s_waitcnt vmcnt(0)")
        a.e(f"s_mov_b64 exec, s[74:75]")
```

```python
from common import *

KC_COPY = 4160
KC_CH = 4*KC_COPY
U_CH = 4608
U_PAD = 480

def conv_build_copies(a, C, tid_v, nthr, ldsKC_v, load_emit):
    nch = 260
    rounds = (nch + nthr - 1)//nthr
    d = C['d']; al = C['al']
    for rnd in range(rounds):
        a.e(f"v_add_u32 v{C['ck']}, {rnd*nthr}, v{tid_v}")
        a.e(f"v_cmp_gt_u32 vcc, {nch}, v{C['ck']}")
        a.e(f"s_and_saveexec_b64 s[66:67], vcc")
        load_emit(a, rnd, d)
        for i in range(5):
            a.e(f"v_alignbit_b32 v{al+i}, v{d+i+1}, v{d+i}, 16")
        a.e(f"v_lshl_add_u32 v{C['wa']}, v{C['ck']}, 4, v{ldsKC_v}")
        a.e(f"ds_write_b128 v{C['wa']}, {vr(d,4)}")
        a.e(f"ds_write_b128 v{C['wa']}, {vr(al,4)} offset:{KC_COPY}")
        a.e(f"v_add_u32 v{C['wb']}, {2*KC_COPY}, v{C['wa']}")
        a.e(f"ds_write2_b32 v{C['wb']}, v{d+1}, v{d+2} offset0:0 offset1:1")
        a.e(f"ds_write2_b32 v{C['wb']}, v{d+3}, v{d+4} offset0:2 offset1:3")
        a.e(f"v_add_u32 v{C['wb']}, {3*KC_COPY}, v{C['wa']}")
        a.e(f"ds_write2_b32 v{C['wb']}, v{al+1}, v{al+2} offset0:0 offset1:1")
        a.e(f"ds_write2_b32 v{C['wb']}, v{al+3}, v{al+4} offset0:2 offset1:3")
        a.e(f"s_mov_b64 exec, s[66:67]")

def conv_main(a, C, nr=4, extra=None):
    A0, B0, A1, B1, acc = C['A0'], C['B0'], C['A1'], C['B1'], C['acc']
    def loads(A, B):
        L = []
        for m in range(8):
            L.append(f"ds_read_b128 {vr(B+4*m,4)}, v{C['ba']} offset:{512*m}")
            off = 512*(7-m)
            L.append(f"ds_read_b64 {vr(A+4*m,2)}, v{C['aa']} offset:{off}")
            L.append(f"ds_read_b64 {vr(A+4*m+2,2)}, v{C['aa']} offset:{off+8}")
        L.append(f"v_subrev_u32 v{C['aa']}, 64, v{C['aa']}")
        L.append(f"v_subrev_u32 v{C['ba']}, 64, v{C['ba']}")
        return L
    def mfmas(A, B, first):
        M = []
        for m in range(8):
            for G in range(m, 8):
                D = vr(acc+4*G,4)
                c = "0" if (first and m == 0) else D
                M.append(f"v_mfma_f32_16x16x32_bf16 {D}, {vr(A+4*m,4)}, {vr(B+4*(G-m),4)}, {c}")
        return M
    for l in loads(A0, B0): a.e(l)
    for r in range(nr):
        cur = (A0,B0) if r % 2 == 0 else (A1,B1)
        nxt = (A1,B1) if r % 2 == 0 else (A0,B0)
        a.e("s_waitcnt lgkmcnt(0)")
        M = mfmas(cur[0], cur[1], r == 0)
        L = loads(nxt[0], nxt[1]) if r < nr-1 else []
        li = 0
        for i, mm in enumerate(M):
            a.e(mm)
            if li < len(L): a.e(L[li]); li += 1
            if extra and i in (28, 31, 34) and len(extra) > 0:
                for l in extra.pop(0): a.e(l)
        while li < len(L): a.e(L[li]); li += 1
    assert not extra

def conv_addr_setup(a, C, sKC, sU, sHalf, st):
    b, g, c = C['t0'], C['t1'], C['t2']
    a.e(f"""
    v_and_b32 v{b}, 15, v0
    v_lshrrev_b32 v{g}, 4, v0
    v_sub_u32 v{c}, 0, v{b}
    v_and_b32 v{c}, 3, v{c}                      ; c = (-b)&3
    v_mul_u32_u24 v{C['aa']}, {KC_COPY}, v{c}
    v_lshlrev_b32 v{C['t3']}, 3, v{g}            ; 8g
    v_sub_u32 v{C['t3']}, v{C['t3']}, v{b}
    v_sub_u32 v{C['t3']}, v{C['t3']}, v{c}       ; 8g - b - c
    v_add_u32 v{C['t3']}, {2032 - 32*56}, v{C['t3']}
    v_lshl_add_u32 v{C['aa']}, v{C['t3']}, 1, v{C['aa']}
    s_lshl_b32 s{st}, s{sHalf}, 8                ; 256*half
    s_sub_u32 s{st+1}, s{sKC}, s{st}
    v_add_u32 v{C['aa']}, s{st+1}, v{C['aa']}
    v_lshlrev_b32 v{C['ba']}, 5, v{b}
    v_lshl_add_u32 v{C['ba']}, v{g}, 4, v{C['ba']}
    s_sub_u32 s{st+1}, s{sU}, s{st}
    s_add_u32 s{st+1}, s{st+1}, 448
    v_add_u32 v{C['ba']}, s{st+1}, v{C['ba']}
    """)

def conv_vmap(base):
    C = {}
    n = base
    for k in ('aa','ba','t0','t1','t2','t3','ck','wa','wb','tid','ua'): C[k] = n; n += 1
    n = (n+3)//4*4
    C['acc'] = n; n += 32
    for k in ('A0','B0','A1','B1'): C[k] = n; n += 32
    C['d'] = C['A0']; C['al'] = C['A0'] + 8
    C['end'] = n
    return C

def conv_epilogue(a, C, sU, sD, sOutOff, srd, flags=""):
    t = C['A0']
    a.e(f"""
    v_and_b32 v{C['t0']}, 15, v0
    v_lshrrev_b32 v{C['t1']}, 4, v0
    v_lshlrev_b32 v{C['t2']}, 5, v{C['t0']}
    v_lshl_add_u32 v{C['t2']}, v{C['t1']}, 3, v{C['t2']}
    v_add_u32 v{C['ua']}, s{sU}, v{C['t2']}
    """)
    for G in range(8):
        a.e(f"ds_read_b64 {vr(t+2*G,2)}, v{C['ua']} offset:{U_PAD+512*G}")
    a.e("s_waitcnt lgkmcnt(0)")
    for G in range(8):
        y = C['acc'] + 4*G
        u0 = t + 2*G
        w = C['B0'] + 4*G
        a.e(f"""
        v_lshlrev_b32 v{w}, 16, v{u0}
        v_and_b32 v{w+1}, 0xffff0000, v{u0}
        v_lshlrev_b32 v{w+2}, 16, v{u0+1}
        v_and_b32 v{w+3}, 0xffff0000, v{u0+1}
        v_mul_f32 v{w}, s{sD}, v{w}
        v_mul_f32 v{w+1}, s{sD}, v{w+1}
        v_mul_f32 v{w+2}, s{sD}, v{w+2}
        v_mul_f32 v{w+3}, s{sD}, v{w+3}
        v_cvt_pk_bf16_f32 v{w}, v{w}, v{w+1}
        v_cvt_pk_bf16_f32 v{w+2}, v{w+2}, v{w+3}
        v_cvt_pk_bf16_f32 v{y}, v{y}, v{y+1}
        v_cvt_pk_bf16_f32 v{y+2}, v{y+2}, v{y+3}
        v_lshlrev_b32 v{w+1}, 16, v{w}
        v_and_b32 v{w}, 0xffff0000, v{w}
        v_lshlrev_b32 v{w+3}, 16, v{w+2}
        v_and_b32 v{w+2}, 0xffff0000, v{w+2}
        v_lshlrev_b32 v{y+1}, 16, v{y}
        v_and_b32 v{y}, 0xffff0000, v{y}
        v_lshlrev_b32 v{y+3}, 16, v{y+2}
        v_and_b32 v{y+2}, 0xffff0000, v{y+2}
        v_add_f32 v{w+1}, v{w+1}, v{y+1}
        v_add_f32 v{w}, v{w}, v{y}
        v_add_f32 v{w+3}, v{w+3}, v{y+3}
        v_add_f32 v{w+2}, v{w+2}, v{y+2}
        v_cvt_pk_bf16_f32 v{y}, v{w+1}, v{w}
        v_cvt_pk_bf16_f32 v{y+1}, v{w+3}, v{w+2}
        buffer_store_dwordx2 {vr(y,2)}, v{C['t2']}, {sq(srd)}, s{sOutOff} offen offset:{512*G} {flags}
        """)

def kernel_conv():
    a = Asm()
    C = conv_vmap(4)
    LDS_KC = 0; LDS_U = 2*KC_CH; LDS_RED = LDS_U + 2*U_CH
    prologue(a, 256, "Lcv_end")
    a.e(f"""
    s_lshr_b32 s52, s3, 1            ; ch
    s_lshl_b32 s53, s2, 1
    s_add_u32 s53, s53, s52          ; channel
    s_and_b32 s54, s3, 1             ; half
    s_mul_i32 s56, s52, {KC_CH}
    s_mul_i32 s57, s52, {U_CH}
    s_add_u32 s57, s57, {LDS_U}      ; U base
    v_lshl_add_u32 v{C['tid']}, s54, 6, v0
    s_waitcnt lgkmcnt(0)
    """)
    make_srd(a, SRD_WS, S_WS, WS_SIZE)
    a.e(f"""
    s_lshl_b32 s58, s53, 1
    v_mov_b32 v{C['t0']}, s58
    global_load_ushort v{C['t1']}, v{C['t0']}, {sp(S_DSK)}
    """)
    a.e(f"""
    s_lshl_b32 s59, s53, 12
    s_add_u32 s59, s59, {WS_XNT}
    v_lshlrev_b32 v{C['t2']}, 4, v{C['tid']}
    buffer_load_dwordx4 {vr(C['B0'],4)}, v{C['t2']}, {sq(SRD_WS)}, s59 offen
    buffer_load_dwordx4 {vr(C['B0']+4,4)}, v{C['t2']}, {sq(SRD_WS)}, s59 offen offset:2048
    s_mul_i32 s60, s53, {KR_STRIDE}
    s_add_u32 s60, s60, {WS_KR}
    """)
    a.e(f"""
    v_mov_b32 v{C['B1']}, 0
    v_mov_b32 v{C['B1']+1}, 0
    v_mov_b32 v{C['B1']+2}, 0
    v_mov_b32 v{C['B1']+3}, 0
    v_add_u32 v{C['t3']}, s57, v{C['t2']}
    v_cmp_gt_u32 vcc, 30, v{C['tid']}
    s_and_saveexec_b64 s[66:67], vcc
    ds_write_b128 v{C['t3']}, {vr(C['B1'],4)}
    s_mov_b64 exec, s[66:67]
    v_cmp_gt_u32 vcc, 2, v{C['tid']}
    s_and_saveexec_b64 s[66:67], vcc
    ds_write_b128 v{C['t3']}, {vr(C['B1'],4)} offset:{U_PAD+4096}
    s_mov_b64 exec, s[66:67]
    v_mov_b32 v{C['ua']}, s56
    """)
    def ld(a, rnd, d):
        a.e(f"""
        v_lshlrev_b32 v{C['wb']}, 4, v{C['ck']}
        buffer_load_dwordx4 {vr(d,4)}, v{C['wb']}, {sq(SRD_WS)}, s60 offen
        buffer_load_dwordx2 {vr(d+4,2)}, v{C['wb']}, {sq(SRD_WS)}, s60 offen offset:16
        s_waitcnt vmcnt(0)
        """)
    conv_build_copies(a, C, C['tid'], 128, C['ua'], ld)
    a.e(f"""
    s_waitcnt vmcnt(0)
    ds_write_b128 v{C['t3']}, {vr(C['B0'],4)} offset:{U_PAD}
    ds_write_b128 v{C['t3']}, {vr(C['B0']+4,4)} offset:{U_PAD+2048}
    v_lshlrev_b32 v{C['t1']}, 16, v{C['t1']}
    v_readfirstlane_b32 s61, v{C['t1']}
    """)
    conv_addr_setup(a, C, 56, 57, 54, 62)
    a.e("s_waitcnt lgkmcnt(0)")
    a.e("s_barrier")
    conv_main(a, C)
    a.e(f"""
    s_mul_i32 s62, s52, 8192
    s_add_u32 s62, s62, {LDS_RED}
    v_lshl_add_u32 v{C['t0']}, v0, 4, s62
    s_cmp_eq_u32 s54, 0
    s_cbranch_scc1 Lcv_nowr
    """)
    for G in range(8): a.e(f"ds_write_b128 v{C['t0']}, {vr(C['acc']+4*G,4)} offset:{1024*G}")
    a.e("s_waitcnt lgkmcnt(0)")
    a.label("Lcv_nowr")
    a.e("s_barrier")
    a.e("s_cmp_eq_u32 s54, 1")
    a.e("s_cbranch_scc1 Lcv_end")
    for G in range(8): a.e(f"ds_read_b128 {vr(C['A1']+4*G,4)}, v{C['t0']} offset:{1024*G}")
    a.e("s_waitcnt lgkmcnt(0)")
    for i in range(32): a.e(f"v_add_f32 v{C['acc']+i}, v{C['acc']+i}, v{C['A1']+i}")
    a.e(f"s_lshl_b32 s59, s53, 12")
    a.e(f"s_add_u32 s59, s59, {WS_AOT}")
    conv_epilogue(a, C, 57, 61, 59, SRD_WS)
    a.e("s_waitcnt vmcnt(0)")
    a.label("Lcv_end")
    a.e("s_endpgm")
    return ("cv_kernel", a.text(), C['end'], 80), LDS_RED + 16384
```

```python
from fused_head import *
import fused_head as fh

LDS_FB = 49152

def gemm_stats_xn(a):
    t = S_T
    T = 20
    SA, QA, XS = 80, 84, 88
    a.e(f"""
    v_and_b32 v{T}, 15, v0
    v_lshrrev_b32 v{T+1}, 4, v0
    v_lshlrev_b32 v{T+2}, 10, v{T}
    s_lshl_b32 s{t}, s{S_LTA}, 14
    v_add_u32 v{T+2}, s{t}, v{T+2}            ; row*1024
    s_sub_u32 s{t+1}, s{S_CT}, s{S_ROT}
    s_and_b32 s{t+1}, s{t+1}, 7
    s_lshl_b32 s{t+1}, s{t+1}, 3
    v_lshlrev_b32 v{T+3}, 1, v{T+1}
    v_add_u32 v{T+3}, s{t+1}, v{T+3}
    v_xor_b32 v{T+4}, v{T+3}, v{T}
    v_add_u32 v{T+3}, 1, v{T+3}
    v_xor_b32 v{T+5}, v{T+3}, v{T}
    v_lshl_add_u32 v{T+4}, v{T+4}, 4, v{T+2}
    v_lshl_add_u32 v{T+5}, v{T+5}, 4, v{T+2}
    ds_read_b128 {vr(XS,4)}, v{T+4} offset:{LDS_X}
    ds_read_b128 {vr(XS+4,4)}, v{T+5} offset:{LDS_X}
    """)
    for s in range(16):
        f = vr(xf(0,s),4)
        a.e(f"v_mfma_f32_16x16x32_bf16 {vr(SA,4)}, {vr(ONES,4)}, {f}, {'0' if s==0 else vr(SA,4)}")
        a.e(f"v_mfma_f32_16x16x32_bf16 {vr(QA,4)}, {f}, {f}, {'0' if s==0 else vr(QA,4)}")
    a.e(f"""
    v_and_b32 v{T+6}, 3, v0
    v_lshrrev_b32 v{T+8}, 2, v{T}
    v_lshl_add_u32 v{T+8}, v{T+8}, 4, v{T}
    v_lshlrev_b32 v{T+8}, 2, v{T+8}
    v_cmp_eq_u32 vcc, 1, v{T+6}
    v_cndmask_b32 v{T+7}, v{QA}, v{QA+1}, vcc
    v_cmp_eq_u32 vcc, 2, v{T+6}
    v_cndmask_b32 v{T+7}, v{T+7}, v{QA+2}, vcc
    v_cmp_eq_u32 vcc, 3, v{T+6}
    v_cndmask_b32 v{T+7}, v{T+7}, v{QA+3}, vcc
    ds_bpermute_b32 v{T+7}, v{T+8}, v{T+7}
    """)
    U = 40
    a.e("s_waitcnt lgkmcnt(1)")
    for i in range(8):
        a.e(f"v_lshlrev_b32 v{U+2*i}, 16, v{XS+i}")
        a.e(f"v_and_b32 v{U+2*i+1}, 0xffff0000, v{XS+i}")
    a.e("s_waitcnt lgkmcnt(0)")
    MN = 32
    ln_scalars(a, SA, T+7, MN, MN+1, MN+2, MN+3, T+8, T+9)
    a.e(f"""
    s_lshl_b32 s{t}, s{S_LTA}, 8
    s_add_u32 s{t}, s{t}, {LDS_STATS}
    v_lshl_add_u32 v{T+6}, v{T}, 4, s{t}
    v_cmp_gt_u32 vcc, 16, v0
    s_and_saveexec_b64 s[{S_EX}:{S_EX+1}], vcc
    ds_write_b64 v{T+6}, {vr(MN,2)}
    s_mov_b64 exec, s[{S_EX}:{S_EX+1}]
    v_lshrrev_b32 v{T+6}, 1, v{T}
    v_and_b32 v{T+6}, 3, v{T+6}
    v_xor_b32 v{T+6}, v{T+6}, v{T+1}
    v_lshlrev_b32 v{T+6}, 5, v{T+6}
    v_lshl_add_u32 v{T+6}, v{T}, 7, v{T+6}
    s_lshl_b32 s{t}, s{S_LTA}, 11
    s_add_u32 s{t}, s{t}, {LDS_XT}
    v_add_u32 v{T+6}, s{t}, v{T+6}
    """)
    for i in range(16): a.e(f"v_sub_f32 v{U+i}, v{U+i}, v{MN+2}")
    for i in range(8): a.e(f"v_cvt_pk_bf16_f32 v{XS+i}, v{U+2*i}, v{U+2*i+1}")
    for i in range(8):
        a.e(f"v_lshlrev_b32 v{U+2*i}, 16, v{XS+i}")
        a.e(f"v_and_b32 v{U+2*i+1}, 0xffff0000, v{XS+i}")
    for i in range(16): a.e(f"v_mul_f32 v{U+i}, v{U+i}, v{MN+3}")
    for i in range(8): a.e(f"v_cvt_pk_bf16_f32 v{XS+i}, v{U+2*i}, v{U+2*i+1}")
    a.e(f"ds_write_b128 v{T+6}, {vr(XS,4)}")
    a.e(f"ds_write_b128 v{T+6}, {vr(XS+4,4)} offset:16")
    a.e("s_waitcnt lgkmcnt(0)")

def gemm_xn_store(a):
    t = S_T; T = 44; XS = 56
    a.e(f"""
    v_lshrrev_b32 v{T}, 4, v0
    v_and_b32 v{T+1}, 15, v0
    v_lshrrev_b32 v{T+2}, 2, v{T+1}
    v_and_b32 v{T+3}, 3, v0
    v_lshl_add_u32 v{T+4}, v{T}, 3, v{T+2}
    v_lshlrev_b32 v{T+4}, 7, v{T+4}
    v_lshl_add_u32 v{T+4}, v{T+3}, 3, v{T+4}
    v_add_u32 v{T+4}, {LDS_XT}, v{T+4}
    v_lshrrev_b32 v{T+5}, 1, v{T+2}
    v_xor_b32 v{T+6}, s3, v{T+5}
    v_lshl_add_u32 v{T+6}, v{T+6}, 5, v{T+4}
    v_add_u32 v{T+5}, 2, v{T+5}
    v_xor_b32 v{T+7}, s3, v{T+5}
    v_lshl_add_u32 v{T+7}, v{T+7}, 5, v{T+4}
    """)
    for half in range(2):
        a.e(f"ds_read_b64_tr_b16 {vr(XS+4*half,2)}, v{T+6} offset:{half*32*128}")
        a.e(f"ds_read_b64_tr_b16 {vr(XS+2+4*half,2)}, v{T+7} offset:{half*32*128 + 4*128}")
    a.e(f"""
    v_lshlrev_b32 v{T+8}, 12, v{T+1}
    v_lshl_add_u32 v{T+8}, v{T}, 4, v{T+8}
    s_lshl_b32 s{t}, s{S_CT}, 6
    s_lshl_b32 s{t+1}, s3, 4
    s_add_u32 s{t}, s{t}, s{t+1}
    s_lshl_b32 s{t}, s{t}, 12
    s_lshl_b32 s{t+1}, s{S_RT}, 7
    s_add_u32 s{t}, s{t}, s{t+1}
    s_add_u32 s{t}, s{t}, {WS_XNT}
    s_waitcnt lgkmcnt(0)
    buffer_store_dwordx4 {vr(XS,4)}, v{T+8}, {sq(SRD_WS)}, s{t} offen sc1
    buffer_store_dwordx4 {vr(XS+4,4)}, v{T+8}, {sq(SRD_WS)}, s{t} offen offset:64 sc1
    """)

def w2_dma_list(steps, vD, sBaseG, sBaseL):
    L = []
    for s in steps:
        for q in range(4):
            L.append([f"s_add_u32 m0, s{sBaseL}, {(s%3)*4096 + q*1024}",
                      f"s_add_u32 s68, s{sBaseG}, {s*32768 + q*8192}",
                      f"buffer_load_dwordx4 v{vD}, {sq(SRD_W)}, s68 offen lds"])
    return L

def gemm_epilogue2(a, dma_groups):
    t = S_T
    R = [14, 16]
    a.e(f"""
    v_and_b32 v1, 15, v0
    s_lshl_b32 s{t}, s{S_LTA}, 8
    s_add_u32 s{t}, s{t}, {LDS_STATS}
    v_lshl_add_u32 v2, v1, 4, s{t}
    ds_read_b64 v[20:21], v2
    s_lshl_b32 s{t}, s{S_LTB}, 8
    s_add_u32 s{t}, s{t}, {LDS_STATS}
    v_lshl_add_u32 v2, v1, 4, s{t}
    ds_read_b64 v[22:23], v2
    v_lshrrev_b32 v2, 4, v0
    v_lshlrev_b32 v2, 4, v2
    v_add_u32 v2, {LDS_CS}, v2
    s_mul_i32 s{t}, s{S_FH}, 384
    v_add_u32 v2, s{t}, v2
    v_lshlrev_b32 v3, 4, v0
    s_mul_i32 s{t+4}, s{S_RT}, {H_RT}
    s_add_u32 s{t+4}, s{t+4}, {WS_H}
    """)
    CSr, B1r, TT, T2, OUT = 24, 48, 36, 44, 52
    sets = [(24, 56), (64, 72)]
    def tab_reads(pp):
        c, b = sets[pp % 2]
        for h in range(2):
            a.e(f"ds_read_b128 {vr(c+4*h,4)}, v2 offset:{128*pp + 64*h}")
            a.e(f"ds_read_b128 {vr(b+4*h,4)}, v2 offset:{LDS_B1 - LDS_CS + 128*pp + 64*h}")
    tab_reads(0)
    a.e(f"""
    s_waitcnt lgkmcnt(4)
    v_mov_b32 v{R[0]}, v21
    v_mul_f32 v{R[0]+1}, v20, v21
    v_sub_f32 v{R[0]+1}, 0, v{R[0]+1}
    v_mov_b32 v{R[1]}, v23
    v_mul_f32 v{R[1]+1}, v22, v23
    v_sub_f32 v{R[1]+1}, 0, v{R[1]+1}
    """)
    TT, T2, OUT = 32, 40, 48
    if CFG.get('duppair'):
        a.e("""
        v_mov_b32 v20, v15
        v_mov_b32 v21, v15
        v_mov_b32 v22, v17
        v_mov_b32 v23, v17
        v_mov_b32 v15, v14
        v_mov_b32 v17, v16
        """)
    gi = 0
    if CFG.get('swapR'):
        a.e("""
        v_mov_b32 v20, v14
        v_mov_b32 v14, v15
        v_mov_b32 v15, v20
        v_mov_b32 v20, v16
        v_mov_b32 v16, v17
        v_mov_b32 v17, v20
        """)
    for pp in range(3):
        CSr, B1r = sets[pp % 2]
        a.e("s_waitcnt lgkmcnt(0)")
        if CFG.get('nopw') and pp == 0:
            for _ in range(4): a.e("s_nop 15")
        if pp < 2 and not (CFG.get('late1') and pp == 0): tab_reads(pp+1)
        if CFG.get('waitl'): a.e("s_waitcnt lgkmcnt(0)")
        if pp == 0 and CFG.get('dbgcs2'):
            a.e(f"""
            s_lshl_b32 s62, s2, 2
            s_add_u32 s62, s62, s3
            s_lshl_b32 s62, s62, 12
            s_add_u32 s62, s62, 0xE00000
            buffer_store_dwordx4 v[24:27], v3, {sq(SRD_WS)}, s62 offen
            buffer_store_dwordx4 v[28:31], v3, {sq(SRD_WS)}, s62 offen offset:1024
            buffer_store_dwordx4 v[14:17], v3, {sq(SRD_WS)}, s62 offen offset:2048
            buffer_store_dwordx4 v[80:83], v3, {sq(SRD_WS)}, s62 offen offset:3072
            """)
        Lskip = a.newlabel("Lg1skip")
        a.e(f"""
        s_mul_i32 s{t}, s{S_FH}, 3
        s_add_u32 s{t}, s{t}, {pp}
        s_add_u32 s{t+2}, s{t}, s{S_P}
        s_lshl_b32 s{t+2}, s{t+2}, 12
        s_add_u32 s{t+2}, s{t+2}, s{t+4}
        """)
        if pp == 2:
            a.e(f"s_cmp_ge_u32 s{t}, s{S_NP}")
            a.e(f"s_cbranch_scc1 {Lskip}")
        for lt in range(2):
            items = [(h,q) for h in range(2) for q in range(2)]
            X = lambda h,q: acc(2*pp+h, lt) + 2*q
            k = lambda h,q: 2*(2*h+q)
            seq = []
            if CFG.get('duppair'):
                seq.append([f"v_pk_fma_f32 {vr(TT+k(h,q),2)}, {vr(CSr+4*h+2*q,2)}, {vr(20+2*lt,2)}, {vr(B1r+4*h+2*q,2)}" for (h,q) in items])
                seq.append([f"v_pk_fma_f32 {vr(X(h,q),2)}, {vr(X(h,q),2)}, {vr(R[lt],2)}, {vr(TT+k(h,q),2)}" for (h,q) in items])
            elif CFG.get('swapR'):
                seq.append([f"v_pk_fma_f32 {vr(TT+k(h,q),2)}, {vr(CSr+4*h+2*q,2)}, {vr(R[lt],2)}, {vr(B1r+4*h+2*q,2)} op_sel:[0,0,0] op_sel_hi:[1,0,1]" for (h,q) in items])
                seq.append([f"v_pk_fma_f32 {vr(X(h,q),2)}, {vr(X(h,q),2)}, {vr(R[lt],2)}, {vr(TT+k(h,q),2)} op_sel:[0,1,0] op_sel_hi:[1,1,1]" for (h,q) in items])
            elif CFG.get('scalarTT'):
                seq.append([f"v_fma_f32 v{TT+k(h,q)+e}, v{CSr+4*h+2*q+e}, v{R[lt]+1}, v{B1r+4*h+2*q+e}" for (h,q) in items for e in range(2)])
                seq.append([f"v_pk_fma_f32 {vr(X(h,q),2)}, {vr(X(h,q),2)}, {vr(R[lt],2)}, {vr(TT+k(h,q),2)} op_sel:[0,0,0] op_sel_hi:[1,0,1]" for (h,q) in items])
            else:
                seq.append([f"v_pk_fma_f32 {vr(TT+k(h,q),2)}, {vr(R[lt],2)}, {vr(CSr+4*h+2*q,2)}, {vr(B1r+4*h+2*q,2)} op_sel:[1,0,0] op_sel_hi:[1,1,1]" for (h,q) in items])
                seq.append([f"v_pk_fma_f32 {vr(X(h,q),2)}, {vr(X(h,q),2)}, {vr(R[lt],2)}, {vr(TT+k(h,q),2)} op_sel:[0,0,0] op_sel_hi:[1,0,1]" for (h,q) in items])
            seq.append([f"v_pk_mul_f32 {vr(T2+k(h,q),2)}, {vr(X(h,q),2)}, {vr(X(h,q),2)}" for (h,q) in items])
            seq.append([f"v_pk_fma_f32 {vr(T2+k(h,q),2)}, {vr(T2+k(h,q),2)}, s[{S_GC}:{S_GC+1}], s[{S_GC}:{S_GC+1}] op_sel:[0,1,0] op_sel_hi:[1,1,0]" for (h,q) in items])
            seq.append([f"v_pk_mul_f32 {vr(T2+k(h,q),2)}, {vr(T2+k(h,q),2)}, {vr(X(h,q),2)}" for (h,q) in items])
            seq.append([f"v_exp_f32 v{T2+k(h,q)+e}, v{T2+k(h,q)+e}" for (h,q) in items for e in range(2)])
            seq.append([f"v_pk_add_f32 {vr(T2+k(h,q),2)}, {vr(T2+k(h,q),2)}, s[{S_ONE}:{S_ONE+1}]" for (h,q) in items])
            seq.append([f"v_rcp_f32 v{T2+k(h,q)+e}, v{T2+k(h,q)+e}" for (h,q) in items for e in range(2)])
            seq.append([f"v_pk_mul_f32 {vr(X(h,q),2)}, {vr(X(h,q),2)}, {vr(T2+k(h,q),2)}" for (h,q) in items])
            seq.append([f"v_cvt_pk_bf16_f32 v{OUT+4*lt+2*h+q}, v{X(h,q)}, v{X(h,q)+1}" for (h,q) in items])
            for si, grp in enumerate(seq):
                for l in grp: a.e(l)
                if CFG.get('nops') and pp == 0 and lt == 0: a.e("s_nop 7")
                if CFG.get('skipfirst') and pp == 0 and lt == 0: continue
                if pp < 2 and si in (1, 4, 7) and gi < len(dma_groups):
                    for l in dma_groups[gi]: a.e(l)
                    gi += 1
            sl = S_LTA if lt == 0 else S_LTB
            a.e(f"""
            s_lshl_b32 s{t+3}, s{sl}, 10
            s_add_u32 s{t+3}, s{t+3}, s{t+2}
            buffer_store_dwordx4 {vr(OUT+4*lt,4)}, v3, {sq(SRD_WS)}, s{t+3} offen sc1
            """)
            if CFG.get('late1') and pp == 0 and lt == 0: tab_reads(1)
        if pp == 2: a.label(Lskip)
    assert gi == len(dma_groups), (gi, len(dma_groups))

def tail2(a, st_=None):
    t = S_T
    mk = (lambda n: st_.mark(n)) if st_ else (lambda n: None)
    w2_read_lane(a, VA2, 1)
    a.e("s_waitcnt vmcnt(0)")
    w2_read(a, [0,1,2], VA2)
    w2_dma(a, [3,4], VD2, S_S0, S_DT)
    L6 = a.newlabel("Lno6")
    a.e(f"s_cmp_lt_u32 s{S_NS}, 6"); a.e(f"s_cbranch_scc1 {L6}")
    w2_dma(a, [5], VD2, S_S0, S_DT)
    a.label(L6)
    a.e(f"""
    v_lshlrev_b32 v{VL2}, 4, v0
    s_mul_i32 s{S_HB}, s{S_RT2}, 43
    s_add_u32 s{S_HB}, s{S_HB}, s{S_S0}
    s_lshl_b32 s{S_HB}, s{S_HB}, 12
    s_add_u32 s{S_HB}, s{S_HB}, {WS_H}
    s_lshl_b32 s{t}, s{S_RT2}, 3
    s_add_u32 s{t}, s{t}, s3
    s_lshl_b32 s{t}, s{t}, 6
    s_add_u32 s78, s{t}, {FB_OFF}
    v_mov_b32 v1, 0
    """)
    poll_flags(a, 1, 1, 78, 2)
    mk('hflag')
    for s in range(5): h_load(a, s, VL2)
    w2_read(a, [3,4,5], VA2)
    mk('w2rd')
    VX = 10
    for s in range(5):
        a.e(f"s_waitcnt vmcnt({4*(4-s)})")
        g2_mfma(a, s)
    L6 = a.newlabel("Lno6")
    a.e(f"s_cmp_lt_u32 s{S_NS}, 6"); a.e(f"s_cbranch_scc1 {L6}")
    h_load(a, 5, VL2)
    a.e("s_waitcnt vmcnt(0)")
    g2_mfma(a, 5)
    a.label(L6)
    mk('g2mm')
    a.e(f"""
    s_lshr_b32 s{t+1}, s3, 1
    s_lshl_b32 s{t}, s{S_DT}, 5
    s_lshl_b32 s{t+2}, s{t+1}, 3
    s_add_u32 s{t}, s{t}, s{t+2}
    s_lshl_b32 s{t}, s{t}, 6
    s_add_u32 s78, s{t}, {FC_OFF}
    v_lshlrev_b32 v1, 6, v0
    """)
    VX = 16
    a.e(f"""
    v_lshrrev_b32 v2, 4, v0
    v_lshrrev_b32 v3, 2, v0
    v_and_b32 v3, 3, v3
    v_and_b32 v14, 3, v0
    v_lshlrev_b32 v15, 5, v2
    v_lshl_add_u32 v15, v14, 3, v15
    v_lshl_add_u32 v{VX+6}, v3, 12, v15
    s_lshl_b32 s{t}, s{S_RT2}, 16
    s_lshl_b32 s{t+1}, s{S_DT}, 7
    s_add_u32 s{t}, s{t}, s{t+1}
    s_lshr_b32 s{t+2}, s3, 1
    s_lshl_b32 s{t+2}, s{t+2}, 14
    s_add_u32 s{t}, s{t}, s{t+2}
    s_and_b32 s{t+2}, s3, 1
    s_lshl_b32 s{t+2}, s{t+2}, 11
    s_add_u32 s{t}, s{t}, s{t+2}
    v_add_u32 v{VX+6}, s{t}, v{VX+6}
    buffer_load_dwordx2 {vr(VX,2)}, v{VX+6}, {sq(SRD_X)}, 0 offen
    buffer_load_dwordx2 {vr(VX+2,2)}, v{VX+6}, {sq(SRD_X)}, 0 offen offset:1024
    v_add_u32 v15, s{t+1}, v15
    global_load_dwordx2 {vr(VX+4,2)}, v15, {sp(S_B2)}
    """)
    poll_flags(a, 8, 1, 78, 2)
    a.e(f"""
    v_and_b32 v1, 15, v0
    v_lshlrev_b32 v1, 12, v1
    v_lshrrev_b32 v2, 4, v0
    v_lshl_add_u32 v1, v2, 3, v1
    s_lshr_b32 s{t+1}, s3, 1
    s_lshl_b32 s{t}, s{S_DT}, 2
    s_add_u32 s{t}, s{t}, s{t+1}
    s_lshl_b32 s{t}, s{t}, 16
    s_lshl_b32 s{t+2}, s{S_RT2}, 7
    s_add_u32 s{t}, s{t}, s{t+2}
    s_and_b32 s{t+2}, s3, 1
    s_lshl_b32 s{t+2}, s{t+2}, 6
    s_add_u32 s{t}, s{t}, s{t+2}
    s_add_u32 s{t}, s{t}, {WS_AOT}
    buffer_load_dwordx2 v[10:11], v1, {sq(SRD_WS)}, s{t} offen sc1
    buffer_load_dwordx2 v[12:13], v1, {sq(SRD_WS)}, s{t} offen offset:32 sc1
    s_waitcnt vmcnt(0)
    v_lshlrev_b32 v24, 16, v10
    v_and_b32 v25, 0xffff0000, v10
    v_lshlrev_b32 v26, 16, v11
    v_and_b32 v27, 0xffff0000, v11
    v_lshlrev_b32 v28, 16, v12
    v_and_b32 v29, 0xffff0000, v12
    v_lshlrev_b32 v30, 16, v13
    v_and_b32 v31, 0xffff0000, v13
    """)
    Ld = a.newlabel("Laod")
    for w in range(8):
        Ln = a.newlabel("Laon")
        a.e(f"s_cmp_lg_u32 s3, {w}"); a.e(f"s_cbranch_scc1 {Ln}")
        for k in range(2):
            A_ = acc2(2*(w&1)+k, w>>1)
            for i in range(4): a.e(f"v_add_f32 v{A_+i}, v{A_+i}, v{24+4*k+i}")
        a.e(f"s_branch {Ld}")
        a.label(Ln)
    a.label(Ld)
    mk('ao')
    a.e("s_barrier")
    a.e(f"s_lshl_b32 s{t}, s3, 8")
    a.e(f"s_mov_b32 m0, s{t}")
    for idx in range(32):
        a.e(f"ds_write_addtid_b32 v{ACC2+idx} offset:{2048*idx}")
    a.e(f"s_add_u32 m0, s{t}, 63740")
    for idx in range(32, 64):
        a.e(f"ds_write_addtid_b32 v{ACC2+idx} offset:{2048*idx - 63740}")
    a.e("s_waitcnt lgkmcnt(0)")
    mk('pw')
    a.e("s_barrier")
    a.e(f"""
    v_lshrrev_b32 v2, 4, v0
    v_lshlrev_b32 v2, 13, v2
    v_and_b32 v3, 15, v0
    v_lshl_add_u32 v2, v3, 4, v2
    s_lshr_b32 s{t}, s3, 1
    s_lshl_b32 s{t}, s{t}, 15
    s_and_b32 s{t+1}, s3, 1
    s_lshl_b32 s{t+1}, s{t+1}, 12
    s_add_u32 s{t}, s{t}, s{t+1}
    v_add_u32 v2, s{t}, v2
    """)
    T = ACC2
    for k in range(2):
        for w in range(8):
            a.e(f"ds_read_b128 {vr(T+32*k+4*w,4)}, v2 offset:{2048*k + 256*w}")
        if k == 0: a.e("s_waitcnt lgkmcnt(4)")
    U = 24
    a.e(f"""
    v_lshlrev_b32 v{U+8}, 16, v{VX+4}
    v_and_b32 v{U+9}, 0xffff0000, v{VX+4}
    v_lshlrev_b32 v{U+10}, 16, v{VX+5}
    v_and_b32 v{U+11}, 0xffff0000, v{VX+5}
    """)
    for k in range(2):
        a.e(f"s_waitcnt lgkmcnt({8 if k == 0 else 0})")
        B_ = T + 32*k
        for step in (4,2,1):
            for w in range(step):
                for e in (0,2):
                    a.e(f"v_pk_add_f32 {vr(B_+4*w+e,2)}, {vr(B_+4*w+e,2)}, {vr(B_+4*(w+step)+e,2)}")
        a.e(f"""
        v_lshlrev_b32 v{U}, 16, v{VX+2*k}
        v_and_b32 v{U+1}, 0xffff0000, v{VX+2*k}
        v_lshlrev_b32 v{U+2}, 16, v{VX+2*k+1}
        v_and_b32 v{U+3}, 0xffff0000, v{VX+2*k+1}
        v_pk_add_f32 {vr(U,2)}, {vr(U,2)}, {vr(U+8,2)}
        v_pk_add_f32 {vr(U+2,2)}, {vr(U+2,2)}, {vr(U+10,2)}
        v_pk_add_f32 {vr(U,2)}, {vr(U,2)}, {vr(B_,2)}
        v_pk_add_f32 {vr(U+2,2)}, {vr(U+2,2)}, {vr(B_+2,2)}
        v_cvt_pk_bf16_f32 v{U+4+2*k}, v{U}, v{U+1}
        v_cvt_pk_bf16_f32 v{U+5+2*k}, v{U+2}, v{U+3}
        buffer_store_dwordx2 {vr(U+4+2*k,2)}, v{VX+6}, {sq(SRD_OUT)}, 0 offen offset:{1024*k}
        """)
    mk('fin')

KNAME = "parallel_sum__ssm_conv_s4d__mixer_channel_mlp__prompt_kernel"
CFG = dict(nb0=30)

def p2_bases(a):
    t = S_T
    a.e(f"""
    s_lshr_b32 s{t+1}, s2, 5
    s_lshl_b32 s{t+1}, s{t+1}, 7
    s_mul_i32 s80, s3, 43
    s_add_u32 s80, s80, 5
    s_lshr_b32 s80, s80, 3
    s_lshl_b32 s80, s80, 15
    s_add_u32 s80, s80, s{t+1}
    s_mul_i32 s81, s3, {W2_STAGE}
    s_add_u32 s81, s81, {LDS_W2}
    """)

def kernel_fused(stamp=None):
    a = Asm()
    sg = Stamps(a, stamp == 'g', base=84); sh = Stamps(a, stamp == 'h', base=84)
    both = Stamps(a, stamp is not None, base=84)
    both.mark('start')
    prologue(a, 256, "L_end")
    g1_map(a)
    a.e("s_waitcnt lgkmcnt(0)")
    both.mark('karg')
    sg.n = sh.n = both.n; sg.names = list(both.names); sh.names = list(both.names)
    a.e("s_cmp_ge_u32 s3, 4")
    a.e("s_cbranch_scc1 L_helper")
    make_srd(a, SRD_X, S_X, 2097152)
    make_srd(a, SRD_W, S_W1, 1409024)
    make_srd(a, SRD_WS, S_WS, WS_SIZE)
    make_srd(a, SRD_OUT, S_OUT, 2097152)
    a.e("s_barrier")
    x_dma16(a, 1)
    w1_lane_setup(a, AF1, AF1+4)
    w1_issue(a, 0, AF1, 3)
    gemm_wave_setup(a)
    a.e(f"""
    v_mov_b32 v1, {LDS_CNT}
    v_lshl_add_u32 v1, v0, 2, v1
    v_mov_b32 v2, 0
    v_cmp_gt_u32 vcc, 8, v0
    s_and_saveexec_b64 s[{S_EX}:{S_EX+1}], vcc
    ds_write_b32 v1, v2
    s_mov_b64 exec, s[{S_EX}:{S_EX+1}]
    s_waitcnt lgkmcnt(0)
    s_waitcnt vmcnt(6)
    """)
    sg.mark('xland')
    a.e("s_barrier")
    sg.mark('B0')
    w1_issue(a, 1, AF1, 3)
    gemm_load_x(a)
    sg.mark('xfrag')
    gemm_stats_xn(a)
    a.e("s_waitcnt vmcnt(6)")
    sg.mark('xn')
    a.e("s_barrier")
    for l in a_reads(0, AF0): a.e(l)
    gemm_xn_store(a)
    a.e("s_waitcnt vmcnt(2)")
    a.e(f"s_cmp_eq_u32 s{S_LH}, 1")
    a.e("s_cbranch_scc1 L_gl1")
    for lh in range(2):
        if lh == 1: a.label("L_gl1")
        for st in range(8):
            if st == 2: a.e("s_waitcnt vmcnt(0)")
            a.e("s_barrier")
            if lh == 0 and st in (0,4): sg.mark(f'S{st}')
            gemm_stage(a, st, lh)
        cs_write(a, lh)
        if lh == 0: a.e("s_branch L_gdone")
    a.label("L_gdone")
    a.e("s_barrier")
    sg.mark('E0')
    if CFG.get('dbgcs'):
        a.e(f"""
        v_lshlrev_b32 v1, 2, v0
        v_add_u32 v2, {LDS_CS}, v1
        ds_read_b32 v20, v2
        ds_read_b32 v21, v2 offset:256
        ds_read_b32 v22, v2 offset:512
        v_add_u32 v2, {LDS_STATS}, v1
        ds_read_b32 v23, v2
        ds_read_b32 v24, v2 offset:256
        ds_read_b32 v25, v2 offset:512
        ds_read_b32 v26, v2 offset:768
        s_lshl_b32 s62, s2, 11
        s_add_u32 s62, s62, 0xE00000
        s_waitcnt lgkmcnt(0)
        buffer_store_dword v20, v1, {sq(SRD_WS)}, s62 offen
        buffer_store_dword v21, v1, {sq(SRD_WS)}, s62 offen offset:256
        buffer_store_dword v22, v1, {sq(SRD_WS)}, s62 offen offset:512
        buffer_store_dword v23, v1, {sq(SRD_WS)}, s62 offen offset:1024
        buffer_store_dword v24, v1, {sq(SRD_WS)}, s62 offen offset:1280
        buffer_store_dword v25, v1, {sq(SRD_WS)}, s62 offen offset:1536
        buffer_store_dword v26, v1, {sq(SRD_WS)}, s62 offen offset:1792
        s_waitcnt vmcnt(0)
        """)
    if not CFG.get('noprio'): a.e("s_setprio 2")
    make_srd(a, SRD_W, S_W2, 1409024)
    read_nonce_lds(a, 1)
    p2_bases(a)
    w2_dma_lane(a, 18, 1)
    if CFG.get('nodma'):
        for g in w2_dma_list([0,1,2], 18, 80, 81):
            for l in g: a.e(l)
        gemm_epilogue2(a, [])
    elif CFG.get('skipfirst'):
        gs = w2_dma_list([0,1,2], 18, 80, 81)
        for g in gs[:3]:
            for l in g: a.e(l)
        gemm_epilogue2(a, gs[3:])
    else:
        gemm_epilogue2(a, w2_dma_list([0,1,2], 18, 80, 81))
    sg.mark('epi')
    a.e("s_waitcnt vmcnt(0)")
    t = S_T
    a.e(f"""
    s_lshl_b32 s{t}, s{S_RT}, 3
    s_add_u32 s{t}, s{t}, s{S_CT}
    s_lshl_b32 s{t}, s{t}, 6
    s_add_u32 s{t}, s{t}, {FB_OFF}
    """)
    lds_arrive_signal(a, 4, 4, t, 1)
    a.e("s_setprio 0")
    sg.mark('sigB')
    a.e(f"v_mov_b32 v{VD2}, v18")
    g2_map(a)
    a.e("s_branch L_tail")
    a.label("L_helper")
    a.e(f"s_sub_u32 s{S_HW}, s3, 4")
    V = kgen.kgen_vmap(8)
    a.e(f"""
    s_lshr_b32 s{S_T}, s{S_HW}, 1
    s_lshl_b32 s{S_KC}, s2, 1
    s_add_u32 s{S_KC}, s{S_KC}, s{S_T}
    s_and_b32 s{S_KNH}, s{S_HW}, 1
    """)
    kgen.kgen_load(a, V, S_KC, S_KNH, S_T)
    a.e(f"""
    s_lshl_b32 s{S_T}, s{S_HW}, 6
    v_add_u32 v145, s{S_T}, v0
    s_lshl_b32 s{S_T+1}, s{S_P}, 5
    v_add_u32 v146, s{S_T+1}, v145
    v_min_u32 v146, 1375, v146
    v_lshlrev_b32 v146, 1, v146
    global_load_ushort v146, v146, {sp(S_B1)}
    s_lshl_b32 s{S_T}, s{S_KC}, 1
    v_mov_b32 v147, s{S_T}
    global_load_ushort v147, v147, {sp(S_DSK)}
    """)
    a.e("s_barrier")
    make_srd(a, SRD_X, S_X, 2097152)
    make_srd(a, SRD_W, S_W1, 1409024)
    make_srd(a, SRD_WS, S_WS, WS_SIZE)
    make_srd(a, SRD_OUT, S_OUT, 2097152)
    Ln = a.newlabel("Lnn")
    a.e(f"""
    s_mul_i32 s{S_KTAB}, s{S_HW}, {KG_TAB}
    s_add_u32 s{S_KTAB}, s{S_KTAB}, {LDS_KG}
    s_cmp_lg_u32 s2, 0
    s_cbranch_scc1 {Ln}
    s_cmp_lg_u32 s3, 4
    s_cbranch_scc1 {Ln}
    s_memrealtime s[{S_T}:{S_T+1}]
    s_waitcnt lgkmcnt(0)
    s_or_b32 s{S_T}, s{S_T}, 1
    v_mov_b32 v1, s{S_T}
    v_mov_b32 v2, 0
    s_mov_b64 s[{S_EX}:{S_EX+1}], exec
    s_mov_b64 exec, 1
    global_store_dword v2, v1, {sp(S_DBG)} sc1
    s_mov_b64 exec, s[{S_EX}:{S_EX+1}]
    """)
    a.label(Ln)
    kgen.kgen_addr_setup(a, V, S_KTAB)
    w1_lane_setup(a, 232, 236)
    a.e("s_waitcnt vmcnt(0)")
    sh.mark('par')
    ch = kgen.kgen_chunks(V, S_KK, V['wr'])[:-1]
    nb0 = CFG['nb0']
    for f in ch[:nb0]: f(a)
    sh.mark('kgA')
    a.e("s_barrier")
    Ln2 = a.newlabel("Lnn")
    a.e(f"""
    s_cmp_lg_u32 s3, 4
    s_cbranch_scc1 {Ln2}
    v_mov_b32 v1, 0
    global_load_dword v2, v1, {sp(S_DBG)} sc1
    """)
    a.label(Ln2)
    for f in ch[nb0:]: f(a)
    kgen.kgen_x_write(a, V, S_KNH, S_KTAB)
    a.e(f"""
    v_lshlrev_b32 v146, 16, v146
    v_lshlrev_b32 v144, 2, v145
    v_add_u32 v144, {LDS_B1}, v144
    v_cmp_gt_u32 vcc, 192, v145
    s_and_saveexec_b64 s[{S_EX}:{S_EX+1}], vcc
    ds_write_b32 v144, v146
    s_mov_b64 exec, s[{S_EX}:{S_EX+1}]
    v_lshlrev_b32 v147, 16, v147
    v_readfirstlane_b32 s35, v147
    """)
    Ln3 = a.newlabel("Lnn"); Lp = a.newlabel("Lnp"); Lq = a.newlabel("Lnq")
    a.e(f"""
    s_cmp_lg_u32 s3, 4
    s_cbranch_scc1 {Ln3}
    s_mov_b32 s{S_SPIN}, 200000
    """)
    a.label(Lp)
    a.e(f"""
    s_waitcnt vmcnt(0)
    v_readfirstlane_b32 s{S_T}, v2
    s_cmp_lg_u32 s{S_T}, 0
    s_cbranch_scc1 {Lq}
    s_sub_u32 s{S_SPIN}, s{S_SPIN}, 1
    s_cmp_eq_u32 s{S_SPIN}, 0
    s_cbranch_scc1 {Lq}
    s_sleep 2
    v_mov_b32 v1, 0
    global_load_dword v2, v1, {sp(S_DBG)} sc1
    s_branch {Lp}
    """)
    a.label(Lq)
    a.e(f"""
    v_mov_b32 v1, {LDS_CNT+32}
    ds_write_b32 v1, v2
    """)
    a.label(Ln3)
    a.e("s_waitcnt lgkmcnt(0)")
    sh.mark('kgB')
    a.e("s_barrier")
    w1_issue(a, 2, 232, S_HW)
    w1_issue(a, 3, 232, S_HW)
    read_nonce_lds(a, 1)
    a.e(f"""
    s_lshr_b32 s{S_T}, s{S_HW}, 1
    s_mul_i32 s82, s{S_T}, 4224
    s_add_u32 s82, s82, {LDS_FB + 16}
    """)
    kgen.kgen_x_finish(a, V, S_KNH, S_KTAB, 82, S_T+2)
    sh.mark('kgC')
    a.e("s_barrier")
    a.e(f"""
    s_lshl_b32 s{S_T}, s{S_KNH}, 6
    v_add_u32 v8, s{S_T}, v0
    s_lshr_b32 s{S_T}, s{S_HW}, 1
    s_mul_i32 s83, s{S_T}, {KC_CH}
    s_add_u32 s83, s83, {LDS_KG}
    """)
    if CFG.get('dbgfb'):
        a.e(f"""
        s_mul_i32 s62, s2, 8448
        s_add_u32 s62, s62, 0xC00000
        s_lshl_b32 s63, s{S_HW}, 8
        v_lshl_add_u32 v60, v0, 2, s63
        """)
        for it in range(9):
            a.e(f"""
            v_add_u32 v61, {LDS_FB + 1024*it}, v60
            ds_read_b32 v62, v61
            v_add_u32 v61, {1024*it}, v60
            v_cmp_gt_u32 vcc, 8448, v61
            s_and_saveexec_b64 s[74:75], vcc
            s_waitcnt lgkmcnt(0)
            buffer_store_dword v62, v61, {sq(SRD_WS)}, s62 offen
            s_mov_b64 exec, s[74:75]
            """)
        a.e("s_waitcnt vmcnt(0)")
    kgen.k_copies(a, 12, 8, 82, 83, KC_COPY)
    sh.mark('kcp')
    a.e("s_waitcnt vmcnt(6)")
    a.e("s_barrier")
    w1_issue(a, 4, 232, S_HW)
    a.e("s_waitcnt vmcnt(6)")
    a.e("s_barrier")
    La = a.newlabel("Lsa")
    a.e(f"""
    s_cmp_lg_u32 s3, 4
    s_cbranch_scc1 {La}
    s_lshl_b32 s{S_T}, s{S_CT}, 5
    s_add_u32 s{S_T}, s{S_T}, s{S_RT}
    s_lshl_b32 s{S_T}, s{S_T}, 6
    s_add_u32 s{S_T}, s{S_T}, {FA_OFF}
    v_mov_b32 v1, 0
    v_mov_b32 v2, s{S_NONCE}
    s_mov_b64 s[{S_EX}:{S_EX+1}], exec
    s_mov_b64 exec, 1
    buffer_store_dword v2, v1, {sq(SRD_WS)}, s{S_T} offen sc1
    s_mov_b64 exec, s[{S_EX}:{S_EX+1}]
    """)
    a.label(La)
    w1_issue(a, 5, 232, S_HW)
    a.e("s_waitcnt vmcnt(6)")
    a.e("s_barrier")
    w1_issue(a, 6, 232, S_HW)
    a.e("s_waitcnt vmcnt(6)")
    a.e("s_barrier")
    w1_issue(a, 7, 232, S_HW)
    a.e("s_waitcnt vmcnt(6)")
    a.e("s_barrier")
    sh.mark('S5')
    a.e("s_waitcnt vmcnt(0)")
    a.e("s_barrier")
    C = conv.conv_vmap(8)
    u_load(a, C)
    a.e("s_waitcnt vmcnt(0)")
    u_write(a, C)
    sh.mark('uld')
    a.e("s_barrier")
    a.e(f"""
    s_lshr_b32 s{S_T}, s{S_HW}, 1
    s_mul_i32 s76, s{S_T}, {KC_CH}
    s_add_u32 s76, s76, {LDS_KG}
    s_mul_i32 s77, s{S_T}, {U_CH}
    s_add_u32 s77, s77, {LDS_U}
    s_and_b32 s78, s{S_HW}, 1
    """)
    conv.conv_addr_setup(a, C, 76, 77, 78, S_T)
    make_srd(a, SRD_W, S_W2, 1409024)
    p2_bases(a)
    w2_dma_lane(a, 232, 236)
    a.e("s_barrier")
    conv.conv_main(a, C, extra=w2_dma_list([0,1,2], 232, 80, 81))
    sh.mark('conv')
    a.e(f"""
    s_lshr_b32 s{S_T}, s{S_HW}, 1
    s_lshl_b32 s79, s2, 1
    s_add_u32 s79, s79, s{S_T}
    s_lshl_b32 s79, s79, 12
    s_add_u32 s79, s79, {WS_AOT}
    """)
    conv_exchange_epilogue(a, C, 77, 35, 79)
    a.e("s_waitcnt vmcnt(0)")
    a.e(f"""
    s_lshl_b32 s{S_T}, s2, 6
    s_add_u32 s{S_T}, s{S_T}, {FC_OFF}
    """)
    lds_arrive_signal(a, 8, 4, S_T, 1)
    sh.mark('sigC')
    a.e(f"v_mov_b32 v{VD2}, v232")
    g2_map(a)
    a.label("L_tail")
    tail = Stamps(a, stamp is not None, base=84)
    tail.n = (sg.n if stamp == 'g' else sh.n) if stamp else 0
    tail.names = list(sg.names if stamp == 'g' else sh.names)
    tail2(a, tail if stamp else None)
    a.e("s_waitcnt vmcnt(0)")
    if stamp: tail.dump()
    kernel_fused.names = tail.names
    a.label("L_end")
    a.e("s_endpgm")
    return (KNAME, a.text(), 256, 102)
```

```python
from common import *
import kgen, conv
from kgen import rbf, KG_TAB
from conv import KC_COPY, KC_CH, U_CH, U_PAD

LDS_X = 0
W1_SLOT = [65536, 90112, 0, 24576]
LDS_KR = 49152
LDS_KG = 114688
LDS_STATS = 149504
LDS_CS = 150528
LDS_B1 = 151296
LDS_CNT = 152064
LDS_U = 152576
LDS_XT = LDS_U
LDS_W2 = 0
LDS_RED = 98304
LDS_TOTAL = 161792
W2_STAGE = 12288

FA_OFF = 0x1000; FB_OFF = 0x8000; FC_OFF = 0x10000; FSTR = 64

C0 = -2.0*LOG2E*math.sqrt(2.0/math.pi)
C1 = C0*0.044715

S_NONCE=34
S_RT=52; S_CT=53; S_P=54; S_NP=55; S_ROT=56; S_LH=57; S_FH=58; S_LTA=59; S_LTB=60; S_HW=61
S_T=62
S_GC=70; S_ONE=72; S_EX=74
S_KC=76; S_KNH=77; S_KTAB=78; S_KK=79
S_RT2=52; S_DT=53; S_S0=54; S_NS=55
S_SPIN=82; S_HB=83

def g1_map(a):
    t = S_T
    a.e(f"""
    s_and_b32 s{t}, s2, 7
    s_lshr_b32 s{t+1}, s2, 3
    s_lshr_b32 s{S_RT}, s{t}, 1
    s_lshl_b32 s{S_RT}, s{S_RT}, 3
    s_and_b32 s{t+2}, s{t+1}, 7
    s_add_u32 s{S_RT}, s{S_RT}, s{t+2}
    s_and_b32 s{S_CT}, s{t}, 1
    s_lshl_b32 s{S_CT}, s{S_CT}, 2
    s_lshr_b32 s{t+2}, s{t+1}, 3
    s_add_u32 s{S_CT}, s{S_CT}, s{t+2}
    s_mul_i32 s{S_P}, s{S_CT}, 43
    s_add_u32 s{S_NP}, s{S_P}, 48
    s_add_u32 s{S_P}, s{S_P}, 5
    s_lshr_b32 s{S_P}, s{S_P}, 3
    s_lshr_b32 s{S_NP}, s{S_NP}, 3
    s_sub_u32 s{S_NP}, s{S_NP}, s{S_P}
    s_lshl_b32 s{S_ROT}, s{S_CT}, 1
    s_add_u32 s{S_ROT}, s{S_ROT}, s{S_RT}
    s_and_b32 s{S_ROT}, s{S_ROT}, 7
    """)

def x_dma16(a, vt):
    t = S_T
    a.e(f"""
    s_lshl_b32 s{t}, s{S_RT}, 16
    s_lshl_b32 s{t+1}, s3, 14
    s_add_u32 s{t}, s{t}, s{t+1}
    s_lshl_b32 s{t+3}, s{S_ROT}, 3
    """)
    for i in range(16):
        v = vt + (i & 1)
        a.e(f"""
        v_xor_b32 v{v}, {i}, v0
        v_add_u32 v{v}, s{t+3}, v{v}
        v_and_b32 v{v}, 63, v{v}
        v_lshlrev_b32 v{v}, 4, v{v}
        s_add_u32 m0, s{t+1}, {LDS_X + i*1024}
        s_add_u32 s{t+5}, s{t}, {i*1024}
        buffer_load_dwordx4 v{v}, {sq(SRD_X)}, s{t+5} offen lds
        """)

def w1_lane_setup(a, vp, vt):
    for p in range(3):
        a.e(f"""
        v_add_u32 v{vt}, {64*p}, v0
        v_mul_u32_u24 v{vt+1}, 2731, v{vt}
        v_lshrrev_b32 v{vt+1}, 16, v{vt+1}
        v_mul_u32_u24 v{vt+2}, 24, v{vt+1}
        v_sub_u32 v{vt+2}, v{vt}, v{vt+2}
        v_lshrrev_b32 v{vt+3}, 1, v{vt+1}
        v_and_b32 v{vt+3}, 3, v{vt+3}
        v_lshlrev_b32 v{vt+3}, 1, v{vt+3}
        v_xor_b32 v{vt+2}, v{vt+2}, v{vt+3}
        v_lshrrev_b32 v{vt+3}, 2, v{vt+1}
        v_lshlrev_b32 v{vt+3}, 3, v{vt+3}
        v_and_b32 v{vt+1}, 3, v{vt+1}
        v_add_u32 v{vt+1}, v{vt+1}, v{vt+3}
        v_mul_u32_u24 v{vt+1}, 2752, v{vt+1}
        v_lshl_add_u32 v{vp+p}, v{vt+2}, 4, v{vt+1}
        """)

def w1_issue(a, st, vp, sW):
    slot = W1_SLOT[st % 4]
    t = S_T
    a.e(f"""
    s_add_u32 s{t}, s{S_ROT}, {st}
    s_and_b32 s{t}, s{t}, 7
    s_lshl_b32 s{t}, s{t}, 6
    s_lshr_b32 s{t+1}, s{sW}, 1
    s_lshl_b32 s{t+1}, s{t+1}, 5
    s_add_u32 s{t}, s{t}, s{t+1}
    s_and_b32 s{t+1}, s{sW}, 1
    s_lshl_b32 s{t+1}, s{t+1}, 2
    s_add_u32 s{t}, s{t}, s{t+1}
    s_mul_i32 s{t}, s{t}, 2752
    s_lshl_b32 s{t+1}, s{S_P}, 6
    s_add_u32 s{t}, s{t}, s{t+1}
    s_mul_i32 s{t+2}, s{sW}, 6144
    """)
    for gg in range(2):
        if gg == 1: a.e(f"s_add_u32 s{t}, s{t}, {16*2752}")
        for p in range(3):
            a.e(f"s_add_u32 m0, s{t+2}, {slot + (gg*3+p)*1024}")
            a.e(f"buffer_load_dwordx4 v{vp+p}, {sq(SRD_W)}, s{t} offen lds")

XF = 128; ACC = 80; CSA = 68; AF0 = 20; AF1 = 44; ADR = 8; ONES = 4
def xf(lt, s): return XF + 64*lt + 4*s
def acc(f, lt): return ACC + (2*f + lt)*4

def gemm_wave_setup(a):
    t = S_T
    a.e(f"""
    s_and_b32 s{S_LH}, s3, 1
    s_lshr_b32 s{S_FH}, s3, 1
    s_lshl_b32 s{S_LTA}, s{S_LH}, 1
    s_add_u32 s{S_LTB}, s{S_LTA}, 1
    s_sub_u32 s{S_LTB}, s{S_LTB}, s{S_FH}
    s_add_u32 s{S_LTA}, s{S_LTA}, s{S_FH}
    s_mov_b32 s{S_GC}, {hx(C0)}
    s_mov_b32 s{S_GC+1}, {hx(C1)}
    s_mov_b32 s{S_ONE}, 1.0
    s_mov_b32 s{S_ONE+1}, 1.0
    v_lshrrev_b32 v1, 2, v0
    v_mul_u32_u24 v2, 384, v1
    v_and_b32 v3, 3, v0
    v_lshl_add_u32 v2, v3, 3, v2
    v_lshrrev_b32 v3, 1, v1
    v_and_b32 v3, 3, v3
    s_mul_i32 s{t}, s{S_FH}, 6
    """)
    for f in range(6):
        a.e(f"""
        s_add_u32 s{t+2}, s{t}, {f}
        v_xor_b32 v14, s{t+2}, v3
        v_lshl_add_u32 v{ADR+f}, v14, 5, v2
        v_add_u32 v{ADR+f}, {W1_SLOT[0]}, v{ADR+f}
        """)
    for i in range(4): a.e(f"v_mov_b32 v{ONES+i}, 0x3f803f80")

def gemm_load_x(a):
    t = S_T
    a.e(f"""
    v_and_b32 v1, 15, v0
    v_lshrrev_b32 v2, 4, v0
    v_lshlrev_b32 v3, 10, v1
    s_lshl_b32 s{t}, s{S_LTA}, 14
    s_lshl_b32 s{t+1}, s{S_LTB}, 14
    """)
    for q in range(4):
        a.e(f"""
        v_add_u32 v14, {4*q}, v2
        v_xor_b32 v14, v14, v1
        v_lshl_add_u32 v14, v14, 4, v3
        v_add_u32 v{AF0+q}, s{t}, v14
        v_add_u32 v{AF0+4+q}, s{t+1}, v14
        """)
    n = 0
    for lt in range(2):
        for s in range(16):
            a.e(f"ds_read_b128 {vr(xf(lt,s),4)}, v{AF0+4*lt+(s&3)} offset:{LDS_X + (s>>2)*256}")
            n += 1
            if n % 12 == 0: a.e("s_waitcnt lgkmcnt(4)")
    a.e("s_waitcnt lgkmcnt(0)")

def a_reads(sp_, buf):
    return [f"ds_read_b64_tr_b16 {vr(buf+4*f+2*h,2)}, v{ADR+f} offset:{(32*sp_+16*h)*384}" for f in range(6) for h in range(2)]

def gemm_stage(a, st, lh):
    cs_slots = [0,1,2] if lh == 0 else [3,4,5]
    def mm(sp_, buf):
        M = []
        s = 2*st + sp_
        for f in range(6):
            for lt in range(2):
                c = "0" if s == 0 else vr(acc(f,lt),4)
                M.append(f"v_mfma_f32_16x16x32_bf16 {vr(acc(f,lt),4)}, {vr(buf+4*f,4)}, {vr(xf(lt,s),4)}, {c}")
            if f in cs_slots:
                D = CSA + 4*cs_slots.index(f)
                c = "0" if s == 0 else vr(D,4)
                M.append(f"v_mfma_f32_16x16x32_bf16 {vr(D,4)}, {vr(buf+4*f,4)}, {vr(ONES,4)}, {c}")
        return M
    a.e("s_waitcnt lgkmcnt(0)")
    M = mm(0, AF0); L = a_reads(1, AF1)
    for i in range(len(M)):
        a.e(M[i])
        if i < len(L): a.e(L[i])
    a.e("s_waitcnt lgkmcnt(0)")
    M = mm(1, AF1); L = []
    if st < 7:
        d = W1_SLOT[(st+1)%4] - W1_SLOT[st%4]
        L = [f"v_add_u32 v{ADR+f}, {d & 0xffffffff:#x}, v{ADR+f}" for f in range(6)]
        R = a_reads(0, AF0)
        L = []
        for f in range(6):
            L.append(f"v_add_u32 v{ADR+f}, {d & 0xffffffff:#x}, v{ADR+f}")
            L.append(R[2*f]); L.append(R[2*f+1])
    li = 0
    for i in range(len(M)):
        a.e(M[i])
        for _ in range(2 if i < 3 else 1):
            if li < len(L): a.e(L[li]); li += 1
    while li < len(L): a.e(L[li]); li += 1

def cs_write(a, lh):
    t = S_T
    a.e(f"""
    v_lshrrev_b32 v1, 4, v0
    v_lshlrev_b32 v1, 4, v1
    s_mul_i32 s{t}, s{S_FH}, 384
    s_add_u32 s{t}, s{t}, {LDS_CS + (0 if lh == 0 else 192)}
    v_add_u32 v1, s{t}, v1
    v_and_b32 v2, 15, v0
    v_cmp_eq_u32 vcc, 0, v2
    s_and_saveexec_b64 s[{S_EX}:{S_EX+1}], vcc
    """)
    for i in range(3): a.e(f"ds_write_b128 v1, {vr(CSA+4*i,4)} offset:{64*i}")
    a.e(f"s_mov_b64 exec, s[{S_EX}:{S_EX+1}]")
    a.e("s_waitcnt lgkmcnt(0)")

def ln_scalars(a, S, Q, mean, r12, mbf, r1, t0, t1):
    a.e(f"""
    v_mul_f32 v{mean}, {hx(1/512)}, v{S}
    v_mul_f32 v{t0}, {hx(1/512)}, v{Q}
    v_fma_f32 v{t0}, -v{mean}, v{mean}, v{t0}
    v_max_f32 v{t0}, 0, v{t0}
    """)
    rbf(a, mbf, mean)
    rbf(a, t1, t0)
    a.e(f"v_add_f32 v{t1}, {hx(1e-5)}, v{t1}")
    rbf(a, t1, t1)
    a.e(f"v_sqrt_f32 v{t1}, v{t1}")
    rbf(a, t1, t1)
    a.e(f"v_rcp_f32 v{r1}, v{t1}")
    a.e(f"v_mul_f32 v{t0}, v{t0}, v{r1}")
    a.e(f"v_mul_f32 v{t0}, v{t0}, v{r1}")
    rbf(a, t0, t0)
    a.e(f"v_add_f32 v{t0}, {hx(1e-5)}, v{t0}")
    rbf(a, t0, t0)
    a.e(f"v_sqrt_f32 v{t0}, v{t0}")
    rbf(a, t0, t0)
    a.e(f"v_rcp_f32 v{t0}, v{t0}")
    a.e(f"v_mul_f32 v{r12}, v{r1}, v{t0}")

def gemm_epilogue(a, extra=None):
    t = S_T
    R = [14, 16]
    a.e(f"""
    v_and_b32 v1, 15, v0
    s_lshl_b32 s{t}, s{S_LTA}, 8
    s_add_u32 s{t}, s{t}, {LDS_STATS}
    v_lshl_add_u32 v2, v1, 4, s{t}
    ds_read_b64 v[20:21], v2
    s_lshl_b32 s{t}, s{S_LTB}, 8
    s_add_u32 s{t}, s{t}, {LDS_STATS}
    v_lshl_add_u32 v2, v1, 4, s{t}
    ds_read_b64 v[22:23], v2
    v_lshrrev_b32 v2, 4, v0
    v_lshlrev_b32 v2, 4, v2
    v_add_u32 v2, {LDS_CS}, v2
    s_mul_i32 s{t}, s{S_FH}, 384
    v_add_u32 v2, s{t}, v2
    v_lshlrev_b32 v3, 4, v0
    s_mul_i32 s{t+4}, s{S_RT}, {H_RT}
    s_add_u32 s{t+4}, s{t+4}, {WS_H}
    s_waitcnt lgkmcnt(0)
    v_mov_b32 v{R[0]}, v21
    v_mul_f32 v{R[0]+1}, v20, v21
    v_sub_f32 v{R[0]+1}, 0, v{R[0]+1}
    v_mov_b32 v{R[1]}, v23
    v_mul_f32 v{R[1]+1}, v22, v23
    v_sub_f32 v{R[1]+1}, 0, v{R[1]+1}
    """)
    CSr, B1r, TT, T2, OUT = 20, 28, 36, 44, 52
    for pp in range(3):
        for h in range(2):
            a.e(f"ds_read_b128 {vr(CSr+4*h,4)}, v2 offset:{128*pp + 64*h}")
            a.e(f"ds_read_b128 {vr(B1r+4*h,4)}, v2 offset:{LDS_B1 - LDS_CS + 128*pp + 64*h}")
        Lskip = a.newlabel("Lg1skip")
        a.e(f"""
        s_mul_i32 s{t}, s{S_FH}, 3
        s_add_u32 s{t}, s{t}, {pp}
        s_cmp_ge_u32 s{t}, s{S_NP}
        s_cbranch_scc1 {Lskip}
        s_add_u32 s{t+2}, s{t}, s{S_P}
        s_lshl_b32 s{t+2}, s{t+2}, 12
        s_add_u32 s{t+2}, s{t+2}, s{t+4}
        s_waitcnt lgkmcnt(0)
        """)
        for lt in range(2):
            items = [(h,q) for h in range(2) for q in range(2)]
            X = lambda h,q: acc(2*pp+h, lt) + 2*q
            k = lambda h,q: 2*(2*h+q)
            for (h,q) in items: a.e(f"v_pk_fma_f32 {vr(TT+k(h,q),2)}, {vr(CSr+4*h+2*q,2)}, {vr(R[lt],2)}, {vr(B1r+4*h+2*q,2)} op_sel:[0,1,0] op_sel_hi:[1,1,1]")
            for (h,q) in items: a.e(f"v_pk_fma_f32 {vr(X(h,q),2)}, {vr(X(h,q),2)}, {vr(R[lt],2)}, {vr(TT+k(h,q),2)} op_sel:[0,0,0] op_sel_hi:[1,0,1]")
            for (h,q) in items: a.e(f"v_pk_mul_f32 {vr(T2+k(h,q),2)}, {vr(X(h,q),2)}, {vr(X(h,q),2)}")
            for (h,q) in items: a.e(f"v_pk_fma_f32 {vr(T2+k(h,q),2)}, {vr(T2+k(h,q),2)}, s[{S_GC}:{S_GC+1}], s[{S_GC}:{S_GC+1}] op_sel:[0,1,0] op_sel_hi:[1,1,0]")
            for (h,q) in items: a.e(f"v_pk_mul_f32 {vr(T2+k(h,q),2)}, {vr(T2+k(h,q),2)}, {vr(X(h,q),2)}")
            for (h,q) in items:
                a.e(f"v_exp_f32 v{T2+k(h,q)}, v{T2+k(h,q)}"); a.e(f"v_exp_f32 v{T2+k(h,q)+1}, v{T2+k(h,q)+1}")
            for (h,q) in items: a.e(f"v_pk_add_f32 {vr(T2+k(h,q),2)}, {vr(T2+k(h,q),2)}, s[{S_ONE}:{S_ONE+1}]")
            for (h,q) in items:
                a.e(f"v_rcp_f32 v{T2+k(h,q)}, v{T2+k(h,q)}"); a.e(f"v_rcp_f32 v{T2+k(h,q)+1}, v{T2+k(h,q)+1}")
            for (h,q) in items: a.e(f"v_pk_mul_f32 {vr(X(h,q),2)}, {vr(X(h,q),2)}, {vr(T2+k(h,q),2)}")
            for (h,q) in items: a.e(f"v_cvt_pk_bf16_f32 v{OUT+4*lt+2*h+q}, v{X(h,q)}, v{X(h,q)+1}")
            sl = S_LTA if lt == 0 else S_LTB
            a.e(f"""
            s_lshl_b32 s{t+3}, s{sl}, 10
            s_add_u32 s{t+3}, s{t+3}, s{t+2}
            buffer_store_dwordx4 {vr(OUT+4*lt,4)}, v3, {sq(SRD_WS)}, s{t+3} offen sc1
            """)
        a.label(Lskip)
        a.e("s_waitcnt lgkmcnt(0)")

def lds_arrive_signal(a, cnt_off, nwaves, sFlagOff, vt):
    L = a.newlabel("Lsig")
    a.e(f"""
    v_mov_b32 v{vt}, {LDS_CNT + cnt_off}
    v_mov_b32 v{vt+1}, 1
    s_mov_b64 s[{S_EX}:{S_EX+1}], exec
    s_mov_b64 exec, 1
    ds_add_rtn_u32 v{vt+1}, v{vt}, v{vt+1}
    s_waitcnt lgkmcnt(0)
    v_readfirstlane_b32 s{S_T+6}, v{vt+1}
    s_cmp_lg_u32 s{S_T+6}, {nwaves-1}
    s_cbranch_scc1 {L}
    v_mov_b32 v{vt}, 0
    v_mov_b32 v{vt+1}, s{S_NONCE}
    buffer_store_dword v{vt+1}, v{vt}, {sq(SRD_WS)}, s{sFlagOff} offen sc1
    """)
    a.label(L)
    a.e(f"s_mov_b64 exec, s[{S_EX}:{S_EX+1}]")

def poll_flags(a, nl, vOff, sBase, vt):
    L = a.newlabel("Lpoll"); E = a.newlabel("Lpolld")
    a.e(f"""
    s_mov_b64 s[{S_EX}:{S_EX+1}], exec
    s_mov_b32 exec_lo, {hex((1<<nl)-1)}
    s_mov_b32 exec_hi, 0
    s_mov_b32 s{S_SPIN}, 200000
    """)
    a.label(L)
    a.e(f"""
    buffer_load_dword v{vt}, v{vOff}, {sq(SRD_WS)}, s{sBase} offen sc1
    s_waitcnt vmcnt(0)
    v_cmp_ne_u32 vcc, s{S_NONCE}, v{vt}
    s_nop 4
    s_cbranch_vccz {E}
    s_sub_u32 s{S_SPIN}, s{S_SPIN}, 1
    s_cmp_eq_u32 s{S_SPIN}, 0
    s_cbranch_scc1 {E}
    s_sleep 2
    s_branch {L}
    """)
    a.label(E)
    a.e(f"s_mov_b64 exec, s[{S_EX}:{S_EX+1}]")

def read_nonce_lds(a, vt):
    a.e(f"""
    v_mov_b32 v{vt}, {LDS_CNT + 32}
    ds_read_b32 v{vt}, v{vt}
    s_waitcnt lgkmcnt(0)
    v_readfirstlane_b32 s{S_NONCE}, v{vt}
    """)

HX = 160
def helper_stats_xn(a):
    t = S_T
    T = 140
    a.e(f"""
    v_and_b32 v{T}, 15, v0                    ; l'
    v_lshrrev_b32 v{T+1}, 4, v0               ; g
    v_lshlrev_b32 v{T+2}, 10, v{T}
    s_lshl_b32 s{t}, s{S_HW}, 14
    v_add_u32 v{T+2}, s{t}, v{T+2}            ; row*1024
    """)
    for q in range(4):
        a.e(f"""
        v_add_u32 v{T+3}, {4*q}, v{T+1}
        v_xor_b32 v{T+3}, v{T+3}, v{T}
        v_lshl_add_u32 v{T+4+q}, v{T+3}, 4, v{T+2}
        """)
    for s in range(16):
        a.e(f"ds_read_b128 {vr(HX+4*s,4)}, v{T+4+(s&3)} offset:{LDS_X + (s>>2)*256}")
        if s == 11: a.e("s_waitcnt lgkmcnt(4)")
    a.e(f"""
    s_sub_u32 s{t+1}, s{S_CT}, s{S_ROT}
    s_and_b32 s{t+1}, s{t+1}, 7
    s_lshl_b32 s{t+1}, s{t+1}, 3
    v_lshlrev_b32 v{T+3}, 1, v{T+1}
    v_add_u32 v{T+3}, s{t+1}, v{T+3}
    v_xor_b32 v{T+4}, v{T+3}, v{T}
    v_add_u32 v{T+3}, 1, v{T+3}
    v_xor_b32 v{T+5}, v{T+3}, v{T}
    v_lshl_add_u32 v{T+4}, v{T+4}, 4, v{T+2}
    v_lshl_add_u32 v{T+5}, v{T+5}, 4, v{T+2}
    """)
    ON = 236; SA = 148; QA = 152; XS = 224
    for i in range(4): a.e(f"v_mov_b32 v{ON+i}, 0x3f803f80")
    a.e(f"ds_read_b128 {vr(XS,4)}, v{T+4} offset:{LDS_X}")
    a.e(f"ds_read_b128 {vr(XS+4,4)}, v{T+5} offset:{LDS_X}")
    for s in range(16):
        if s == 0: a.e("s_waitcnt lgkmcnt(6)")
        if s == 12: a.e("s_waitcnt lgkmcnt(2)")
        f = vr(HX+4*s,4)
        a.e(f"v_mfma_f32_16x16x32_bf16 {vr(SA,4)}, {vr(ON,4)}, {f}, {'0' if s==0 else vr(SA,4)}")
        a.e(f"v_mfma_f32_16x16x32_bf16 {vr(QA,4)}, {f}, {f}, {'0' if s==0 else vr(QA,4)}")
    a.e(f"""
    v_and_b32 v{T+6}, 3, v0
    v_cmp_eq_u32 vcc, 1, v{T+6}
    v_cndmask_b32 v{T+7}, v{QA}, v{QA+1}, vcc
    v_cmp_eq_u32 vcc, 2, v{T+6}
    v_cndmask_b32 v{T+7}, v{T+7}, v{QA+2}, vcc
    v_cmp_eq_u32 vcc, 3, v{T+6}
    v_cndmask_b32 v{T+7}, v{T+7}, v{QA+3}, vcc
    v_lshrrev_b32 v{T+6}, 2, v{T}
    v_lshl_add_u32 v{T+6}, v{T+6}, 4, v{T}
    v_lshlrev_b32 v{T+6}, 2, v{T+6}
    ds_bpermute_b32 v{T+7}, v{T+6}, v{T+7}
    s_waitcnt lgkmcnt(0)
    """)
    MN = 156
    ln_scalars(a, SA, T+7, MN, MN+1, MN+2, MN+3, T+8, T+9)
    a.e(f"""
    s_lshl_b32 s{t}, s{S_HW}, 8
    s_add_u32 s{t}, s{t}, {LDS_STATS}
    v_lshl_add_u32 v{T+6}, v{T}, 4, s{t}
    v_cmp_gt_u32 vcc, 16, v0
    s_and_saveexec_b64 s[{S_EX}:{S_EX+1}], vcc
    ds_write_b128 v{T+6}, {vr(MN,4)}
    s_mov_b64 exec, s[{S_EX}:{S_EX+1}]
    """)
    a.e(f"""
    v_lshrrev_b32 v{T+6}, 1, v{T}
    v_and_b32 v{T+6}, 3, v{T+6}
    v_xor_b32 v{T+6}, v{T+6}, v{T+1}
    v_lshlrev_b32 v{T+6}, 5, v{T+6}
    v_lshl_add_u32 v{T+6}, v{T}, 7, v{T+6}
    s_lshl_b32 s{t}, s{S_HW}, 11
    s_add_u32 s{t}, s{t}, {LDS_XT}
    v_add_u32 v{T+6}, s{t}, v{T+6}
    """)
    for i in range(8):
        r = XS + i; u = T+8
        a.e(f"""
        v_lshlrev_b32 v{u}, 16, v{r}
        v_and_b32 v{u+1}, 0xffff0000, v{r}
        v_sub_f32 v{u}, v{u}, v{MN+2}
        v_sub_f32 v{u+1}, v{u+1}, v{MN+2}
        v_cvt_pk_bf16_f32 v{u}, v{u}, v{u+1}
        v_and_b32 v{u+1}, 0xffff0000, v{u}
        v_lshlrev_b32 v{u}, 16, v{u}
        v_mul_f32 v{u}, v{u}, v{MN+3}
        v_mul_f32 v{u+1}, v{u+1}, v{MN+3}
        v_cvt_pk_bf16_f32 v{r}, v{u}, v{u+1}
        """)
    a.e(f"ds_write_b128 v{T+6}, {vr(XS,4)}")
    a.e(f"ds_write_b128 v{T+6}, {vr(XS+4,4)} offset:16")

def xn_store(a):
    t = S_T; T = 140
    a.e(f"""
    v_lshrrev_b32 v{T}, 4, v0
    v_and_b32 v{T+1}, 15, v0
    v_lshrrev_b32 v{T+2}, 2, v{T+1}
    v_and_b32 v{T+3}, 3, v0
    v_lshl_add_u32 v{T+4}, v{T}, 3, v{T+2}
    v_lshlrev_b32 v{T+4}, 7, v{T+4}
    v_lshl_add_u32 v{T+4}, v{T+3}, 3, v{T+4}
    v_add_u32 v{T+4}, {LDS_XT}, v{T+4}
    v_lshrrev_b32 v{T+5}, 1, v{T+2}
    v_xor_b32 v{T+6}, s{S_HW}, v{T+5}
    v_lshl_add_u32 v{T+6}, v{T+6}, 5, v{T+4}
    v_add_u32 v{T+5}, 2, v{T+5}
    v_xor_b32 v{T+7}, s{S_HW}, v{T+5}
    v_lshl_add_u32 v{T+7}, v{T+7}, 5, v{T+4}
    """)
    XS = 224
    for half in range(2):
        a.e(f"ds_read_b64_tr_b16 {vr(XS+4*half,2)}, v{T+6} offset:{half*32*128}")
        a.e(f"ds_read_b64_tr_b16 {vr(XS+2+4*half,2)}, v{T+7} offset:{half*32*128 + 4*128}")
    a.e(f"""
    v_lshlrev_b32 v{T+8}, 12, v{T+1}
    v_lshl_add_u32 v{T+8}, v{T}, 4, v{T+8}
    s_lshl_b32 s{t}, s{S_CT}, 6
    s_lshl_b32 s{t+1}, s{S_HW}, 4
    s_add_u32 s{t}, s{t}, s{t+1}
    s_lshl_b32 s{t}, s{t}, 12
    s_lshl_b32 s{t+1}, s{S_RT}, 7
    s_add_u32 s{t}, s{t}, s{t+1}
    s_add_u32 s{t}, s{t}, {WS_XNT}
    s_waitcnt lgkmcnt(0)
    buffer_store_dwordx4 {vr(XS,4)}, v{T+8}, {sq(SRD_WS)}, s{t} offen sc1
    buffer_store_dwordx4 {vr(XS+4,4)}, v{T+8}, {sq(SRD_WS)}, s{t} offen offset:64 sc1
    """)

def gather_to_lds(a, G):
    t = S_T
    a.e(f"""
    s_and_b32 s{t}, s{S_HW}, 1
    s_lshl_b32 s{t}, s{t}, 6
    v_add_u32 v{G['tid']}, s{t}, v0
    s_lshr_b32 s{t+1}, s{S_HW}, 1
    s_mul_i32 s{t+2}, s{t+1}, {2*KG_TAB}
    s_add_u32 s{t+2}, s{t+2}, {LDS_KG}
    v_mov_b32 v{G['tab']}, s{t+2}
    s_mul_i32 s{t+3}, s{t+1}, {KR_STRIDE}
    s_add_u32 s{t+3}, s{t+3}, {LDS_KR}
    """)
    def st(a, rnd):
        a.e(f"""
        v_lshl_add_u32 v{G['off']}, v{G['ck']}, 4, s{t+3}
        v_cmp_gt_u32 vcc, 264, v{G['ck']}
        s_and_saveexec_b64 s[{S_EX}:{S_EX+1}], vcc
        ds_write_b128 v{G['off']}, {vr(G['o'],4)}
        s_mov_b64 exec, s[{S_EX}:{S_EX+1}]
        """)
    kgen.gather(a, G, G['tid'], G['tab'], 128, st)
    a.e("s_waitcnt lgkmcnt(0)")

def build_copies(a, C):
    t = S_T
    a.e(f"""
    s_and_b32 s{t}, s{S_HW}, 1
    s_lshl_b32 s{t}, s{t}, 6
    v_add_u32 v{C['tid']}, s{t}, v0
    s_lshr_b32 s{t+1}, s{S_HW}, 1
    s_mul_i32 s{t+2}, s{t+1}, {KC_CH}
    s_add_u32 s{t+2}, s{t+2}, {LDS_KG}
    v_mov_b32 v{C['ua']}, s{t+2}
    s_mul_i32 s{t+3}, s{t+1}, {KR_STRIDE}
    s_add_u32 s{t+3}, s{t+3}, {LDS_KR}
    """)
    def ld(a, rnd, d):
        a.e(f"""
        v_lshl_add_u32 v{C['wb']}, v{C['ck']}, 4, s{t+3}
        ds_read_b128 {vr(d,4)}, v{C['wb']}
        ds_read_b64 {vr(d+4,2)}, v{C['wb']} offset:16
        s_waitcnt lgkmcnt(0)
        """)
    conv.conv_build_copies(a, C, C['tid'], 128, C['ua'], ld)
    a.e("s_waitcnt lgkmcnt(0)")

def u_load(a, C):
    t = S_T
    a.e(f"""
    v_lshlrev_b32 v{C['t0']}, 6, v0              ; lane*64
    s_lshr_b32 s{t}, s2, 5
    s_lshl_b32 s{t}, s{t}, 11                    ; slice*32*64
    s_add_u32 s{t}, s{t}, {FA_OFF}
    """)
    poll_flags(a, 32, C['t0'], t, C['t1'])
    a.e(f"""
    s_lshr_b32 s{t+1}, s{S_HW}, 1
    s_lshl_b32 s{t+2}, s2, 1
    s_add_u32 s{t+2}, s{t+2}, s{t+1}             ; channel
    s_lshl_b32 s{t+2}, s{t+2}, 12
    s_add_u32 s{t+2}, s{t+2}, {WS_XNT}
    s_and_b32 s{t+3}, s{S_HW}, 1
    s_lshl_b32 s{t+3}, s{t+3}, 6
    v_add_u32 v{C['tid']}, s{t+3}, v0
    v_lshlrev_b32 v{C['t2']}, 4, v{C['tid']}
    buffer_load_dwordx4 {vr(C['B0'],4)}, v{C['t2']}, {sq(SRD_WS)}, s{t+2} offen sc1
    buffer_load_dwordx4 {vr(C['B0']+4,4)}, v{C['t2']}, {sq(SRD_WS)}, s{t+2} offen offset:2048 sc1
    s_mul_i32 s{t+3}, s{t+1}, {U_CH}
    s_add_u32 s{t+3}, s{t+3}, {LDS_U}
    v_add_u32 v{C['t3']}, s{t+3}, v{C['t2']}
    v_mov_b32 v{C['B1']}, 0
    v_mov_b32 v{C['B1']+1}, 0
    v_mov_b32 v{C['B1']+2}, 0
    v_mov_b32 v{C['B1']+3}, 0
    v_cmp_gt_u32 vcc, 30, v{C['tid']}
    s_and_saveexec_b64 s[{S_EX}:{S_EX+1}], vcc
    ds_write_b128 v{C['t3']}, {vr(C['B1'],4)}
    s_mov_b64 exec, s[{S_EX}:{S_EX+1}]
    """)
def u_write(a, C):
    a.e(f"""
    ds_write_b128 v{C['t3']}, {vr(C['B0'],4)} offset:{U_PAD}
    ds_write_b128 v{C['t3']}, {vr(C['B0']+4,4)} offset:{U_PAD+2048}
    s_waitcnt lgkmcnt(0)
    """)

def conv_exchange_epilogue(a, C, sU, sD, sOut):
    t = S_T
    Lh1 = a.newlabel("Lxh"); Lj = a.newlabel("Lxj"); Lsp = a.newlabel("Lxs"); Lsd = a.newlabel("Lxd")
    a.e(f"""
    s_lshl_b32 s{t}, s{S_HW}, 12
    s_add_u32 s{t}, s{t}, {LDS_RED}
    v_lshl_add_u32 v{C['t0']}, v0, 4, s{t}
    s_xor_b32 s{t+1}, s{S_HW}, 1
    s_lshl_b32 s{t+2}, s{t+1}, 12
    s_add_u32 s{t+2}, s{t+2}, {LDS_RED}
    v_lshl_add_u32 v{C['t1']}, v0, 4, s{t+2}
    s_and_b32 s{t+3}, s{S_HW}, 1
    s_cmp_eq_u32 s{t+3}, 1
    s_cbranch_scc1 {Lh1}
    """)
    for G in range(4,8): a.e(f"ds_write_b128 v{C['t0']}, {vr(C['acc']+4*G,4)} offset:{1024*(G-4)}")
    a.e(f"s_branch {Lj}")
    a.label(Lh1)
    for G in range(0,4): a.e(f"ds_write_b128 v{C['t0']}, {vr(C['acc']+4*G,4)} offset:{1024*G}")
    for i in range(16): a.e(f"v_mov_b32 v{C['acc']+i}, v{C['acc']+16+i}")
    a.label(Lj)
    a.e(f"""
    s_waitcnt lgkmcnt(0)
    s_lshl_b32 s{t+4}, s{S_HW}, 2
    s_add_u32 s{t+4}, s{t+4}, {LDS_CNT+16}
    v_mov_b32 v{C['t2']}, s{t+4}
    v_mov_b32 v{C['t3']}, 1
    ds_write_b32 v{C['t2']}, v{C['t3']}
    s_lshl_b32 s{t+4}, s{t+1}, 2
    s_add_u32 s{t+4}, s{t+4}, {LDS_CNT+16}
    v_mov_b32 v{C['t2']}, s{t+4}
    s_mov_b32 s{S_SPIN}, 1000000
    """)
    a.label(Lsp)
    a.e(f"""
    ds_read_b32 v{C['t3']}, v{C['t2']}
    s_waitcnt lgkmcnt(0)
    v_readfirstlane_b32 s{t+4}, v{C['t3']}
    s_cmp_eq_u32 s{t+4}, 1
    s_cbranch_scc1 {Lsd}
    s_sub_u32 s{S_SPIN}, s{S_SPIN}, 1
    s_cmp_lg_u32 s{S_SPIN}, 0
    s_cbranch_scc1 {Lsp}
    """)
    a.label(Lsd)
    for G in range(4): a.e(f"ds_read_b128 {vr(C['A1']+4*G,4)}, v{C['t1']} offset:{1024*G}")
    a.e(f"""
    v_and_b32 v{C['t0']}, 15, v0
    v_lshrrev_b32 v{C['t1']}, 4, v0
    v_lshlrev_b32 v{C['t2']}, 5, v{C['t0']}
    v_lshl_add_u32 v{C['t2']}, v{C['t1']}, 3, v{C['t2']}
    s_lshl_b32 s{t+3}, s{t+3}, 11
    s_add_u32 s{t+4}, s{sU}, s{t+3}
    v_add_u32 v{C['ua']}, s{t+4}, v{C['t2']}
    s_add_u32 s{sOut}, s{sOut}, s{t+3}
    """)
    U0 = C['A0']
    for G in range(4): a.e(f"ds_read_b64 {vr(U0+2*G,2)}, v{C['ua']} offset:{U_PAD+512*G}")
    a.e("s_waitcnt lgkmcnt(0)")
    for i in range(16): a.e(f"v_add_f32 v{C['acc']+i}, v{C['acc']+i}, v{C['A1']+i}")
    for G in range(4):
        y = C['acc'] + 4*G; u0 = U0 + 2*G; w = C['B0'] + 4*G
        a.e(f"""
        v_lshlrev_b32 v{w}, 16, v{u0}
        v_and_b32 v{w+1}, 0xffff0000, v{u0}
        v_lshlrev_b32 v{w+2}, 16, v{u0+1}
        v_and_b32 v{w+3}, 0xffff0000, v{u0+1}
        v_mul_f32 v{w}, s{sD}, v{w}
        v_mul_f32 v{w+1}, s{sD}, v{w+1}
        v_mul_f32 v{w+2}, s{sD}, v{w+2}
        v_mul_f32 v{w+3}, s{sD}, v{w+3}
        v_cvt_pk_bf16_f32 v{w}, v{w}, v{w+1}
        v_cvt_pk_bf16_f32 v{w+2}, v{w+2}, v{w+3}
        v_cvt_pk_bf16_f32 v{y}, v{y}, v{y+1}
        v_cvt_pk_bf16_f32 v{y+2}, v{y+2}, v{y+3}
        v_lshlrev_b32 v{w+1}, 16, v{w}
        v_and_b32 v{w}, 0xffff0000, v{w}
        v_lshlrev_b32 v{w+3}, 16, v{w+2}
        v_and_b32 v{w+2}, 0xffff0000, v{w+2}
        v_lshlrev_b32 v{y+1}, 16, v{y}
        v_and_b32 v{y}, 0xffff0000, v{y}
        v_lshlrev_b32 v{y+3}, 16, v{y+2}
        v_and_b32 v{y+2}, 0xffff0000, v{y+2}
        v_add_f32 v{w+1}, v{w+1}, v{y+1}
        v_add_f32 v{w}, v{w}, v{y}
        v_add_f32 v{w+3}, v{w+3}, v{y+3}
        v_add_f32 v{w+2}, v{w+2}, v{y+2}
        v_cvt_pk_bf16_f32 v{y}, v{w+1}, v{w}
        v_cvt_pk_bf16_f32 v{y+1}, v{w+3}, v{w+2}
        buffer_store_dwordx2 {vr(y,2)}, v{C['t2']}, {sq(SRD_WS)}, s{sOut} offen offset:{512*G} sc1
        """)

W2F = 128; ACC2 = 64
HFB = [16, 32, 48, 224, 240]
VD2 = 4; VA2 = 5; VL2 = 9
def w2f(s, d): return W2F + (4*s + d)*4
def acc2(l, d): return ACC2 + (4*l + d)*4

def g2_map(a):
    t = S_T
    a.e(f"""
    s_and_b32 s{t}, s2, 7
    s_lshr_b32 s{t+1}, s2, 3
    s_lshl_b32 s{S_RT2}, s{t}, 2
    s_and_b32 s{t+2}, s{t+1}, 3
    s_add_u32 s{S_RT2}, s{S_RT2}, s{t+2}
    s_lshr_b32 s{S_DT}, s{t+1}, 2
    s_mul_i32 s{S_S0}, s3, 43
    s_add_u32 s{S_NS}, s{S_S0}, 48
    s_add_u32 s{S_S0}, s{S_S0}, 5
    s_lshr_b32 s{S_S0}, s{S_S0}, 3
    s_lshr_b32 s{S_NS}, s{S_NS}, 3
    s_sub_u32 s{S_NS}, s{S_NS}, s{S_S0}
    """)

def w2_dma_lane(a, vD, vt):
    a.e(f"""
    v_lshrrev_b32 v{vt}, 3, v0
    v_lshlrev_b32 v{vt}, 10, v{vt}
    v_lshrrev_b32 v{vt+1}, 4, v0
    v_and_b32 v{vt+1}, 3, v{vt+1}
    v_lshlrev_b32 v{vt+1}, 1, v{vt+1}
    v_and_b32 v{vt+2}, 7, v0
    v_xor_b32 v{vt+1}, v{vt+1}, v{vt+2}
    v_lshl_add_u32 v{vD}, v{vt+1}, 4, v{vt}
    """)
def w2_read_lane(a, vA, vt):
    t = S_T
    a.e(f"""
    v_lshrrev_b32 v{vt}, 2, v0
    v_lshlrev_b32 v{vt+1}, 7, v{vt}
    v_and_b32 v{vt+2}, 3, v0
    v_lshl_add_u32 v{vt+1}, v{vt+2}, 3, v{vt+1}
    v_lshrrev_b32 v{vt+2}, 1, v{vt}
    v_and_b32 v{vt+2}, 3, v{vt+2}
    s_mul_i32 s{t}, s3, {W2_STAGE}
    s_add_u32 s{t}, s{t}, {LDS_W2}
    v_add_u32 v{vt+1}, s{t}, v{vt+1}
    """)
    for ds in range(4):
        a.e(f"v_xor_b32 v{vt}, {ds}, v{vt+2}")
        a.e(f"v_lshl_add_u32 v{vA+ds}, v{vt}, 5, v{vt+1}")

def w2_dma(a, steps, vD, sS0, sDT):
    t = S_T
    for s in steps:
        a.e(f"""
        s_add_u32 s{t}, s{sS0}, {s}
        s_lshl_b32 s{t}, s{t}, 15
        s_lshl_b32 s{t+1}, s{sDT}, 7
        s_add_u32 s{t}, s{t}, s{t+1}
        s_mul_i32 s{t+2}, s3, {W2_STAGE}
        """)
        for q in range(4):
            a.e(f"s_add_u32 m0, s{t+2}, {LDS_W2 + (s%3)*4096 + q*1024}")
            a.e(f"s_add_u32 s{t+1}, s{t}, {q*8192}")
            a.e(f"buffer_load_dwordx4 v{vD}, {sq(SRD_W)}, s{t+1} offen lds")

def w2_read(a, steps, vA):
    n = 0
    for s in steps:
        for ds in range(4):
            for h in range(2):
                a.e(f"ds_read_b64_tr_b16 {vr(w2f(s,ds)+2*h,2)}, v{vA+ds} offset:{(s%3)*4096 + h*2048}")
                n += 1
                if n % 12 == 0: a.e("s_waitcnt lgkmcnt(3)")
    a.e("s_waitcnt lgkmcnt(0)")

def h_load(a, s, vL):
    buf = HFB[s % 5]
    for ls in range(4):
        a.e(f"s_add_u32 s{S_T}, s{S_HB}, {s*4096 + ls*1024}")
        a.e(f"buffer_load_dwordx4 {vr(buf+4*ls,4)}, v{vL}, {sq(SRD_WS)}, s{S_T} offen sc1")

def g2_mfma(a, s):
    buf = HFB[s % 5]
    for ls in range(4):
        for ds in range(4):
            c = "0" if s == 0 else vr(acc2(ls,ds),4)
            a.e(f"v_mfma_f32_16x16x32_bf16 {vr(acc2(ls,ds),4)}, {vr(buf+4*ls,4)}, {vr(w2f(s,ds),4)}, {c}")

def gemm2_and_final(a, st_=None):
    t = S_T
    mk = (lambda n: st_.mark(n)) if st_ else (lambda n: None)
    w2_read_lane(a, VA2, 1)
    a.e("s_waitcnt vmcnt(0)")
    w2_read(a, [0,1,2], VA2)
    w2_dma(a, [3,4], VD2, S_S0, S_DT)
    L6 = a.newlabel("Lno6")
    a.e(f"s_cmp_lt_u32 s{S_NS}, 6"); a.e(f"s_cbranch_scc1 {L6}")
    w2_dma(a, [5], VD2, S_S0, S_DT)
    a.label(L6)
    a.e(f"""
    v_lshlrev_b32 v{VL2}, 4, v0
    s_mul_i32 s{S_HB}, s{S_RT2}, 43
    s_add_u32 s{S_HB}, s{S_HB}, s{S_S0}
    s_lshl_b32 s{S_HB}, s{S_HB}, 12
    s_add_u32 s{S_HB}, s{S_HB}, {WS_H}
    s_waitcnt vmcnt(0)
    """)
    w2_read(a, [3,4,5], VA2)
    mk('w2rd')
    a.e(f"""
    s_lshl_b32 s{t}, s{S_RT2}, 3
    s_add_u32 s{t}, s{t}, s3
    s_lshl_b32 s{t}, s{t}, 6
    s_add_u32 s{t}, s{t}, {FB_OFF}
    v_mov_b32 v1, 0
    """)
    poll_flags(a, 1, 1, t, 2)
    mk('hflag')
    for s in range(5): h_load(a, s, VL2)
    for s in range(5):
        a.e(f"s_waitcnt vmcnt({4*(4-s)})")
        g2_mfma(a, s)
    L6 = a.newlabel("Lno6")
    a.e(f"s_cmp_lt_u32 s{S_NS}, 6"); a.e(f"s_cbranch_scc1 {L6}")
    h_load(a, 5, VL2)
    a.e("s_waitcnt vmcnt(0)")
    g2_mfma(a, 5)
    a.label(L6)
    mk('g2mm')
    a.e(f"""
    s_lshr_b32 s{t+1}, s3, 1                    ; da
    s_lshl_b32 s{t}, s{S_DT}, 5
    s_lshl_b32 s{t+2}, s{t+1}, 3
    s_add_u32 s{t}, s{t}, s{t+2}
    s_lshl_b32 s{t}, s{t}, 6
    s_add_u32 s{t}, s{t}, {FC_OFF}
    v_lshlrev_b32 v1, 6, v0
    """)
    poll_flags(a, 8, 1, t, 2)
    a.e(f"""
    v_and_b32 v1, 15, v0
    v_lshlrev_b32 v1, 12, v1
    v_lshrrev_b32 v2, 4, v0
    v_lshl_add_u32 v1, v2, 3, v1                ; d'*4096 + rg*8
    s_lshr_b32 s{t+1}, s3, 1
    s_lshl_b32 s{t}, s{S_DT}, 2
    s_add_u32 s{t}, s{t}, s{t+1}
    s_lshl_b32 s{t}, s{t}, 16                   ; *16*4096
    s_lshl_b32 s{t+2}, s{S_RT2}, 7
    s_add_u32 s{t}, s{t}, s{t+2}
    s_and_b32 s{t+2}, s3, 1
    s_lshl_b32 s{t+2}, s{t+2}, 6                ; 2*(w&1)*16*2 bytes
    s_add_u32 s{t}, s{t}, s{t+2}
    s_add_u32 s{t}, s{t}, {WS_AOT}
    buffer_load_dwordx2 v[10:11], v1, {sq(SRD_WS)}, s{t} offen sc1
    buffer_load_dwordx2 v[12:13], v1, {sq(SRD_WS)}, s{t} offen offset:32 sc1
    """)
    VX = 16
    a.e(f"""
    v_lshrrev_b32 v2, 4, v0                     ; da
    v_lshrrev_b32 v3, 2, v0
    v_and_b32 v3, 3, v3                         ; rg
    v_and_b32 v14, 3, v0                        ; dq
    v_lshlrev_b32 v15, 5, v2
    v_lshl_add_u32 v15, v14, 3, v15
    v_lshl_add_u32 v{VX+6}, v3, 12, v15         ; + rg*4*1024
    s_lshl_b32 s{t}, s{S_RT2}, 16
    s_lshl_b32 s{t+1}, s{S_DT}, 7
    s_add_u32 s{t}, s{t}, s{t+1}
    s_lshr_b32 s{t+2}, s3, 1
    s_lshl_b32 s{t+2}, s{t+2}, 14               ; la*16*1024
    s_add_u32 s{t}, s{t}, s{t+2}
    s_and_b32 s{t+2}, s3, 1
    s_lshl_b32 s{t+2}, s{t+2}, 11               ; 2*(w&1)*1024
    s_add_u32 s{t}, s{t}, s{t+2}
    v_add_u32 v{VX+6}, s{t}, v{VX+6}
    buffer_load_dwordx2 {vr(VX,2)}, v{VX+6}, {sq(SRD_X)}, 0 offen
    buffer_load_dwordx2 {vr(VX+2,2)}, v{VX+6}, {sq(SRD_X)}, 0 offen offset:1024
    v_add_u32 v15, s{t+1}, v15
    global_load_dwordx2 {vr(VX+4,2)}, v15, {sp(S_B2)}
    s_waitcnt vmcnt(3)
    v_lshlrev_b32 v24, 16, v10
    v_and_b32 v25, 0xffff0000, v10
    v_lshlrev_b32 v26, 16, v11
    v_and_b32 v27, 0xffff0000, v11
    v_lshlrev_b32 v28, 16, v12
    v_and_b32 v29, 0xffff0000, v12
    v_lshlrev_b32 v30, 16, v13
    v_and_b32 v31, 0xffff0000, v13
    """)
    Ld = a.newlabel("Laod")
    for w in range(8):
        Ln = a.newlabel("Laon")
        a.e(f"s_cmp_lg_u32 s3, {w}"); a.e(f"s_cbranch_scc1 {Ln}")
        for k in range(2):
            A_ = acc2(2*(w&1)+k, w>>1)
            for i in range(4): a.e(f"v_add_f32 v{A_+i}, v{A_+i}, v{24+4*k+i}")
        a.e(f"s_branch {Ld}")
        a.label(Ln)
    a.label(Ld)
    mk('ao')
    a.e("s_barrier")
    a.e(f"s_lshl_b32 s{t}, s3, 8")
    a.e(f"s_mov_b32 m0, s{t}")
    for idx in range(32):
        a.e(f"ds_write_addtid_b32 v{ACC2+idx} offset:{2048*idx}")
    a.e(f"s_add_u32 m0, s{t}, 63740")
    for idx in range(32, 64):
        a.e(f"ds_write_addtid_b32 v{ACC2+idx} offset:{2048*idx - 63740}")
    a.e("s_waitcnt lgkmcnt(0)")
    mk('pw')
    a.e("s_barrier")
    a.e(f"""
    v_lshrrev_b32 v2, 4, v0
    v_lshlrev_b32 v2, 13, v2                    ; da*4*2048
    v_and_b32 v3, 15, v0
    v_lshl_add_u32 v2, v3, 4, v2
    s_lshr_b32 s{t}, s3, 1
    s_lshl_b32 s{t}, s{t}, 15                   ; la*16*2048
    s_and_b32 s{t+1}, s3, 1
    s_lshl_b32 s{t+1}, s{t+1}, 12               ; 2*(w&1)*2048
    s_add_u32 s{t}, s{t}, s{t+1}
    v_add_u32 v2, s{t}, v2
    """)
    T = ACC2
    for k in range(2):
        for w in range(8):
            a.e(f"ds_read_b128 {vr(T+32*k+4*w,4)}, v2 offset:{2048*k + 256*w}")
        if k == 0: a.e("s_waitcnt lgkmcnt(4)")
    a.e("s_waitcnt lgkmcnt(0)")
    for k in range(2):
        B_ = T + 32*k
        for step in (4,2,1):
            for w in range(step):
                for e in (0,2):
                    a.e(f"v_pk_add_f32 {vr(B_+4*w+e,2)}, {vr(B_+4*w+e,2)}, {vr(B_+4*(w+step)+e,2)}")
    a.e("s_waitcnt vmcnt(0)")
    U = 24
    a.e(f"""
    v_lshlrev_b32 v{U+8}, 16, v{VX+4}
    v_and_b32 v{U+9}, 0xffff0000, v{VX+4}
    v_lshlrev_b32 v{U+10}, 16, v{VX+5}
    v_and_b32 v{U+11}, 0xffff0000, v{VX+5}
    """)
    for k in range(2):
        B_ = T + 32*k
        a.e(f"""
        v_lshlrev_b32 v{U}, 16, v{VX+2*k}
        v_and_b32 v{U+1}, 0xffff0000, v{VX+2*k}
        v_lshlrev_b32 v{U+2}, 16, v{VX+2*k+1}
        v_and_b32 v{U+3}, 0xffff0000, v{VX+2*k+1}
        v_pk_add_f32 {vr(U,2)}, {vr(U,2)}, {vr(U+8,2)}
        v_pk_add_f32 {vr(U+2,2)}, {vr(U+2,2)}, {vr(U+10,2)}
        v_pk_add_f32 {vr(U,2)}, {vr(U,2)}, {vr(B_,2)}
        v_pk_add_f32 {vr(U+2,2)}, {vr(U+2,2)}, {vr(B_+2,2)}
        v_cvt_pk_bf16_f32 v{U+4+2*k}, v{U}, v{U+1}
        v_cvt_pk_bf16_f32 v{U+5+2*k}, v{U+2}, v{U+3}
        buffer_store_dwordx2 {vr(U+4+2*k,2)}, v{VX+6}, {sq(SRD_OUT)}, 0 offen offset:{1024*k}
        """)
    mk('fin')
```

```python
from common import *

KG_TAB = 8704

def cmul(a, X, W, T):
    a.e(f"v_pk_mul_f32 {vr(T,2)}, {vr(X,2)}, {vr(W,2)} op_sel:[0,0] op_sel_hi:[1,0]")
    a.e(f"v_pk_fma_f32 {vr(X,2)}, {vr(X,2)}, {vr(W+2,2)}, {vr(T,2)} op_sel:[1,0,0] op_sel_hi:[0,0,1] neg_lo:[1,0,0]")

def acc_exp(a, dst, x, t, u, sL, sLlo, sLn2):
    a.e(f"""
    v_mul_f32 v{t}, s{sL}, v{x}
    v_fma_f32 v{u}, v{x}, s{sL}, -v{t}
    v_fma_f32 v{u}, v{x}, s{sLlo}, v{u}
    v_exp_f32 v{dst}, v{t}
    v_mul_f32 v{u}, s{sLn2}, v{u}
    v_fma_f32 v{dst}, v{dst}, v{u}, v{dst}
    """)
def rbf(a, dst, x):
    a.e(f"v_cvt_pk_bf16_f32 v{dst}, v{x}, v{x}")
    a.e(f"v_and_b32 v{dst}, 0xffff0000, v{dst}")

def cexp(a, Z, k, arl, rv, t0, t1, conj=False):
    a.e(f"v_mul_f32 v{t0}, {hx(float(k))}, v{arl}")
    a.e(f"v_mul_f32 v{t1}, {hx(float(-k if conj else k))}, v{rv}")
    a.e(f"v_exp_f32 v{t0}, v{t0}")
    a.e(f"v_fract_f32 v{t1}, v{t1}")
    a.e(f"v_cos_f32 v{Z}, v{t1}")
    a.e(f"v_sin_f32 v{Z+1}, v{t1}")
    a.e(f"v_mul_f32 v{Z}, v{Z}, v{t0}")
    a.e(f"v_mul_f32 v{Z+1}, v{Z+1}, v{t0}")

def kgen_load(a, V, sC, sNH, st):
    a.e(f"""
    s_lshl_b32 s{st}, s{sC}, 8
    s_lshl_b32 s{st+1}, s{sNH}, 7
    s_add_u32 s{st}, s{st}, s{st+1}
    v_lshl_add_u32 v{V['t0']}, v0, 1, s{st}
    s_lshl_b32 s{st}, s{sC}, 1
    v_mov_b32 v{V['t1']}, s{st}
    global_load_ushort v{V['la']}, v{V['t0']}, {sp(S_LOGA)}
    global_load_ushort v{V['ai']}, v{V['t0']}, {sp(S_AIM)}
    global_load_ushort v{V['cr']}, v{V['t0']}, {sp(S_CRE)}
    global_load_ushort v{V['ci']}, v{V['t0']}, {sp(S_CIM)}
    global_load_ushort v{V['dt']}, v{V['t1']}, {sp(S_LDT)}
    """)

def kgen_chunks(V, sK, tabbase_v):
    sL, sLlo, sLn2 = sK, sK+1, sK+2
    ch = []
    def setup(a):
        a.e(f"""
        s_mov_b32 s{sL}, {hx(LOG2E_F)}
        s_mov_b32 s{sLlo}, {hx(LOG2E_LO)}
        s_mov_b32 s{sLn2}, {hx(LN2)}
        v_lshlrev_b32 v{V['la']}, 16, v{V['la']}
        v_lshlrev_b32 v{V['ai']}, 16, v{V['ai']}
        v_lshlrev_b32 v{V['cr']}, 16, v{V['cr']}
        v_lshlrev_b32 v{V['ci']}, 16, v{V['ci']}
        v_lshlrev_b32 v{V['dt']}, 16, v{V['dt']}
        """)
        t0,t1,t2 = V['t0'],V['t1'],V['t2']
        u0 = V['A']
        xs = [V['dt'], V['la']]
        for i,x in enumerate(xs): a.e(f"v_mul_f32 v{u0+3*i}, s{sL}, v{x}")
        for i,x in enumerate(xs): a.e(f"v_fma_f32 v{u0+3*i+1}, v{x}, s{sL}, -v{u0+3*i}")
        for i,x in enumerate(xs): a.e(f"v_exp_f32 v{u0+3*i+2}, v{u0+3*i}")
        for i,x in enumerate(xs): a.e(f"v_fma_f32 v{u0+3*i+1}, v{x}, s{sLlo}, v{u0+3*i+1}")
        for i,x in enumerate(xs): a.e(f"v_mul_f32 v{u0+3*i+1}, s{sLn2}, v{u0+3*i+1}")
        for i,x in enumerate(xs): a.e(f"v_fma_f32 v{u0+3*i+2}, v{u0+3*i+2}, v{u0+3*i+1}, v{u0+3*i+2}")
        for i,x in enumerate(xs): a.e(f"v_cvt_pk_bf16_f32 v{x}, v{u0+3*i+2}, v{u0+3*i+2}")
        for i,x in enumerate(xs): a.e(f"v_and_b32 v{x}, 0xffff0000, v{x}")
        a.e(f"""
        v_mul_f32 v{V['la']}, v{V['la']}, v{V['dt']}
        v_mul_f32 v{V['ai']}, v{V['ai']}, v{V['dt']}
        v_mul_f32 v{V['cr']}, v{V['cr']}, v{V['dt']}
        v_mul_f32 v{V['ci']}, v{V['ci']}, v{V['dt']}
        v_mul_f32 v{V['la']}, {hx(-LOG2E_F)}, v{V['la']}
        v_mul_f32 v{V['ai']}, {hx(1.0/(2*math.pi))}, v{V['ai']}
        """)
        arl, rv = V['la'], V['ai']
        specs = [(V['Yo'],1,False),(V['Z2'],2,False),(V['Wc'],32,True),(V['W2'],64,True)]
        tm = [V['A']+2*i for i in range(4)]
        for (Z,k,cj),T in zip(specs,tm): a.e(f"v_mul_f32 v{T}, {hx(float(k))}, v{arl}")
        for (Z,k,cj),T in zip(specs,tm): a.e(f"v_mul_f32 v{T+1}, {hx(float(-k if cj else k))}, v{rv}")
        for (Z,k,cj),T in zip(specs,tm): a.e(f"v_fract_f32 v{T+1}, v{T+1}")
        for (Z,k,cj),T in zip(specs,tm): a.e(f"v_exp_f32 v{T}, v{T}")
        for (Z,k,cj),T in zip(specs,tm): a.e(f"v_cos_f32 v{Z}, v{T+1}")
        for (Z,k,cj),T in zip(specs,tm): a.e(f"v_sin_f32 v{Z+1}, v{T+1}")
        for (Z,k,cj),T in zip(specs,tm): a.e(f"v_mul_f32 v{Z}, v{Z}, v{T}")
        for (Z,k,cj),T in zip(specs,tm): a.e(f"v_mul_f32 v{Z+1}, v{Z+1}, v{T}")
        for k_ in ('Z2','Wc','W2'): a.e(f"v_mov_b32 v{V[k_]+2}, v{V[k_]+1}")
        a.e(f"""
        v_mov_b32 v{V['Ye']}, 1.0
        v_mov_b32 v{V['Ye']+1}, 0
        v_add_f32 v{V['Xe']}, v{V['cr']}, v{V['cr']}
        v_mul_f32 v{V['Xe']+1}, -2.0, v{V['ci']}
        v_add_f32 v{V['Xo']}, v{V['cr']}, v{V['cr']}
        v_mul_f32 v{V['Xo']+1}, -2.0, v{V['ci']}
        """)
        cmul(a, V['Xo'], V['Wc'], V['T0'])
    ch.append(setup)
    def chain_step(E, O, M, row, last=False):
        def f(a):
            T0, T1 = V['T0'], V['T1']
            pa, pb = (V['p0'], V['p1']) if (row//2) % 2 == 0 else (V['p2'], V['p3'])
            a.e(f"v_pk_mul_f32 {vr(T0,2)}, {vr(E,2)}, {vr(M,2)} op_sel:[0,0] op_sel_hi:[1,0]")
            if not last: a.e(f"v_pk_mul_f32 {vr(T1,2)}, {vr(O,2)}, {vr(M,2)} op_sel:[0,0] op_sel_hi:[1,0]")
            a.e(f"v_cvt_pk_bf16_f32 v{pa}, v{E}, v{E+1}")
            a.e(f"v_cvt_pk_bf16_f32 v{pb}, v{O}, v{O+1}")
            a.e(f"v_pk_fma_f32 {vr(E,2)}, {vr(E,2)}, {vr(M+2,2)}, {vr(T0,2)} op_sel:[1,0,0] op_sel_hi:[0,0,1] neg_lo:[1,0,0]")
            if not last: a.e(f"v_pk_fma_f32 {vr(O,2)}, {vr(O,2)}, {vr(M+2,2)}, {vr(T1,2)} op_sel:[1,0,0] op_sel_hi:[0,0,1] neg_lo:[1,0,0]")
            a.e(f"ds_write_b32 v{tabbase_v}, v{pa} offset:{row*272}")
            a.e(f"ds_write_b32 v{tabbase_v}, v{pb} offset:{(row+1)*272}")
        return f
    for i in range(16): ch.append(chain_step(V['Ye'], V['Yo'], V['Z2'], 2*i, last=(i==15)))
    def readB(a):
        a.e("s_waitcnt lgkmcnt(0)")
        for s in range(8): a.e(f"ds_read_b128 {vr(V['B']+4*s,4)}, v{V['rd']} offset:{32*s}")
        a.e("s_waitcnt lgkmcnt(0)")
    ch.append(readB)
    for t in range(2):
        for i in range(16): ch.append(chain_step(V['Xe'], V['Xo'], V['W2'], 2*i, last=(t==1 and i==15)))
        def mm(a, t=t):
            a.e("s_waitcnt lgkmcnt(0)")
            for s in range(8): a.e(f"ds_read_b128 {vr(V['A']+4*s,4)}, v{V['rd']} offset:{32*s}")
            D = V['D'] + 16*t
            for s in range(8):
                a.e(f"s_waitcnt lgkmcnt({7-s})")
                c = "0" if s == 0 else vr(D,16)
                a.e(f"v_mfma_f32_32x32x16_bf16 {vr(D,16)}, {vr(V['A']+4*s,4)}, {vr(V['B']+4*s,4)}, {c}")
        ch.append(mm)
    def fin(a):
        x = V['Xe']
        for sh in (1,2,4,8):
            a.e(f"v_add_f32_dpp v{x}, v{x}, v{x} row_shr:{sh} row_mask:0xf bank_mask:0xf bound_ctrl:0")
        a.e(f"v_add_f32_dpp v{x}, v{x}, v{x} row_bcast:15 row_mask:0xa bank_mask:0xf")
        a.e(f"v_add_f32_dpp v{x}, v{x}, v{x} row_bcast:31 row_mask:0xc bank_mask:0xf")
        for t in range(2):
            for r in range(16):
                a.e(f"ds_write_b32 v{V['fw']}, v{V['D']+16*t+r} offset:{4096*t + 128*(8*(r>>2)+(r&3))}")
        a.e(f"""
        v_cmp_eq_u32 vcc, 63, v0
        s_and_saveexec_b64 s[74:75], vcc
        ds_write_b32 v{V['f2k']}, v{x}
        s_mov_b64 exec, s[74:75]
        s_waitcnt lgkmcnt(0)
        """)
    ch.append(fin)
    return ch

def kgen_addr_setup(a, V, sTab):
    a.e(f"""
    v_lshl_add_u32 v{V['wr']}, v0, 2, s{sTab}
    v_and_b32 v{V['t0']}, 31, v0
    v_lshrrev_b32 v{V['t1']}, 5, v0
    v_mul_u32_u24 v{V['rd']}, 272, v{V['t0']}
    v_lshl_add_u32 v{V['rd']}, v{V['t1']}, 4, v{V['rd']}
    v_add_u32 v{V['rd']}, s{sTab}, v{V['rd']}
    v_lshlrev_b32 v{V['fw']}, 2, v{V['t0']}
    v_lshl_add_u32 v{V['fw']}, v{V['t1']}, 9, v{V['fw']}
    v_add_u32 v{V['fw']}, s{sTab}, v{V['fw']}
    v_mov_b32 v{V['f2k']}, s{sTab}
    v_add_u32 v{V['f2k']}, 8192, v{V['f2k']}
    """)

def kgen_vmap(base):
    V = {}
    n = base
    for k in ('la','ai','cr','ci','dt','t0','t1','t2','p0','p1','p2','p3','wr','rd','fw','f2k'): V[k] = n; n += 1
    n = (n+1)//2*2
    for k in ('Ye','Yo','Z2','Z2i','Wc','Wci','W2','W2i','Xe','Xo','T0','T1'): V[k] = n; n += 2
    n = (n+3)//4*4
    V['B'] = n; n += 32
    V['A'] = n; n += 32
    V['D'] = n; n += 32
    V['end'] = n
    return V

def gather(a, G, tid_v, tabF0, nthreads_per_ch, emit_store):
    nch = 258
    rounds = (nch + nthreads_per_ch - 1)//nthreads_per_ch
    for rnd in range(rounds):
        a.e(f"v_add_u32 v{G['ck']}, {rnd*nthreads_per_ch}, v{tid_v}")
        a.e(f"v_lshlrev_b32 v{G['j']}, 3, v{G['ck']}")
        a.e(f"v_sub_u32 v{G['j']}, 2048, v{G['j']}")
        for e in range(8):
            t = G['t'] + e
            a.e(f"v_subrev_u32 v{t}, {e}, v{G['j']}")
            a.e(f"v_max_i32 v{t}, 0, v{t}")
            a.e(f"v_min_i32 v{t}, 2047, v{t}")
            a.e(f"v_cvt_f32_u32 v{t}, v{t}")
            a.e(f"v_cvt_pk_bf16_f32 v{t}, v{t}, v{t}")
            a.e(f"v_and_b32 v{t}, 0xffff0000, v{t}")
            a.e(f"v_cvt_u32_f32 v{t}, v{t}")
            a.e(f"v_lshl_add_u32 v{t}, v{t}, 2, v{tabF0}")
        for e in range(8):
            t = G['t'] + e
            a.e(f"ds_read_b32 v{G['f0']+e}, v{t}")
            a.e(f"ds_read_b32 v{G['f1']+e}, v{t} offset:{KG_TAB}")
        a.e("s_waitcnt lgkmcnt(0)")
        for e in range(8):
            a.e(f"v_add_f32 v{G['f0']+e}, v{G['f0']+e}, v{G['f1']+e}")
            t = G['t'] + e
            a.e(f"v_subrev_u32 v{t}, {e}, v{G['j']}")
            a.e(f"v_cmp_gt_u32 vcc, 2048, v{t}")
            a.e(f"v_cndmask_b32 v{G['f0']+e}, 0, v{G['f0']+e}, vcc")
        for q in range(4):
            a.e(f"v_cvt_pk_bf16_f32 v{G['o']+q}, v{G['f0']+2*q}, v{G['f0']+2*q+1}")
        emit_store(a, rnd)

def kernel_kgen():
    a = Asm()
    V = kgen_vmap(8)
    prologue(a, 256, "Lkg_end")
    a.e(f"""
    s_lshr_b32 s52, s3, 1
    s_lshl_b32 s53, s2, 1
    s_add_u32 s53, s53, s52          ; channel
    s_and_b32 s54, s3, 1             ; nh
    s_mul_i32 s56, s3, {KG_TAB}
    s_waitcnt lgkmcnt(0)
    """)
    kgen_load(a, V, 53, 54, 58)
    kgen_addr_setup(a, V, 56)
    make_srd(a, SRD_WS, S_WS, WS_SIZE)
    a.e("s_waitcnt vmcnt(0)")
    for f in kgen_chunks(V, 60, V['wr']): f(a)
    a.e("s_barrier")
    G = dict(ck=V['B'], j=V['B']+1, tid=V['B']+2, tab=V['B']+3, off=V['B']+4, t=V['B']+8, f0=V['A'], f1=V['A']+8, o=V['A']+16)
    a.e(f"""
    v_lshl_add_u32 v{G['tid']}, s54, 6, v0
    s_mul_i32 s57, s52, {2*KG_TAB}
    v_mov_b32 v{G['tab']}, s57
    s_mul_i32 s57, s53, {KR_STRIDE}
    s_add_u32 s57, s57, {WS_KR}
    """)
    def st(a, rnd):
        a.e(f"""
        v_lshlrev_b32 v{G['off']}, 4, v{G['ck']}
        v_cmp_gt_u32 vcc, 264, v{G['ck']}
        s_and_saveexec_b64 s[66:67], vcc
        buffer_store_dwordx4 {vr(G['o'],4)}, v{G['off']}, {sq(SRD_WS)}, s57 offen
        s_mov_b64 exec, s[66:67]
        """)
    gather(a, G, G['tid'], G['tab'], 128, st)
    a.e("s_waitcnt vmcnt(0)")
    a.label("Lkg_end")
    a.e("s_endpgm")
    return ("kg_kernel", a.text(), V['end'], 80)


def kgen_x_write(a, V, sNH, sTab):
    x = V['Xe']
    for sh in (1,2,4,8):
        a.e(f"v_add_f32_dpp v{x}, v{x}, v{x} row_shr:{sh} row_mask:0xf bank_mask:0xf bound_ctrl:0")
    a.e(f"v_add_f32_dpp v{x}, v{x}, v{x} row_bcast:15 row_mask:0xa bank_mask:0xf")
    a.e(f"v_add_f32_dpp v{x}, v{x}, v{x} row_bcast:31 row_mask:0xc bank_mask:0xf")
    L1 = a.newlabel("Lkx"); L2 = a.newlabel("Lkx")
    a.e(f"v_lshl_add_u32 v{V['t0']}, v0, 4, s{sTab}")
    a.e(f"s_cmp_eq_u32 s{sNH}, 1")
    a.e(f"s_cbranch_scc1 {L1}")
    for q in range(4): a.e(f"ds_write_b128 v{V['t0']}, {vr(V['D']+16+4*q,4)} offset:{1024*q}")
    a.e(f"s_branch {L2}")
    a.label(L1)
    for q in range(4): a.e(f"ds_write_b128 v{V['t0']}, {vr(V['D']+4*q,4)} offset:{1024*q}")
    for i in range(16): a.e(f"v_mov_b32 v{V['D']+i}, v{V['D']+16+i}")
    a.label(L2)
    a.e(f"""
    v_mov_b32 v{V['t1']}, s{sTab}
    v_cmp_eq_u32 vcc, 63, v0
    s_and_saveexec_b64 s[74:75], vcc
    ds_write_b32 v{V['t1']}, v{x} offset:4096
    s_mov_b64 exec, s[74:75]
    s_waitcnt lgkmcnt(0)
    """)

def kgen_x_finish(a, V, sNH, sTab, sFb, st):
    a.e(f"""
    s_mul_i32 s{st}, s{sNH}, {2*KG_TAB}
    s_sub_u32 s{st}, {KG_TAB}, s{st}
    s_add_u32 s{st}, s{st}, s{sTab}
    v_lshl_add_u32 v{V['t0']}, v0, 4, s{st}
    """)
    A = V['A']
    for q in range(4): a.e(f"ds_read_b128 {vr(A+4*q,4)}, v{V['t0']} offset:{1024*q}")
    a.e(f"""
    v_mov_b32 v{V['t1']}, s{st}
    ds_read_b32 v{V['t2']}, v{V['t1']} offset:4096
    v_and_b32 v{V['p0']}, 31, v0
    v_lshrrev_b32 v{V['p1']}, 5, v0
    v_lshlrev_b32 v{V['p0']}, 1, v{V['p0']}
    v_lshl_add_u32 v{V['p0']}, v{V['p1']}, 8, v{V['p0']}
    s_lshl_b32 s{st+1}, s{sNH}, 11
    s_add_u32 s{st+1}, s{st+1}, s{sFb}
    v_add_u32 v{V['p0']}, s{st+1}, v{V['p0']}
    s_waitcnt lgkmcnt(0)
    """)
    D = V['D']
    for i in range(16): a.e(f"v_add_f32 v{D+i}, v{D+i}, v{A+i}")
    for i in range(0,16,2): a.e(f"v_cvt_pk_bf16_f32 v{A+i//2}, v{D+i}, v{D+i+1}")
    for i in range(0,16,2):
        r0 = 8*(i>>2)+(i&3); r1 = 8*((i+1)>>2)+((i+1)&3)
        a.e(f"ds_write_b16 v{V['p0']}, v{A+i//2} offset:{64*r0}")
        a.e(f"ds_write_b16_d16_hi v{V['p0']}, v{A+i//2} offset:{64*r1}")
    L = a.newlabel("Lkf")
    a.e(f"""
    s_cmp_eq_u32 s{sNH}, 1
    s_cbranch_scc1 {L}
    v_add_f32 v{V['t2']}, v{V['t2']}, v{V['Xe']}
    v_cvt_pk_bf16_f32 v{V['t2']}, v{V['t2']}, v{V['t2']}
    v_mov_b32 v{V['t1']}, s{sFb}
    v_mov_b32 v{V['p1']}, 0
    v_subrev_u32 v{V['p2']}, 2, v{V['t1']}
    v_cmp_eq_u32 vcc, 63, v0
    s_and_saveexec_b64 s[74:75], vcc
    ds_write_b16 v{V['t1']}, v{V['t2']} offset:4096
    ds_write_b16 v{V['p2']}, v{V['p1']}
    s_mov_b64 exec, s[74:75]
    """)
    a.label(L)
    a.e("s_waitcnt lgkmcnt(0)")

def k_copies(a, R, tid_v, sFb, sKC, KC_COPY):
    ck, fj, wa, wb = R, R+1, R+2, R+3
    f = R+4
    ad = R+16
    d = R+28
    al = R+36
    for rnd in range(2):
        a.e(f"v_add_u32 v{ck}, {128*rnd}, v{tid_v}")
        a.e(f"v_lshlrev_b32 v{fj}, 3, v{ck}")
        a.e(f"v_sub_u32 v{fj}, 2048, v{fj}")
        a.e(f"v_cvt_f32_u32 v{fj}, v{fj}")
        for e in range(12): a.e(f"v_add_f32 v{f+e}, {hx(float(-e))}, v{fj}")
        for e in range(12): a.e(f"v_max_f32 v{f+e}, -1.0, v{f+e}")
        for e in range(0,12,2): a.e(f"v_cvt_pk_bf16_f32 v{ad+e}, v{f+e}, v{f+e+1}")
        for e in range(0,12,2):
            a.e(f"v_and_b32 v{f+e+1}, 0xffff0000, v{ad+e}")
            a.e(f"v_lshlrev_b32 v{f+e}, 16, v{ad+e}")
        for e in range(12): a.e(f"v_cvt_i32_f32 v{f+e}, v{f+e}")
        for e in range(12): a.e(f"v_lshl_add_u32 v{ad+e}, v{f+e}, 1, s{sFb}")
        for e in range(12): a.e(f"ds_read_u16 v{f+e}, v{ad+e}")
        a.e(f"v_lshl_add_u32 v{wa}, v{ck}, 4, s{sKC}")
        a.e(f"v_add_u32 v{wb}, {2*KC_COPY}, v{wa}")
        a.e("s_waitcnt lgkmcnt(0)")
        for e in range(0,12,2): a.e(f"v_lshl_or_b32 v{d+e//2}, v{f+e+1}, 16, v{f+e}")
        for i in range(5): a.e(f"v_alignbit_b32 v{al+i}, v{d+i+1}, v{d+i}, 16")
        a.e(f"ds_write_b128 v{wa}, {vr(d,4)}")
        a.e(f"ds_write2_b32 v{wb}, v{d+1}, v{d+2} offset0:0 offset1:1")
        a.e(f"ds_write2_b32 v{wb}, v{d+3}, v{d+4} offset0:2 offset1:3")
        a.e(f"ds_write_b128 v{wa}, {vr(al,4)} offset:{KC_COPY}")
        a.e(f"v_add_u32 v{wb}, {3*KC_COPY}, v{wa}")
        a.e(f"ds_write2_b32 v{wb}, v{al+1}, v{al+2} offset0:0 offset1:1")
        a.e(f"ds_write2_b32 v{wb}, v{al+3}, v{al+4} offset0:2 offset1:3")
    a.e(f"""
    v_and_b32 v{f}, 3, v{tid_v}
    v_lshrrev_b32 v{f+1}, 2, v{tid_v}
    v_mul_u32_u24 v{f+1}, {KC_COPY}, v{f+1}
    v_lshl_add_u32 v{f}, v{f}, 4, v{f+1}
    v_add_u32 v{f}, s{sKC}, v{f}
    v_mov_b32 v{d}, 0
    v_mov_b32 v{d+1}, 0
    v_mov_b32 v{d+2}, 0
    v_mov_b32 v{d+3}, 0
    v_mov_b32 v{ad}, s{sFb}
    ds_read_u16 v{al}, v{ad}
    v_cmp_gt_u32 vcc, 16, v{tid_v}
    s_and_saveexec_b64 s[74:75], vcc
    ds_write_b128 v{f}, {vr(d,4)} offset:4096
    s_waitcnt lgkmcnt(0)
    v_cmp_eq_u32 vcc, 0, v{tid_v}
    s_and_b64 exec, exec, vcc
    ds_write_b16 v{f}, v{al} offset:4096
    s_mov_b64 exec, s[74:75]
    s_waitcnt lgkmcnt(0)
    """)
```

```python
import sys, json
from fused2 import *
hdr = "".join(l for l in open("parallel_sum__ssm_conv_s4d__mixer_channel_mlp__prompt.s.ref").read().splitlines(True) if l.startswith(";") and "@launch" not in l and "Override launch" not in l and "grid=ceil" not in l)
def build(path, stamp):
    k = kernel_fused(stamp)
    s = build_file(hdr, [], [k])
    s = s.replace('.amdgcn_target', f"; @launch grid=(256,1,1) block=(512,1,1) lds={LDS_TOTAL}\n.amdgcn_target", 1)
    open(path, "w").write(s)
    if stamp: json.dump(kernel_fused.names, open(path.replace('.s','.json'), "w"))
    return s
s = build("f.s", None)
print(len(s.splitlines()), len(s))
import common
def bs(name, role, want):
    common.Stamps.want = set(want); build(f"dev/{name}.s", role)
bs("f_g1", 'g', ['start','xland','B0','xfrag','xn','S0','S4','E0'])
bs("f_g2", 'g', ['start','E0','epi','sigB','hflag','g2mm','ao','fin'])
bs("f_h1", 'h', ['start','par','kgA','kgB','kgC','kcp','S5','uld'])
bs("f_h2", 'h', ['start','conv','sigC','hflag','g2mm','ao','pw','fin'])
```

```python
from fused_head import *
import fused_head as fh

LDS_FB = 49152

def gemm_stats_xn(a):
    t = S_T
    T = 20
    SA, QA, XS = 80, 84, 88
    a.e(f"""
    v_and_b32 v{T}, 15, v0
    v_lshrrev_b32 v{T+1}, 4, v0
    v_lshlrev_b32 v{T+2}, 10, v{T}
    s_lshl_b32 s{t}, s{S_LTA}, 14
    v_add_u32 v{T+2}, s{t}, v{T+2}            ; row*1024
    s_sub_u32 s{t+1}, s{S_CT}, s{S_ROT}
    s_and_b32 s{t+1}, s{t+1}, 7
    s_lshl_b32 s{t+1}, s{t+1}, 3
    v_lshlrev_b32 v{T+3}, 1, v{T+1}
    v_add_u32 v{T+3}, s{t+1}, v{T+3}
    v_xor_b32 v{T+4}, v{T+3}, v{T}
    v_add_u32 v{T+3}, 1, v{T+3}
    v_xor_b32 v{T+5}, v{T+3}, v{T}
    v_lshl_add_u32 v{T+4}, v{T+4}, 4, v{T+2}
    v_lshl_add_u32 v{T+5}, v{T+5}, 4, v{T+2}
    ds_read_b128 {vr(XS,4)}, v{T+4} offset:{LDS_X}
    ds_read_b128 {vr(XS+4,4)}, v{T+5} offset:{LDS_X}
    """)
    for s in range(16):
        f = vr(xf(0,s),4)
        a.e(f"v_mfma_f32_16x16x32_bf16 {vr(SA,4)}, {vr(ONES,4)}, {f}, {'0' if s==0 else vr(SA,4)}")
        a.e(f"v_mfma_f32_16x16x32_bf16 {vr(QA,4)}, {f}, {f}, {'0' if s==0 else vr(QA,4)}")
    a.e(f"""
    v_and_b32 v{T+6}, 3, v0
    v_lshrrev_b32 v{T+8}, 2, v{T}
    v_lshl_add_u32 v{T+8}, v{T+8}, 4, v{T}
    v_lshlrev_b32 v{T+8}, 2, v{T+8}
    v_cmp_eq_u32 vcc, 1, v{T+6}
    v_cndmask_b32 v{T+7}, v{QA}, v{QA+1}, vcc
    v_cmp_eq_u32 vcc, 2, v{T+6}
    v_cndmask_b32 v{T+7}, v{T+7}, v{QA+2}, vcc
    v_cmp_eq_u32 vcc, 3, v{T+6}
    v_cndmask_b32 v{T+7}, v{T+7}, v{QA+3}, vcc
    ds_bpermute_b32 v{T+7}, v{T+8}, v{T+7}
    """)
    U = 40
    a.e("s_waitcnt lgkmcnt(1)")
    for i in range(8):
        a.e(f"v_lshlrev_b32 v{U+2*i}, 16, v{XS+i}")
        a.e(f"v_and_b32 v{U+2*i+1}, 0xffff0000, v{XS+i}")
    a.e("s_waitcnt lgkmcnt(0)")
    MN = 32
    ln_scalars(a, SA, T+7, MN, MN+1, MN+2, MN+3, T+8, T+9)
    a.e(f"""
    s_lshl_b32 s{t}, s{S_LTA}, 8
    s_add_u32 s{t}, s{t}, {LDS_STATS}
    v_lshl_add_u32 v{T+6}, v{T}, 4, s{t}
    v_cmp_gt_u32 vcc, 16, v0
    s_and_saveexec_b64 s[{S_EX}:{S_EX+1}], vcc
    ds_write_b64 v{T+6}, {vr(MN,2)}
    s_mov_b64 exec, s[{S_EX}:{S_EX+1}]
    v_lshrrev_b32 v{T+6}, 1, v{T}
    v_and_b32 v{T+6}, 3, v{T+6}
    v_xor_b32 v{T+6}, v{T+6}, v{T+1}
    v_lshlrev_b32 v{T+6}, 5, v{T+6}
    v_lshl_add_u32 v{T+6}, v{T}, 7, v{T+6}
    s_lshl_b32 s{t}, s{S_LTA}, 11
    s_add_u32 s{t}, s{t}, {LDS_XT}
    v_add_u32 v{T+6}, s{t}, v{T+6}
    """)
    for i in range(16): a.e(f"v_sub_f32 v{U+i}, v{U+i}, v{MN+2}")
    for i in range(8): a.e(f"v_cvt_pk_bf16_f32 v{XS+i}, v{U+2*i}, v{U+2*i+1}")
    for i in range(8):
        a.e(f"v_lshlrev_b32 v{U+2*i}, 16, v{XS+i}")
        a.e(f"v_and_b32 v{U+2*i+1}, 0xffff0000, v{XS+i}")
    for i in range(16): a.e(f"v_mul_f32 v{U+i}, v{U+i}, v{MN+3}")
    for i in range(8): a.e(f"v_cvt_pk_bf16_f32 v{XS+i}, v{U+2*i}, v{U+2*i+1}")
    a.e(f"ds_write_b128 v{T+6}, {vr(XS,4)}")
    a.e(f"ds_write_b128 v{T+6}, {vr(XS+4,4)} offset:16")
    a.e("s_waitcnt lgkmcnt(0)")

def gemm_xn_store(a):
    t = S_T; T = 44; XS = 56
    a.e(f"""
    v_lshrrev_b32 v{T}, 4, v0
    v_and_b32 v{T+1}, 15, v0
    v_lshrrev_b32 v{T+2}, 2, v{T+1}
    v_and_b32 v{T+3}, 3, v0
    v_lshl_add_u32 v{T+4}, v{T}, 3, v{T+2}
    v_lshlrev_b32 v{T+4}, 7, v{T+4}
    v_lshl_add_u32 v{T+4}, v{T+3}, 3, v{T+4}
    v_add_u32 v{T+4}, {LDS_XT}, v{T+4}
    v_lshrrev_b32 v{T+5}, 1, v{T+2}
    v_xor_b32 v{T+6}, s3, v{T+5}
    v_lshl_add_u32 v{T+6}, v{T+6}, 5, v{T+4}
    v_add_u32 v{T+5}, 2, v{T+5}
    v_xor_b32 v{T+7}, s3, v{T+5}
    v_lshl_add_u32 v{T+7}, v{T+7}, 5, v{T+4}
    """)
    for half in range(2):
        a.e(f"ds_read_b64_tr_b16 {vr(XS+4*half,2)}, v{T+6} offset:{half*32*128}")
        a.e(f"ds_read_b64_tr_b16 {vr(XS+2+4*half,2)}, v{T+7} offset:{half*32*128 + 4*128}")
    a.e(f"""
    v_lshlrev_b32 v{T+8}, 12, v{T+1}
    v_lshl_add_u32 v{T+8}, v{T}, 4, v{T+8}
    s_lshl_b32 s{t}, s{S_CT}, 6
    s_lshl_b32 s{t+1}, s3, 4
    s_add_u32 s{t}, s{t}, s{t+1}
    s_lshl_b32 s{t}, s{t}, 12
    s_lshl_b32 s{t+1}, s{S_RT}, 7
    s_add_u32 s{t}, s{t}, s{t+1}
    s_add_u32 s{t}, s{t}, {WS_XNT}
    s_waitcnt lgkmcnt(0)
    buffer_store_dwordx4 {vr(XS,4)}, v{T+8}, {sq(SRD_WS)}, s{t} offen sc1
    buffer_store_dwordx4 {vr(XS+4,4)}, v{T+8}, {sq(SRD_WS)}, s{t} offen offset:64 sc1
    """)

def w2_dma_list(steps, vD, sBaseG, sBaseL):
    L = []
    for s in steps:
        for q in range(4):
            L.append([f"s_add_u32 m0, s{sBaseL}, {(s%3)*4096 + q*1024}",
                      f"s_add_u32 s68, s{sBaseG}, {s*32768 + q*8192}",
                      f"buffer_load_dwordx4 v{vD}, {sq(SRD_W)}, s68 offen lds"])
    return L

def gemm_epilogue2(a, dma_groups):
    t = S_T
    R = [14, 16]
    a.e(f"""
    v_and_b32 v1, 15, v0
    s_lshl_b32 s{t}, s{S_LTA}, 8
    s_add_u32 s{t}, s{t}, {LDS_STATS}
    v_lshl_add_u32 v2, v1, 4, s{t}
    ds_read_b64 v[20:21], v2
    s_lshl_b32 s{t}, s{S_LTB}, 8
    s_add_u32 s{t}, s{t}, {LDS_STATS}
    v_lshl_add_u32 v2, v1, 4, s{t}
    ds_read_b64 v[22:23], v2
    v_lshrrev_b32 v2, 4, v0
    v_lshlrev_b32 v2, 4, v2
    v_add_u32 v2, {LDS_CS}, v2
    s_mul_i32 s{t}, s{S_FH}, 384
    v_add_u32 v2, s{t}, v2
    v_lshlrev_b32 v3, 4, v0
    s_mul_i32 s{t+4}, s{S_RT}, {H_RT}
    s_add_u32 s{t+4}, s{t+4}, {WS_H}
    """)
    CSr, B1r, TT, T2, OUT = 24, 48, 36, 44, 52
    sets = [(24, 56), (64, 72)]
    def tab_reads(pp):
        c, b = sets[pp % 2]
        for h in range(2):
            a.e(f"ds_read_b128 {vr(c+4*h,4)}, v2 offset:{128*pp + 64*h}")
            a.e(f"ds_read_b128 {vr(b+4*h,4)}, v2 offset:{LDS_B1 - LDS_CS + 128*pp + 64*h}")
    tab_reads(0)
    a.e(f"""
    s_waitcnt lgkmcnt(4)
    v_mov_b32 v{R[0]}, v21
    v_mul_f32 v{R[0]+1}, v20, v21
    v_sub_f32 v{R[0]+1}, 0, v{R[0]+1}
    v_mov_b32 v{R[1]}, v23
    v_mul_f32 v{R[1]+1}, v22, v23
    v_sub_f32 v{R[1]+1}, 0, v{R[1]+1}
    """)
    TT, T2, OUT = 32, 40, 48
    if CFG.get('duppair'):
        a.e("""
        v_mov_b32 v20, v15
        v_mov_b32 v21, v15
        v_mov_b32 v22, v17
        v_mov_b32 v23, v17
        v_mov_b32 v15, v14
        v_mov_b32 v17, v16
        """)
    gi = 0
    if CFG.get('swapR'):
        a.e("""
        v_mov_b32 v20, v14
        v_mov_b32 v14, v15
        v_mov_b32 v15, v20
        v_mov_b32 v20, v16
        v_mov_b32 v16, v17
        v_mov_b32 v17, v20
        """)
    for pp in range(3):
        CSr, B1r = sets[pp % 2]
        a.e("s_waitcnt lgkmcnt(0)")
        if CFG.get('nopw') and pp == 0:
            for _ in range(4): a.e("s_nop 15")
        if pp < 2 and not (CFG.get('late1') and pp == 0): tab_reads(pp+1)
        if CFG.get('waitl'): a.e("s_waitcnt lgkmcnt(0)")
        if pp == 0 and CFG.get('dbgcs2'):
            a.e(f"""
            s_lshl_b32 s62, s2, 2
            s_add_u32 s62, s62, s3
            s_lshl_b32 s62, s62, 12
            s_add_u32 s62, s62, 0xE00000
            buffer_store_dwordx4 v[24:27], v3, {sq(SRD_WS)}, s62 offen
            buffer_store_dwordx4 v[28:31], v3, {sq(SRD_WS)}, s62 offen offset:1024
            buffer_store_dwordx4 v[14:17], v3, {sq(SRD_WS)}, s62 offen offset:2048
            buffer_store_dwordx4 v[80:83], v3, {sq(SRD_WS)}, s62 offen offset:3072
            """)
        Lskip = a.newlabel("Lg1skip")
        a.e(f"""
        s_mul_i32 s{t}, s{S_FH}, 3
        s_add_u32 s{t}, s{t}, {pp}
        s_add_u32 s{t+2}, s{t}, s{S_P}
        s_lshl_b32 s{t+2}, s{t+2}, 12
        s_add_u32 s{t+2}, s{t+2}, s{t+4}
        """)
        if pp == 2:
            a.e(f"s_cmp_ge_u32 s{t}, s{S_NP}")
            a.e(f"s_cbranch_scc1 {Lskip}")
        for lt in range(2):
            items = [(h,q) for h in range(2) for q in range(2)]
            X = lambda h,q: acc(2*pp+h, lt) + 2*q
            k = lambda h,q: 2*(2*h+q)
            seq = []
            if CFG.get('duppair'):
                seq.append([f"v_pk_fma_f32 {vr(TT+k(h,q),2)}, {vr(CSr+4*h+2*q,2)}, {vr(20+2*lt,2)}, {vr(B1r+4*h+2*q,2)}" for (h,q) in items])
                seq.append([f"v_pk_fma_f32 {vr(X(h,q),2)}, {vr(X(h,q),2)}, {vr(R[lt],2)}, {vr(TT+k(h,q),2)}" for (h,q) in items])
            elif CFG.get('swapR'):
                seq.append([f"v_pk_fma_f32 {vr(TT+k(h,q),2)}, {vr(CSr+4*h+2*q,2)}, {vr(R[lt],2)}, {vr(B1r+4*h+2*q,2)} op_sel:[0,0,0] op_sel_hi:[1,0,1]" for (h,q) in items])
                seq.append([f"v_pk_fma_f32 {vr(X(h,q),2)}, {vr(X(h,q),2)}, {vr(R[lt],2)}, {vr(TT+k(h,q),2)} op_sel:[0,1,0] op_sel_hi:[1,1,1]" for (h,q) in items])
            elif CFG.get('scalarTT'):
                seq.append([f"v_fma_f32 v{TT+k(h,q)+e}, v{CSr+4*h+2*q+e}, v{R[lt]+1}, v{B1r+4*h+2*q+e}" for (h,q) in items for e in range(2)])
                seq.append([f"v_pk_fma_f32 {vr(X(h,q),2)}, {vr(X(h,q),2)}, {vr(R[lt],2)}, {vr(TT+k(h,q),2)} op_sel:[0,0,0] op_sel_hi:[1,0,1]" for (h,q) in items])
            else:
                seq.append([f"v_pk_fma_f32 {vr(TT+k(h,q),2)}, {vr(R[lt],2)}, {vr(CSr+4*h+2*q,2)}, {vr(B1r+4*h+2*q,2)} op_sel:[1,0,0] op_sel_hi:[1,1,1]" for (h,q) in items])
                seq.append([f"v_pk_fma_f32 {vr(X(h,q),2)}, {vr(X(h,q),2)}, {vr(R[lt],2)}, {vr(TT+k(h,q),2)} op_sel:[0,0,0] op_sel_hi:[1,0,1]" for (h,q) in items])
            seq.append([f"v_pk_mul_f32 {vr(T2+k(h,q),2)}, {vr(X(h,q),2)}, {vr(X(h,q),2)}" for (h,q) in items])
            seq.append([f"v_pk_fma_f32 {vr(T2+k(h,q),2)}, {vr(T2+k(h,q),2)}, s[{S_GC}:{S_GC+1}], s[{S_GC}:{S_GC+1}] op_sel:[0,1,0] op_sel_hi:[1,1,0]" for (h,q) in items])
            seq.append([f"v_pk_mul_f32 {vr(T2+k(h,q),2)}, {vr(T2+k(h,q),2)}, {vr(X(h,q),2)}" for (h,q) in items])
            seq.append([f"v_exp_f32 v{T2+k(h,q)+e}, v{T2+k(h,q)+e}" for (h,q) in items for e in range(2)])
            seq.append([f"v_pk_add_f32 {vr(T2+k(h,q),2)}, {vr(T2+k(h,q),2)}, s[{S_ONE}:{S_ONE+1}]" for (h,q) in items])
            seq.append([f"v_rcp_f32 v{T2+k(h,q)+e}, v{T2+k(h,q)+e}" for (h,q) in items for e in range(2)])
            seq.append([f"v_pk_mul_f32 {vr(X(h,q),2)}, {vr(X(h,q),2)}, {vr(T2+k(h,q),2)}" for (h,q) in items])
            seq.append([f"v_cvt_pk_bf16_f32 v{OUT+4*lt+2*h+q}, v{X(h,q)}, v{X(h,q)+1}" for (h,q) in items])
            for si, grp in enumerate(seq):
                for l in grp: a.e(l)
                if CFG.get('nops') and pp == 0 and lt == 0: a.e("s_nop 7")
                if CFG.get('skipfirst') and pp == 0 and lt == 0: continue
                if pp < 2 and si in (1, 4, 7) and gi < len(dma_groups):
                    for l in dma_groups[gi]: a.e(l)
                    gi += 1
            sl = S_LTA if lt == 0 else S_LTB
            a.e(f"""
            s_lshl_b32 s{t+3}, s{sl}, 10
            s_add_u32 s{t+3}, s{t+3}, s{t+2}
            buffer_store_dwordx4 {vr(OUT+4*lt,4)}, v3, {sq(SRD_WS)}, s{t+3} offen sc1
            """)
            if CFG.get('late1') and pp == 0 and lt == 0: tab_reads(1)
        if pp == 2: a.label(Lskip)
    assert gi == len(dma_groups), (gi, len(dma_groups))

def tail2(a, st_=None):
    t = S_T
    mk = (lambda n: st_.mark(n)) if st_ else (lambda n: None)
    w2_read_lane(a, VA2, 1)
    a.e("s_waitcnt vmcnt(0)")
    w2_read(a, [0,1,2], VA2)
    w2_dma(a, [3,4], VD2, S_S0, S_DT)
    L6 = a.newlabel("Lno6")
    a.e(f"s_cmp_lt_u32 s{S_NS}, 6"); a.e(f"s_cbranch_scc1 {L6}")
    w2_dma(a, [5], VD2, S_S0, S_DT)
    a.label(L6)
    a.e(f"""
    v_lshlrev_b32 v{VL2}, 4, v0
    s_mul_i32 s{S_HB}, s{S_RT2}, 43
    s_add_u32 s{S_HB}, s{S_HB}, s{S_S0}
    s_lshl_b32 s{S_HB}, s{S_HB}, 12
    s_add_u32 s{S_HB}, s{S_HB}, {WS_H}
    s_lshl_b32 s{t}, s{S_RT2}, 3
    s_add_u32 s{t}, s{t}, s3
    s_lshl_b32 s{t}, s{t}, 6
    s_add_u32 s78, s{t}, {FB_OFF}
    v_mov_b32 v1, 0
    """)
    poll_flags(a, 1, 1, 78, 2)
    mk('hflag')
    for s in range(5): h_load(a, s, VL2)
    w2_read(a, [3,4,5], VA2)
    mk('w2rd')
    VX = 10
    for s in range(5):
        a.e(f"s_waitcnt vmcnt({4*(4-s)})")
        g2_mfma(a, s)
    L6 = a.newlabel("Lno6")
    a.e(f"s_cmp_lt_u32 s{S_NS}, 6"); a.e(f"s_cbranch_scc1 {L6}")
    h_load(a, 5, VL2)
    a.e("s_waitcnt vmcnt(0)")
    g2_mfma(a, 5)
    a.label(L6)
    mk('g2mm')
    a.e(f"""
    s_lshr_b32 s{t+1}, s3, 1
    s_lshl_b32 s{t}, s{S_DT}, 5
    s_lshl_b32 s{t+2}, s{t+1}, 3
    s_add_u32 s{t}, s{t}, s{t+2}
    s_lshl_b32 s{t}, s{t}, 6
    s_add_u32 s78, s{t}, {FC_OFF}
    v_lshlrev_b32 v1, 6, v0
    """)
    VX = 16
    a.e(f"""
    v_lshrrev_b32 v2, 4, v0
    v_lshrrev_b32 v3, 2, v0
    v_and_b32 v3, 3, v3
    v_and_b32 v14, 3, v0
    v_lshlrev_b32 v15, 5, v2
    v_lshl_add_u32 v15, v14, 3, v15
    v_lshl_add_u32 v{VX+6}, v3, 12, v15
    s_lshl_b32 s{t}, s{S_RT2}, 16
    s_lshl_b32 s{t+1}, s{S_DT}, 7
    s_add_u32 s{t}, s{t}, s{t+1}
    s_lshr_b32 s{t+2}, s3, 1
    s_lshl_b32 s{t+2}, s{t+2}, 14
    s_add_u32 s{t}, s{t}, s{t+2}
    s_and_b32 s{t+2}, s3, 1
    s_lshl_b32 s{t+2}, s{t+2}, 11
    s_add_u32 s{t}, s{t}, s{t+2}
    v_add_u32 v{VX+6}, s{t}, v{VX+6}
    buffer_load_dwordx2 {vr(VX,2)}, v{VX+6}, {sq(SRD_X)}, 0 offen
    buffer_load_dwordx2 {vr(VX+2,2)}, v{VX+6}, {sq(SRD_X)}, 0 offen offset:1024
    v_add_u32 v15, s{t+1}, v15
    global_load_dwordx2 {vr(VX+4,2)}, v15, {sp(S_B2)}
    """)
    poll_flags(a, 8, 1, 78, 2)
    a.e(f"""
    v_and_b32 v1, 15, v0
    v_lshlrev_b32 v1, 12, v1
    v_lshrrev_b32 v2, 4, v0
    v_lshl_add_u32 v1, v2, 3, v1
    s_lshr_b32 s{t+1}, s3, 1
    s_lshl_b32 s{t}, s{S_DT}, 2
    s_add_u32 s{t}, s{t}, s{t+1}
    s_lshl_b32 s{t}, s{t}, 16
    s_lshl_b32 s{t+2}, s{S_RT2}, 7
    s_add_u32 s{t}, s{t}, s{t+2}
    s_and_b32 s{t+2}, s3, 1
    s_lshl_b32 s{t+2}, s{t+2}, 6
    s_add_u32 s{t}, s{t}, s{t+2}
    s_add_u32 s{t}, s{t}, {WS_AOT}
    buffer_load_dwordx2 v[10:11], v1, {sq(SRD_WS)}, s{t} offen sc1
    buffer_load_dwordx2 v[12:13], v1, {sq(SRD_WS)}, s{t} offen offset:32 sc1
    s_waitcnt vmcnt(0)
    v_lshlrev_b32 v24, 16, v10
    v_and_b32 v25, 0xffff0000, v10
    v_lshlrev_b32 v26, 16, v11
    v_and_b32 v27, 0xffff0000, v11
    v_lshlrev_b32 v28, 16, v12
    v_and_b32 v29, 0xffff0000, v12
    v_lshlrev_b32 v30, 16, v13
    v_and_b32 v31, 0xffff0000, v13
    """)
    Ld = a.newlabel("Laod")
    for w in range(8):
        Ln = a.newlabel("Laon")
        a.e(f"s_cmp_lg_u32 s3, {w}"); a.e(f"s_cbranch_scc1 {Ln}")
        for k in range(2):
            A_ = acc2(2*(w&1)+k, w>>1)
            for i in range(4): a.e(f"v_add_f32 v{A_+i}, v{A_+i}, v{24+4*k+i}")
        a.e(f"s_branch {Ld}")
        a.label(Ln)
    a.label(Ld)
    mk('ao')
    a.e("s_barrier")
    a.e(f"s_lshl_b32 s{t}, s3, 8")
    a.e(f"s_mov_b32 m0, s{t}")
    for idx in range(32):
        a.e(f"ds_write_addtid_b32 v{ACC2+idx} offset:{2048*idx}")
    a.e(f"s_add_u32 m0, s{t}, 63740")
    for idx in range(32, 64):
        a.e(f"ds_write_addtid_b32 v{ACC2+idx} offset:{2048*idx - 63740}")
    a.e("s_waitcnt lgkmcnt(0)")
    mk('pw')
    a.e("s_barrier")
    a.e(f"""
    v_lshrrev_b32 v2, 4, v0
    v_lshlrev_b32 v2, 13, v2
    v_and_b32 v3, 15, v0
    v_lshl_add_u32 v2, v3, 4, v2
    s_lshr_b32 s{t}, s3, 1
    s_lshl_b32 s{t}, s{t}, 15
    s_and_b32 s{t+1}, s3, 1
    s_lshl_b32 s{t+1}, s{t+1}, 12
    s_add_u32 s{t}, s{t}, s{t+1}
    v_add_u32 v2, s{t}, v2
    """)
    T = ACC2
    for k in range(2):
        for w in range(8):
            a.e(f"ds_read_b128 {vr(T+32*k+4*w,4)}, v2 offset:{2048*k + 256*w}")
        if k == 0: a.e("s_waitcnt lgkmcnt(4)")
    U = 24
    a.e(f"""
    v_lshlrev_b32 v{U+8}, 16, v{VX+4}
    v_and_b32 v{U+9}, 0xffff0000, v{VX+4}
    v_lshlrev_b32 v{U+10}, 16, v{VX+5}
    v_and_b32 v{U+11}, 0xffff0000, v{VX+5}
    """)
    for k in range(2):
        a.e(f"s_waitcnt lgkmcnt({8 if k == 0 else 0})")
        B_ = T + 32*k
        for step in (4,2,1):
            for w in range(step):
                for e in (0,2):
                    a.e(f"v_pk_add_f32 {vr(B_+4*w+e,2)}, {vr(B_+4*w+e,2)}, {vr(B_+4*(w+step)+e,2)}")
        a.e(f"""
        v_lshlrev_b32 v{U}, 16, v{VX+2*k}
        v_and_b32 v{U+1}, 0xffff0000, v{VX+2*k}
        v_lshlrev_b32 v{U+2}, 16, v{VX+2*k+1}
        v_and_b32 v{U+3}, 0xffff0000, v{VX+2*k+1}
        v_pk_add_f32 {vr(U,2)}, {vr(U,2)}, {vr(U+8,2)}
        v_pk_add_f32 {vr(U+2,2)}, {vr(U+2,2)}, {vr(U+10,2)}
        v_pk_add_f32 {vr(U,2)}, {vr(U,2)}, {vr(B_,2)}
        v_pk_add_f32 {vr(U+2,2)}, {vr(U+2,2)}, {vr(B_+2,2)}
        v_cvt_pk_bf16_f32 v{U+4+2*k}, v{U}, v{U+1}
        v_cvt_pk_bf16_f32 v{U+5+2*k}, v{U+2}, v{U+3}
        buffer_store_dwordx2 {vr(U+4+2*k,2)}, v{VX+6}, {sq(SRD_OUT)}, 0 offen offset:{1024*k}
        """)
    mk('fin')

KNAME = "parallel_sum__ssm_conv_s4d__mixer_channel_mlp__prompt_kernel"
CFG = dict(nb0=30)

def p2_bases(a):
    t = S_T
    a.e(f"""
    s_lshr_b32 s{t+1}, s2, 5
    s_lshl_b32 s{t+1}, s{t+1}, 7
    s_mul_i32 s80, s3, 43
    s_add_u32 s80, s80, 5
    s_lshr_b32 s80, s80, 3
    s_lshl_b32 s80, s80, 15
    s_add_u32 s80, s80, s{t+1}
    s_mul_i32 s81, s3, {W2_STAGE}
    s_add_u32 s81, s81, {LDS_W2}
    """)

def kernel_fused(stamp=None):
    a = Asm()
    sg = Stamps(a, stamp == 'g', base=84); sh = Stamps(a, stamp == 'h', base=84)
    both = Stamps(a, stamp is not None, base=84)
    both.mark('start')
    if CFG.get('rt'): a.e("s_memrealtime s[96:97]")
    prologue(a, 256, "L_end")
    g1_map(a)
    a.e("s_waitcnt lgkmcnt(0)")
    both.mark('karg')
    sg.n = sh.n = both.n; sg.names = list(both.names); sh.names = list(both.names)
    a.e("s_cmp_ge_u32 s3, 4")
    a.e("s_cbranch_scc1 L_helper")
    make_srd(a, SRD_X, S_X, 2097152)
    make_srd(a, SRD_W, S_W1, 1409024)
    make_srd(a, SRD_WS, S_WS, WS_SIZE)
    make_srd(a, SRD_OUT, S_OUT, 2097152)
    a.e("s_barrier")
    x_dma16(a, 1)
    w1_lane_setup(a, AF1, AF1+4)
    w1_issue(a, 0, AF1, 3)
    gemm_wave_setup(a)
    a.e(f"""
    v_mov_b32 v1, {LDS_CNT}
    v_lshl_add_u32 v1, v0, 2, v1
    v_mov_b32 v2, 0
    v_cmp_gt_u32 vcc, 8, v0
    s_and_saveexec_b64 s[{S_EX}:{S_EX+1}], vcc
    ds_write_b32 v1, v2
    s_mov_b64 exec, s[{S_EX}:{S_EX+1}]
    s_waitcnt lgkmcnt(0)
    s_waitcnt vmcnt(6)
    """)
    sg.mark('xland')
    a.e("s_barrier")
    sg.mark('B0')
    w1_issue(a, 1, AF1, 3)
    gemm_load_x(a)
    sg.mark('xfrag')
    gemm_stats_xn(a)
    a.e("s_waitcnt vmcnt(6)")
    sg.mark('xn')
    a.e("s_barrier")
    for l in a_reads(0, AF0): a.e(l)
    gemm_xn_store(a)
    a.e("s_waitcnt vmcnt(2)")
    a.e(f"s_cmp_eq_u32 s{S_LH}, 1")
    a.e("s_cbranch_scc1 L_gl1")
    for lh in range(2):
        if lh == 1: a.label("L_gl1")
        for st in range(8):
            if st == 2: a.e("s_waitcnt vmcnt(0)")
            a.e("s_barrier")
            if lh == 0 and st in (0,4): sg.mark(f'S{st}')
            gemm_stage(a, st, lh)
        cs_write(a, lh)
        if lh == 0: a.e("s_branch L_gdone")
    a.label("L_gdone")
    a.e("s_barrier")
    sg.mark('E0')
    if CFG.get('dbgcs'):
        a.e(f"""
        v_lshlrev_b32 v1, 2, v0
        v_add_u32 v2, {LDS_CS}, v1
        ds_read_b32 v20, v2
        ds_read_b32 v21, v2 offset:256
        ds_read_b32 v22, v2 offset:512
        v_add_u32 v2, {LDS_STATS}, v1
        ds_read_b32 v23, v2
        ds_read_b32 v24, v2 offset:256
        ds_read_b32 v25, v2 offset:512
        ds_read_b32 v26, v2 offset:768
        s_lshl_b32 s62, s2, 11
        s_add_u32 s62, s62, 0xE00000
        s_waitcnt lgkmcnt(0)
        buffer_store_dword v20, v1, {sq(SRD_WS)}, s62 offen
        buffer_store_dword v21, v1, {sq(SRD_WS)}, s62 offen offset:256
        buffer_store_dword v22, v1, {sq(SRD_WS)}, s62 offen offset:512
        buffer_store_dword v23, v1, {sq(SRD_WS)}, s62 offen offset:1024
        buffer_store_dword v24, v1, {sq(SRD_WS)}, s62 offen offset:1280
        buffer_store_dword v25, v1, {sq(SRD_WS)}, s62 offen offset:1536
        buffer_store_dword v26, v1, {sq(SRD_WS)}, s62 offen offset:1792
        s_waitcnt vmcnt(0)
        """)
    if not CFG.get('noprio'): a.e("s_setprio 2")
    make_srd(a, SRD_W, S_W2, 1409024)
    read_nonce_lds(a, 1)
    p2_bases(a)
    w2_dma_lane(a, 18, 1)
    if CFG.get('nodma'):
        for g in w2_dma_list([0,1,2], 18, 80, 81):
            for l in g: a.e(l)
        gemm_epilogue2(a, [])
    elif CFG.get('skipfirst'):
        gs = w2_dma_list([0,1,2], 18, 80, 81)
        for g in gs[:3]:
            for l in g: a.e(l)
        gemm_epilogue2(a, gs[3:])
    else:
        gemm_epilogue2(a, w2_dma_list([0,1,2], 18, 80, 81))
    sg.mark('epi')
    a.e("s_waitcnt vmcnt(0)")
    t = S_T
    a.e(f"""
    s_lshl_b32 s{t}, s{S_RT}, 3
    s_add_u32 s{t}, s{t}, s{S_CT}
    s_lshl_b32 s{t}, s{t}, 6
    s_add_u32 s{t}, s{t}, {FB_OFF}
    """)
    lds_arrive_signal(a, 4, 4, t, 1)
    a.e("s_setprio 0")
    sg.mark('sigB')
    a.e(f"v_mov_b32 v{VD2}, v18")
    g2_map(a)
    a.e("s_branch L_tail")
    a.label("L_helper")
    a.e(f"s_sub_u32 s{S_HW}, s3, 4")
    V = kgen.kgen_vmap(8)
    a.e(f"""
    s_lshr_b32 s{S_T}, s{S_HW}, 1
    s_lshl_b32 s{S_KC}, s2, 1
    s_add_u32 s{S_KC}, s{S_KC}, s{S_T}
    s_and_b32 s{S_KNH}, s{S_HW}, 1
    """)
    kgen.kgen_load(a, V, S_KC, S_KNH, S_T)
    a.e(f"""
    s_lshl_b32 s{S_T}, s{S_HW}, 6
    v_add_u32 v145, s{S_T}, v0
    s_lshl_b32 s{S_T+1}, s{S_P}, 5
    v_add_u32 v146, s{S_T+1}, v145
    v_min_u32 v146, 1375, v146
    v_lshlrev_b32 v146, 1, v146
    global_load_ushort v146, v146, {sp(S_B1)}
    s_lshl_b32 s{S_T}, s{S_KC}, 1
    v_mov_b32 v147, s{S_T}
    global_load_ushort v147, v147, {sp(S_DSK)}
    """)
    a.e("s_barrier")
    make_srd(a, SRD_X, S_X, 2097152)
    make_srd(a, SRD_W, S_W1, 1409024)
    make_srd(a, SRD_WS, S_WS, WS_SIZE)
    make_srd(a, SRD_OUT, S_OUT, 2097152)
    Ln = a.newlabel("Lnn")
    a.e(f"""
    s_mul_i32 s{S_KTAB}, s{S_HW}, {KG_TAB}
    s_add_u32 s{S_KTAB}, s{S_KTAB}, {LDS_KG}
    s_cmp_lg_u32 s2, 0
    s_cbranch_scc1 {Ln}
    s_cmp_lg_u32 s3, 4
    s_cbranch_scc1 {Ln}
    s_memrealtime s[{S_T}:{S_T+1}]
    s_waitcnt lgkmcnt(0)
    s_or_b32 s{S_T}, s{S_T}, 1
    v_mov_b32 v1, s{S_T}
    v_mov_b32 v2, 0
    s_mov_b64 s[{S_EX}:{S_EX+1}], exec
    s_mov_b64 exec, 1
    global_store_dword v2, v1, {sp(S_DBG)} sc1
    s_mov_b64 exec, s[{S_EX}:{S_EX+1}]
    """)
    a.label(Ln)
    kgen.kgen_addr_setup(a, V, S_KTAB)
    w1_lane_setup(a, 232, 236)
    a.e("s_waitcnt vmcnt(0)")
    sh.mark('par')
    ch = kgen.kgen_chunks(V, S_KK, V['wr'])[:-1]
    nb0 = CFG['nb0']
    for f in ch[:nb0]: f(a)
    sh.mark('kgA')
    a.e("s_barrier")
    Ln2 = a.newlabel("Lnn")
    a.e(f"""
    s_cmp_lg_u32 s3, 4
    s_cbranch_scc1 {Ln2}
    v_mov_b32 v1, 0
    global_load_dword v2, v1, {sp(S_DBG)} sc1
    """)
    a.label(Ln2)
    for f in ch[nb0:]: f(a)
    kgen.kgen_x_write(a, V, S_KNH, S_KTAB)
    a.e(f"""
    v_lshlrev_b32 v146, 16, v146
    v_lshlrev_b32 v144, 2, v145
    v_add_u32 v144, {LDS_B1}, v144
    v_cmp_gt_u32 vcc, 192, v145
    s_and_saveexec_b64 s[{S_EX}:{S_EX+1}], vcc
    ds_write_b32 v144, v146
    s_mov_b64 exec, s[{S_EX}:{S_EX+1}]
    v_lshlrev_b32 v147, 16, v147
    v_readfirstlane_b32 s35, v147
    """)
    Ln3 = a.newlabel("Lnn"); Lp = a.newlabel("Lnp"); Lq = a.newlabel("Lnq")
    a.e(f"""
    s_cmp_lg_u32 s3, 4
    s_cbranch_scc1 {Ln3}
    s_mov_b32 s{S_SPIN}, 200000
    """)
    a.label(Lp)
    a.e(f"""
    s_waitcnt vmcnt(0)
    v_readfirstlane_b32 s{S_T}, v2
    s_cmp_lg_u32 s{S_T}, 0
    s_cbranch_scc1 {Lq}
    s_sub_u32 s{S_SPIN}, s{S_SPIN}, 1
    s_cmp_eq_u32 s{S_SPIN}, 0
    s_cbranch_scc1 {Lq}
    s_sleep 2
    v_mov_b32 v1, 0
    global_load_dword v2, v1, {sp(S_DBG)} sc1
    s_branch {Lp}
    """)
    a.label(Lq)
    a.e(f"""
    v_mov_b32 v1, {LDS_CNT+32}
    ds_write_b32 v1, v2
    """)
    a.label(Ln3)
    a.e("s_waitcnt lgkmcnt(0)")
    sh.mark('kgB')
    a.e("s_barrier")
    w1_issue(a, 2, 232, S_HW)
    w1_issue(a, 3, 232, S_HW)
    read_nonce_lds(a, 1)
    a.e(f"""
    s_lshr_b32 s{S_T}, s{S_HW}, 1
    s_mul_i32 s82, s{S_T}, 4224
    s_add_u32 s82, s82, {LDS_FB + 16}
    """)
    kgen.kgen_x_finish(a, V, S_KNH, S_KTAB, 82, S_T+2)
    sh.mark('kgC')
    a.e("s_barrier")
    a.e(f"""
    s_lshl_b32 s{S_T}, s{S_KNH}, 6
    v_add_u32 v8, s{S_T}, v0
    s_lshr_b32 s{S_T}, s{S_HW}, 1
    s_mul_i32 s83, s{S_T}, {KC_CH}
    s_add_u32 s83, s83, {LDS_KG}
    """)
    if CFG.get('dbgfb'):
        a.e(f"""
        s_mul_i32 s62, s2, 8448
        s_add_u32 s62, s62, 0xC00000
        s_lshl_b32 s63, s{S_HW}, 8
        v_lshl_add_u32 v60, v0, 2, s63
        """)
        for it in range(9):
            a.e(f"""
            v_add_u32 v61, {LDS_FB + 1024*it}, v60
            ds_read_b32 v62, v61
            v_add_u32 v61, {1024*it}, v60
            v_cmp_gt_u32 vcc, 8448, v61
            s_and_saveexec_b64 s[74:75], vcc
            s_waitcnt lgkmcnt(0)
            buffer_store_dword v62, v61, {sq(SRD_WS)}, s62 offen
            s_mov_b64 exec, s[74:75]
            """)
        a.e("s_waitcnt vmcnt(0)")
    kgen.k_copies(a, 12, 8, 82, 83, KC_COPY)
    sh.mark('kcp')
    a.e("s_waitcnt vmcnt(6)")
    a.e("s_barrier")
    w1_issue(a, 4, 232, S_HW)
    a.e("s_waitcnt vmcnt(6)")
    a.e("s_barrier")
    La = a.newlabel("Lsa")
    a.e(f"""
    s_cmp_lg_u32 s3, 4
    s_cbranch_scc1 {La}
    s_lshl_b32 s{S_T}, s{S_CT}, 5
    s_add_u32 s{S_T}, s{S_T}, s{S_RT}
    s_lshl_b32 s{S_T}, s{S_T}, 6
    s_add_u32 s{S_T}, s{S_T}, {FA_OFF}
    v_mov_b32 v1, 0
    v_mov_b32 v2, s{S_NONCE}
    s_mov_b64 s[{S_EX}:{S_EX+1}], exec
    s_mov_b64 exec, 1
    buffer_store_dword v2, v1, {sq(SRD_WS)}, s{S_T} offen sc1
    s_mov_b64 exec, s[{S_EX}:{S_EX+1}]
    """)
    a.label(La)
    w1_issue(a, 5, 232, S_HW)
    a.e("s_waitcnt vmcnt(6)")
    a.e("s_barrier")
    w1_issue(a, 6, 232, S_HW)
    a.e("s_waitcnt vmcnt(6)")
    a.e("s_barrier")
    w1_issue(a, 7, 232, S_HW)
    a.e("s_waitcnt vmcnt(6)")
    a.e("s_barrier")
    sh.mark('S5')
    a.e("s_waitcnt vmcnt(0)")
    a.e("s_barrier")
    C = conv.conv_vmap(8)
    u_load(a, C)
    a.e("s_waitcnt vmcnt(0)")
    u_write(a, C)
    sh.mark('uld')
    a.e("s_barrier")
    a.e(f"""
    s_lshr_b32 s{S_T}, s{S_HW}, 1
    s_mul_i32 s76, s{S_T}, {KC_CH}
    s_add_u32 s76, s76, {LDS_KG}
    s_mul_i32 s77, s{S_T}, {U_CH}
    s_add_u32 s77, s77, {LDS_U}
    s_and_b32 s78, s{S_HW}, 1
    """)
    conv.conv_addr_setup(a, C, 76, 77, 78, S_T)
    make_srd(a, SRD_W, S_W2, 1409024)
    p2_bases(a)
    w2_dma_lane(a, 232, 236)
    a.e("s_barrier")
    conv.conv_main(a, C, extra=w2_dma_list([0,1,2], 232, 80, 81))
    sh.mark('conv')
    a.e(f"""
    s_lshr_b32 s{S_T}, s{S_HW}, 1
    s_lshl_b32 s79, s2, 1
    s_add_u32 s79, s79, s{S_T}
    s_lshl_b32 s79, s79, 12
    s_add_u32 s79, s79, {WS_AOT}
    """)
    conv_exchange_epilogue(a, C, 77, 35, 79)
    a.e("s_waitcnt vmcnt(0)")
    a.e(f"""
    s_lshl_b32 s{S_T}, s2, 6
    s_add_u32 s{S_T}, s{S_T}, {FC_OFF}
    """)
    lds_arrive_signal(a, 8, 4, S_T, 1)
    sh.mark('sigC')
    a.e(f"v_mov_b32 v{VD2}, v232")
    g2_map(a)
    a.label("L_tail")
    tail = Stamps(a, stamp is not None, base=84)
    tail.n = (sg.n if stamp == 'g' else sh.n) if stamp else 0
    tail.names = list(sg.names if stamp == 'g' else sh.names)
    tail2(a, tail if stamp else None)
    a.e("s_waitcnt vmcnt(0)")
    if stamp: tail.dump()
    if CFG.get('rt'):
        a.e(f"""
        s_memrealtime s[98:99]
        s_waitcnt lgkmcnt(0)
        s_not_b32 s96, s96
        v_mov_b32 v1, s96
        v_mov_b32 v2, s98
        v_mov_b32 v3, 8
        s_mov_b64 exec, 1
        global_atomic_umax v3, v1, {sp(S_DBG)} sc1
        global_atomic_umax v3, v2, {sp(S_DBG)} offset:4 sc1
        s_waitcnt vmcnt(0)
        """)
    kernel_fused.names = tail.names
    a.label("L_end")
    a.e("s_endpgm")
    return (KNAME, a.text(), 256, 102)
```

```python
from fused_head import *
import fused_head as fh

LDS_FB = 83968

def gemm_stats_xn(a):
    t = S_T
    T = 20
    SA, QA, XS = 80, 84, 88
    a.e(f"""
    v_and_b32 v{T}, 15, v0
    v_lshrrev_b32 v{T+1}, 4, v0
    v_lshlrev_b32 v{T+2}, 10, v{T}
    s_lshl_b32 s{t}, s{S_LTA}, 14
    v_add_u32 v{T+2}, s{t}, v{T+2}            ; row*1024
    s_sub_u32 s{t+1}, s{S_CT}, s{S_ROT}
    s_and_b32 s{t+1}, s{t+1}, 7
    s_lshl_b32 s{t+1}, s{t+1}, 3
    v_lshlrev_b32 v{T+3}, 1, v{T+1}
    v_add_u32 v{T+3}, s{t+1}, v{T+3}
    v_xor_b32 v{T+4}, v{T+3}, v{T}
    v_add_u32 v{T+3}, 1, v{T+3}
    v_xor_b32 v{T+5}, v{T+3}, v{T}
    v_lshl_add_u32 v{T+4}, v{T+4}, 4, v{T+2}
    v_lshl_add_u32 v{T+5}, v{T+5}, 4, v{T+2}
    ds_read_b128 {vr(XS,4)}, v{T+4} offset:{LDS_X}
    ds_read_b128 {vr(XS+4,4)}, v{T+5} offset:{LDS_X}
    """)
    for s in range(16):
        f = vr(xf(0,s),4)
        a.e(f"v_mfma_f32_16x16x32_bf16 {vr(SA,4)}, {vr(ONES,4)}, {f}, {'0' if s==0 else vr(SA,4)}")
        a.e(f"v_mfma_f32_16x16x32_bf16 {vr(QA,4)}, {f}, {f}, {'0' if s==0 else vr(QA,4)}")
    a.e(f"""
    v_and_b32 v{T+6}, 3, v0
    v_lshrrev_b32 v{T+8}, 2, v{T}
    v_lshl_add_u32 v{T+8}, v{T+8}, 4, v{T}
    v_lshlrev_b32 v{T+8}, 2, v{T+8}
    v_cmp_eq_u32 vcc, 1, v{T+6}
    v_cndmask_b32 v{T+7}, v{QA}, v{QA+1}, vcc
    v_cmp_eq_u32 vcc, 2, v{T+6}
    v_cndmask_b32 v{T+7}, v{T+7}, v{QA+2}, vcc
    v_cmp_eq_u32 vcc, 3, v{T+6}
    v_cndmask_b32 v{T+7}, v{T+7}, v{QA+3}, vcc
    ds_bpermute_b32 v{T+7}, v{T+8}, v{T+7}
    """)
    U = 40
    a.e("s_waitcnt lgkmcnt(1)")
    for i in range(8):
        a.e(f"v_lshlrev_b32 v{U+2*i}, 16, v{XS+i}")
        a.e(f"v_and_b32 v{U+2*i+1}, 0xffff0000, v{XS+i}")
    a.e("s_waitcnt lgkmcnt(0)")
    MN = 32
    ln_scalars(a, SA, T+7, MN, MN+1, MN+2, MN+3, T+8, T+9)
    a.e(f"""
    s_lshl_b32 s{t}, s{S_LTA}, 8
    s_add_u32 s{t}, s{t}, {LDS_STATS}
    v_lshl_add_u32 v{T+6}, v{T}, 4, s{t}
    v_cmp_gt_u32 vcc, 16, v0
    s_and_saveexec_b64 s[{S_EX}:{S_EX+1}], vcc
    ds_write_b64 v{T+6}, {vr(MN,2)}
    s_mov_b64 exec, s[{S_EX}:{S_EX+1}]
    v_lshrrev_b32 v{T+6}, 1, v{T}
    v_and_b32 v{T+6}, 3, v{T+6}
    v_xor_b32 v{T+6}, v{T+6}, v{T+1}
    v_lshlrev_b32 v{T+6}, 5, v{T+6}
    v_lshl_add_u32 v{T+6}, v{T}, 7, v{T+6}
    s_lshl_b32 s{t}, s{S_LTA}, 11
    s_add_u32 s{t}, s{t}, {LDS_XT}
    v_add_u32 v{T+6}, s{t}, v{T+6}
    """)
    for i in range(16): a.e(f"v_sub_f32 v{U+i}, v{U+i}, v{MN+2}")
    for i in range(8): a.e(f"v_cvt_pk_bf16_f32 v{XS+i}, v{U+2*i}, v{U+2*i+1}")
    for i in range(8):
        a.e(f"v_lshlrev_b32 v{U+2*i}, 16, v{XS+i}")
        a.e(f"v_and_b32 v{U+2*i+1}, 0xffff0000, v{XS+i}")
    for i in range(16): a.e(f"v_mul_f32 v{U+i}, v{U+i}, v{MN+3}")
    for i in range(8): a.e(f"v_cvt_pk_bf16_f32 v{XS+i}, v{U+2*i}, v{U+2*i+1}")
    a.e(f"ds_write_b128 v{T+6}, {vr(XS,4)}")
    a.e(f"ds_write_b128 v{T+6}, {vr(XS+4,4)} offset:16")
    a.e("s_waitcnt lgkmcnt(0)")

def gemm_xn_store(a):
    t = S_T; T = 44; XS = 56
    a.e(f"""
    v_lshrrev_b32 v{T}, 4, v0
    v_and_b32 v{T+1}, 15, v0
    v_lshrrev_b32 v{T+2}, 2, v{T+1}
    v_and_b32 v{T+3}, 3, v0
    v_lshl_add_u32 v{T+4}, v{T}, 3, v{T+2}
    v_lshlrev_b32 v{T+4}, 7, v{T+4}
    v_lshl_add_u32 v{T+4}, v{T+3}, 3, v{T+4}
    v_add_u32 v{T+4}, {LDS_XT}, v{T+4}
    v_lshrrev_b32 v{T+5}, 1, v{T+2}
    v_xor_b32 v{T+6}, s3, v{T+5}
    v_lshl_add_u32 v{T+6}, v{T+6}, 5, v{T+4}
    v_add_u32 v{T+5}, 2, v{T+5}
    v_xor_b32 v{T+7}, s3, v{T+5}
    v_lshl_add_u32 v{T+7}, v{T+7}, 5, v{T+4}
    """)
    for half in range(2):
        a.e(f"ds_read_b64_tr_b16 {vr(XS+4*half,2)}, v{T+6} offset:{half*32*128}")
        a.e(f"ds_read_b64_tr_b16 {vr(XS+2+4*half,2)}, v{T+7} offset:{half*32*128 + 4*128}")
    a.e(f"""
    v_lshlrev_b32 v{T+8}, 12, v{T+1}
    v_lshl_add_u32 v{T+8}, v{T}, 4, v{T+8}
    s_lshl_b32 s{t}, s{S_CT}, 6
    s_lshl_b32 s{t+1}, s3, 4
    s_add_u32 s{t}, s{t}, s{t+1}
    s_lshl_b32 s{t}, s{t}, 12
    s_lshl_b32 s{t+1}, s{S_RT}, 7
    s_add_u32 s{t}, s{t}, s{t+1}
    s_add_u32 s{t}, s{t}, {WS_XNT}
    s_waitcnt lgkmcnt(0)
    buffer_store_dwordx4 {vr(XS,4)}, v{T+8}, {sq(SRD_WS)}, s{t} offen sc1
    buffer_store_dwordx4 {vr(XS+4,4)}, v{T+8}, {sq(SRD_WS)}, s{t} offen offset:64 sc1
    """)

def w2_dma_list(steps, vD, sBaseG, sBaseL):
    L = []
    for s in steps:
        for q in range(4):
            L.append([f"s_add_u32 m0, s{sBaseL}, {(s%3)*4096 + q*1024}",
                      f"s_add_u32 s68, s{sBaseG}, {s*32768 + q*8192}",
                      f"buffer_load_dwordx4 v{vD}, {sq(SRD_W)}, s68 offen lds"])
    return L

def gemm_epilogue2(a, dma_groups):
    t = S_T
    R = [14, 16]
    a.e(f"""
    v_and_b32 v1, 15, v0
    s_lshl_b32 s{t}, s{S_LTA}, 8
    s_add_u32 s{t}, s{t}, {LDS_STATS}
    v_lshl_add_u32 v2, v1, 4, s{t}
    ds_read_b64 v[20:21], v2
    s_lshl_b32 s{t}, s{S_LTB}, 8
    s_add_u32 s{t}, s{t}, {LDS_STATS}
    v_lshl_add_u32 v2, v1, 4, s{t}
    ds_read_b64 v[22:23], v2
    v_lshrrev_b32 v2, 4, v0
    v_lshlrev_b32 v2, 4, v2
    v_add_u32 v2, {LDS_CS}, v2
    s_mul_i32 s{t}, s{S_FH}, 384
    v_add_u32 v2, s{t}, v2
    v_lshlrev_b32 v3, 4, v0
    s_mul_i32 s{t+4}, s{S_RT}, {H_RT}
    s_add_u32 s{t+4}, s{t+4}, {WS_H}
    """)
    CSr, B1r, TT, T2, OUT = 24, 48, 36, 44, 52
    sets = [(24, 56), (64, 72)]
    def tab_reads(pp):
        c, b = sets[pp % 2]
        for h in range(2):
            a.e(f"ds_read_b128 {vr(c+4*h,4)}, v2 offset:{128*pp + 64*h}")
            a.e(f"ds_read_b128 {vr(b+4*h,4)}, v2 offset:{LDS_B1 - LDS_CS + 128*pp + 64*h}")
    tab_reads(0)
    a.e(f"""
    s_waitcnt lgkmcnt(4)
    v_mov_b32 v{R[0]}, v21
    v_mul_f32 v{R[0]+1}, v20, v21
    v_sub_f32 v{R[0]+1}, 0, v{R[0]+1}
    v_mov_b32 v{R[1]}, v23
    v_mul_f32 v{R[1]+1}, v22, v23
    v_sub_f32 v{R[1]+1}, 0, v{R[1]+1}
    """)
    TT, T2, OUT = 32, 40, 48
    if CFG.get('duppair'):
        a.e("""
        v_mov_b32 v20, v15
        v_mov_b32 v21, v15
        v_mov_b32 v22, v17
        v_mov_b32 v23, v17
        v_mov_b32 v15, v14
        v_mov_b32 v17, v16
        """)
    gi = 0
    if CFG.get('swapR'):
        a.e("""
        v_mov_b32 v20, v14
        v_mov_b32 v14, v15
        v_mov_b32 v15, v20
        v_mov_b32 v20, v16
        v_mov_b32 v16, v17
        v_mov_b32 v17, v20
        """)
    for pp in range(3):
        CSr, B1r = sets[pp % 2]
        a.e("s_waitcnt lgkmcnt(0)")
        if CFG.get('nopw') and pp == 0:
            for _ in range(4): a.e("s_nop 15")
        if pp < 2 and not (CFG.get('late1') and pp == 0): tab_reads(pp+1)
        if CFG.get('waitl'): a.e("s_waitcnt lgkmcnt(0)")
        if pp == 0 and CFG.get('dbgcs2'):
            a.e(f"""
            s_lshl_b32 s62, s2, 2
            s_add_u32 s62, s62, s3
            s_lshl_b32 s62, s62, 12
            s_add_u32 s62, s62, 0xE00000
            buffer_store_dwordx4 v[24:27], v3, {sq(SRD_WS)}, s62 offen
            buffer_store_dwordx4 v[28:31], v3, {sq(SRD_WS)}, s62 offen offset:1024
            buffer_store_dwordx4 v[14:17], v3, {sq(SRD_WS)}, s62 offen offset:2048
            buffer_store_dwordx4 v[80:83], v3, {sq(SRD_WS)}, s62 offen offset:3072
            """)
        Lskip = a.newlabel("Lg1skip")
        a.e(f"""
        s_mul_i32 s{t}, s{S_FH}, 3
        s_add_u32 s{t}, s{t}, {pp}
        s_add_u32 s{t+2}, s{t}, s{S_P}
        s_lshl_b32 s{t+2}, s{t+2}, 12
        s_add_u32 s{t+2}, s{t+2}, s{t+4}
        """)
        if pp == 2:
            a.e(f"s_cmp_ge_u32 s{t}, s{S_NP}")
            a.e(f"s_cbranch_scc1 {Lskip}")
        for lt in range(2):
            items = [(h,q) for h in range(2) for q in range(2)]
            X = lambda h,q: acc(2*pp+h, lt) + 2*q
            k = lambda h,q: 2*(2*h+q)
            seq = []
            if CFG.get('duppair'):
                seq.append([f"v_pk_fma_f32 {vr(TT+k(h,q),2)}, {vr(CSr+4*h+2*q,2)}, {vr(20+2*lt,2)}, {vr(B1r+4*h+2*q,2)}" for (h,q) in items])
                seq.append([f"v_pk_fma_f32 {vr(X(h,q),2)}, {vr(X(h,q),2)}, {vr(R[lt],2)}, {vr(TT+k(h,q),2)}" for (h,q) in items])
            elif CFG.get('swapR'):
                seq.append([f"v_pk_fma_f32 {vr(TT+k(h,q),2)}, {vr(CSr+4*h+2*q,2)}, {vr(R[lt],2)}, {vr(B1r+4*h+2*q,2)} op_sel:[0,0,0] op_sel_hi:[1,0,1]" for (h,q) in items])
                seq.append([f"v_pk_fma_f32 {vr(X(h,q),2)}, {vr(X(h,q),2)}, {vr(R[lt],2)}, {vr(TT+k(h,q),2)} op_sel:[0,1,0] op_sel_hi:[1,1,1]" for (h,q) in items])
            elif CFG.get('scalarTT'):
                seq.append([f"v_fma_f32 v{TT+k(h,q)+e}, v{CSr+4*h+2*q+e}, v{R[lt]+1}, v{B1r+4*h+2*q+e}" for (h,q) in items for e in range(2)])
                seq.append([f"v_pk_fma_f32 {vr(X(h,q),2)}, {vr(X(h,q),2)}, {vr(R[lt],2)}, {vr(TT+k(h,q),2)} op_sel:[0,0,0] op_sel_hi:[1,0,1]" for (h,q) in items])
            else:
                seq.append([f"v_pk_fma_f32 {vr(TT+k(h,q),2)}, {vr(R[lt],2)}, {vr(CSr+4*h+2*q,2)}, {vr(B1r+4*h+2*q,2)} op_sel:[1,0,0] op_sel_hi:[1,1,1]" for (h,q) in items])
                seq.append([f"v_pk_fma_f32 {vr(X(h,q),2)}, {vr(X(h,q),2)}, {vr(R[lt],2)}, {vr(TT+k(h,q),2)} op_sel:[0,0,0] op_sel_hi:[1,0,1]" for (h,q) in items])
            seq.append([f"v_pk_mul_f32 {vr(T2+k(h,q),2)}, {vr(X(h,q),2)}, {vr(X(h,q),2)}" for (h,q) in items])
            seq.append([f"v_pk_fma_f32 {vr(T2+k(h,q),2)}, {vr(T2+k(h,q),2)}, s[{S_GC}:{S_GC+1}], s[{S_GC}:{S_GC+1}] op_sel:[0,1,0] op_sel_hi:[1,1,0]" for (h,q) in items])
            seq.append([f"v_pk_mul_f32 {vr(T2+k(h,q),2)}, {vr(T2+k(h,q),2)}, {vr(X(h,q),2)}" for (h,q) in items])
            seq.append([f"v_exp_f32 v{T2+k(h,q)+e}, v{T2+k(h,q)+e}" for (h,q) in items for e in range(2)])
            seq.append([f"v_pk_add_f32 {vr(T2+k(h,q),2)}, {vr(T2+k(h,q),2)}, s[{S_ONE}:{S_ONE+1}]" for (h,q) in items])
            seq.append([f"v_rcp_f32 v{T2+k(h,q)+e}, v{T2+k(h,q)+e}" for (h,q) in items for e in range(2)])
            seq.append([f"v_pk_mul_f32 {vr(X(h,q),2)}, {vr(X(h,q),2)}, {vr(T2+k(h,q),2)}" for (h,q) in items])
            seq.append([f"v_cvt_pk_bf16_f32 v{OUT+4*lt+2*h+q}, v{X(h,q)}, v{X(h,q)+1}" for (h,q) in items])
            for si, grp in enumerate(seq):
                for l in grp: a.e(l)
                if CFG.get('nops') and pp == 0 and lt == 0: a.e("s_nop 7")
                if CFG.get('skipfirst') and pp == 0 and lt == 0: continue
                blk = 2*pp + lt
                if blk >= CFG.get('dma_first', 0) and blk < CFG.get('dma_first', 0) + 4 and si in CFG.get('dma_si', (1, 4, 7)) and gi < len(dma_groups):
                    for l in dma_groups[gi]: a.e(l)
                    gi += 1
            sl = S_LTA if lt == 0 else S_LTB
            a.e(f"""
            s_lshl_b32 s{t+3}, s{sl}, 10
            s_add_u32 s{t+3}, s{t+3}, s{t+2}
            buffer_store_dwordx4 {vr(OUT+4*lt,4)}, v3, {sq(SRD_WS)}, s{t+3} offen sc1
            """)
            if CFG.get('late1') and pp == 0 and lt == 0: tab_reads(1)
        if pp == 2: a.label(Lskip)
    assert gi == len(dma_groups), (gi, len(dma_groups))

def tail2(a, st_=None):
    t = S_T
    mk = (lambda n: st_.mark(n)) if st_ else (lambda n: None)
    w2_read_lane(a, VA2, 1)
    a.e("s_waitcnt vmcnt(0)")
    w2_read(a, [0,1,2], VA2)
    w2_dma(a, [3,4], VD2, S_S0, S_DT)
    L6 = a.newlabel("Lno6")
    a.e(f"s_cmp_lt_u32 s{S_NS}, 6"); a.e(f"s_cbranch_scc1 {L6}")
    w2_dma(a, [5], VD2, S_S0, S_DT)
    a.label(L6)
    a.e(f"""
    v_lshlrev_b32 v{VL2}, 4, v0
    s_mul_i32 s{S_HB}, s{S_RT2}, 43
    s_add_u32 s{S_HB}, s{S_HB}, s{S_S0}
    s_lshl_b32 s{S_HB}, s{S_HB}, 12
    s_add_u32 s{S_HB}, s{S_HB}, {WS_H}
    s_lshl_b32 s{t}, s{S_RT2}, 3
    s_add_u32 s{t}, s{t}, s3
    s_lshl_b32 s{t}, s{t}, 6
    s_add_u32 s78, s{t}, {FB_OFF}
    v_mov_b32 v1, 0
    """)
    poll_flags(a, 1, 1, 78, 2)
    mk('hflag')
    for s in range(5): h_load(a, s, VL2)
    w2_read(a, [3,4,5], VA2)
    mk('w2rd')
    VX = 10
    for s in range(5):
        a.e(f"s_waitcnt vmcnt({4*(4-s)})")
        g2_mfma(a, s)
    L6 = a.newlabel("Lno6")
    a.e(f"s_cmp_lt_u32 s{S_NS}, 6"); a.e(f"s_cbranch_scc1 {L6}")
    h_load(a, 5, VL2)
    a.e("s_waitcnt vmcnt(0)")
    g2_mfma(a, 5)
    a.label(L6)
    mk('g2mm')
    a.e(f"""
    s_lshr_b32 s{t+1}, s3, 1
    s_lshl_b32 s{t}, s{S_DT}, 5
    s_lshl_b32 s{t+2}, s{t+1}, 3
    s_add_u32 s{t}, s{t}, s{t+2}
    s_lshl_b32 s{t}, s{t}, 6
    s_add_u32 s78, s{t}, {FC_OFF}
    v_lshlrev_b32 v1, 6, v0
    """)
    VX = 16
    a.e(f"""
    v_lshrrev_b32 v2, 4, v0
    v_lshrrev_b32 v3, 2, v0
    v_and_b32 v3, 3, v3
    v_and_b32 v14, 3, v0
    v_lshlrev_b32 v15, 5, v2
    v_lshl_add_u32 v15, v14, 3, v15
    v_lshl_add_u32 v{VX+6}, v3, 12, v15
    s_lshl_b32 s{t}, s{S_RT2}, 16
    s_lshl_b32 s{t+1}, s{S_DT}, 7
    s_add_u32 s{t}, s{t}, s{t+1}
    s_lshr_b32 s{t+2}, s3, 1
    s_lshl_b32 s{t+2}, s{t+2}, 14
    s_add_u32 s{t}, s{t}, s{t+2}
    s_and_b32 s{t+2}, s3, 1
    s_lshl_b32 s{t+2}, s{t+2}, 11
    s_add_u32 s{t}, s{t}, s{t+2}
    v_add_u32 v{VX+6}, s{t}, v{VX+6}
    buffer_load_dwordx2 {vr(VX,2)}, v{VX+6}, {sq(SRD_X)}, 0 offen
    buffer_load_dwordx2 {vr(VX+2,2)}, v{VX+6}, {sq(SRD_X)}, 0 offen offset:1024
    v_add_u32 v15, s{t+1}, v15
    global_load_dwordx2 {vr(VX+4,2)}, v15, {sp(S_B2)}
    """)
    poll_flags(a, 8, 1, 78, 2)
    a.e(f"""
    v_and_b32 v1, 15, v0
    v_lshlrev_b32 v1, 12, v1
    v_lshrrev_b32 v2, 4, v0
    v_lshl_add_u32 v1, v2, 3, v1
    s_lshr_b32 s{t+1}, s3, 1
    s_lshl_b32 s{t}, s{S_DT}, 2
    s_add_u32 s{t}, s{t}, s{t+1}
    s_lshl_b32 s{t}, s{t}, 16
    s_lshl_b32 s{t+2}, s{S_RT2}, 7
    s_add_u32 s{t}, s{t}, s{t+2}
    s_and_b32 s{t+2}, s3, 1
    s_lshl_b32 s{t+2}, s{t+2}, 6
    s_add_u32 s{t}, s{t}, s{t+2}
    s_add_u32 s{t}, s{t}, {WS_AOT}
    buffer_load_dwordx2 v[10:11], v1, {sq(SRD_WS)}, s{t} offen sc1
    buffer_load_dwordx2 v[12:13], v1, {sq(SRD_WS)}, s{t} offen offset:32 sc1
    s_waitcnt vmcnt(0)
    v_lshlrev_b32 v24, 16, v10
    v_and_b32 v25, 0xffff0000, v10
    v_lshlrev_b32 v26, 16, v11
    v_and_b32 v27, 0xffff0000, v11
    v_lshlrev_b32 v28, 16, v12
    v_and_b32 v29, 0xffff0000, v12
    v_lshlrev_b32 v30, 16, v13
    v_and_b32 v31, 0xffff0000, v13
    """)
    Ld = a.newlabel("Laod")
    for w in range(8):
        Ln = a.newlabel("Laon")
        a.e(f"s_cmp_lg_u32 s3, {w}"); a.e(f"s_cbranch_scc1 {Ln}")
        for k in range(2):
            A_ = acc2(2*(w&1)+k, w>>1)
            for i in range(4): a.e(f"v_add_f32 v{A_+i}, v{A_+i}, v{24+4*k+i}")
        a.e(f"s_branch {Ld}")
        a.label(Ln)
    a.label(Ld)
    mk('ao')
    a.e("s_barrier")
    a.e(f"s_lshl_b32 s{t}, s3, 8")
    a.e(f"s_mov_b32 m0, s{t}")
    for idx in range(32):
        a.e(f"ds_write_addtid_b32 v{ACC2+idx} offset:{2048*idx}")
    a.e(f"s_add_u32 m0, s{t}, 63740")
    for idx in range(32, 64):
        a.e(f"ds_write_addtid_b32 v{ACC2+idx} offset:{2048*idx - 63740}")
    a.e("s_waitcnt lgkmcnt(0)")
    mk('pw')
    a.e("s_barrier")
    a.e(f"""
    v_lshrrev_b32 v2, 4, v0
    v_lshlrev_b32 v2, 13, v2
    v_and_b32 v3, 15, v0
    v_lshl_add_u32 v2, v3, 4, v2
    s_lshr_b32 s{t}, s3, 1
    s_lshl_b32 s{t}, s{t}, 15
    s_and_b32 s{t+1}, s3, 1
    s_lshl_b32 s{t+1}, s{t+1}, 12
    s_add_u32 s{t}, s{t}, s{t+1}
    v_add_u32 v2, s{t}, v2
    """)
    T = ACC2
    for k in range(2):
        for w in range(8):
            a.e(f"ds_read_b128 {vr(T+32*k+4*w,4)}, v2 offset:{2048*k + 256*w}")
        if k == 0: a.e("s_waitcnt lgkmcnt(4)")
    U = 24
    a.e(f"""
    v_lshlrev_b32 v{U+8}, 16, v{VX+4}
    v_and_b32 v{U+9}, 0xffff0000, v{VX+4}
    v_lshlrev_b32 v{U+10}, 16, v{VX+5}
    v_and_b32 v{U+11}, 0xffff0000, v{VX+5}
    """)
    for k in range(2):
        a.e(f"s_waitcnt lgkmcnt({8 if k == 0 else 0})")
        B_ = T + 32*k
        for step in (4,2,1):
            for w in range(step):
                for e in (0,2):
                    a.e(f"v_pk_add_f32 {vr(B_+4*w+e,2)}, {vr(B_+4*w+e,2)}, {vr(B_+4*(w+step)+e,2)}")
        a.e(f"""
        v_lshlrev_b32 v{U}, 16, v{VX+2*k}
        v_and_b32 v{U+1}, 0xffff0000, v{VX+2*k}
        v_lshlrev_b32 v{U+2}, 16, v{VX+2*k+1}
        v_and_b32 v{U+3}, 0xffff0000, v{VX+2*k+1}
        v_pk_add_f32 {vr(U,2)}, {vr(U,2)}, {vr(U+8,2)}
        v_pk_add_f32 {vr(U+2,2)}, {vr(U+2,2)}, {vr(U+10,2)}
        v_pk_add_f32 {vr(U,2)}, {vr(U,2)}, {vr(B_,2)}
        v_pk_add_f32 {vr(U+2,2)}, {vr(U+2,2)}, {vr(B_+2,2)}
        v_cvt_pk_bf16_f32 v{U+4+2*k}, v{U}, v{U+1}
        v_cvt_pk_bf16_f32 v{U+5+2*k}, v{U+2}, v{U+3}
        buffer_store_dwordx2 {vr(U+4+2*k,2)}, v{VX+6}, {sq(SRD_OUT)}, 0 offen offset:{1024*k}
        """)
    mk('fin')

KNAME = "parallel_sum__ssm_conv_s4d__mixer_channel_mlp__prompt_kernel"
CFG = dict(nb0=30)

def p2_bases(a):
    t = S_T
    a.e(f"""
    s_lshr_b32 s{t+1}, s2, 5
    s_lshl_b32 s{t+1}, s{t+1}, 7
    s_mul_i32 s80, s3, 43
    s_add_u32 s80, s80, 5
    s_lshr_b32 s80, s80, 3
    s_lshl_b32 s80, s80, 15
    s_add_u32 s80, s80, s{t+1}
    s_mul_i32 s81, s3, {W2_STAGE}
    s_add_u32 s81, s81, {LDS_W2}
    """)

def kernel_fused(stamp=None):
    a = Asm()
    sg = Stamps(a, stamp == 'g', base=84); sh = Stamps(a, stamp == 'h', base=84)
    both = Stamps(a, stamp is not None, base=84)
    both.mark('start')
    if CFG.get('rt'): a.e("s_memrealtime s[96:97]")
    prologue(a, 256, "L_end")
    g1_map(a)
    a.e("s_waitcnt lgkmcnt(0)")
    both.mark('karg')
    sg.n = sh.n = both.n; sg.names = list(both.names); sh.names = list(both.names)
    a.e("s_cmp_ge_u32 s3, 4")
    a.e("s_cbranch_scc1 L_helper")
    make_srd(a, SRD_X, S_X, 2097152)
    make_srd(a, SRD_W, S_W1, 1409024)
    make_srd(a, SRD_WS, S_WS, WS_SIZE)
    make_srd(a, SRD_OUT, S_OUT, 2097152)
    a.e("s_barrier")
    x_dma16(a, 1)
    w1_lane_setup(a, AF1, AF1+4)
    w1_issue(a, 0, AF1, 3)
    gemm_wave_setup(a)
    a.e(f"""
    v_mov_b32 v1, {LDS_CNT}
    v_lshl_add_u32 v1, v0, 2, v1
    v_mov_b32 v2, 0
    v_cmp_gt_u32 vcc, 8, v0
    s_and_saveexec_b64 s[{S_EX}:{S_EX+1}], vcc
    ds_write_b32 v1, v2
    s_mov_b64 exec, s[{S_EX}:{S_EX+1}]
    s_waitcnt lgkmcnt(0)
    s_waitcnt vmcnt(6)
    """)
    sg.mark('xland')
    a.e("s_barrier")
    sg.mark('B0')
    w1_issue(a, 1, AF1, 3)
    gemm_load_x(a)
    sg.mark('xfrag')
    gemm_stats_xn(a)
    a.e("s_waitcnt vmcnt(6)")
    sg.mark('xn')
    a.e("s_barrier")
    for l in a_reads(0, AF0): a.e(l)
    gemm_xn_store(a)
    a.e("s_waitcnt vmcnt(2)")
    a.e(f"s_cmp_eq_u32 s{S_LH}, 1")
    a.e("s_cbranch_scc1 L_gl1")
    for lh in range(2):
        if lh == 1: a.label("L_gl1")
        for st in range(8):
            if st == 2: a.e("s_waitcnt vmcnt(0)")
            if lh == 0 and st in (4,5,6): sg.mark(f'A{st}')
            a.e("s_barrier")
            if lh == 0 and st in (0,4,5,6): sg.mark(f'S{st}')
            gemm_stage(a, st, lh)
        cs_write(a, lh)
        if lh == 0: a.e("s_branch L_gdone")
    a.label("L_gdone")
    a.e("s_barrier")
    sg.mark('E0')
    if CFG.get('dbgcs'):
        a.e(f"""
        v_lshlrev_b32 v1, 2, v0
        v_add_u32 v2, {LDS_CS}, v1
        ds_read_b32 v20, v2
        ds_read_b32 v21, v2 offset:256
        ds_read_b32 v22, v2 offset:512
        v_add_u32 v2, {LDS_STATS}, v1
        ds_read_b32 v23, v2
        ds_read_b32 v24, v2 offset:256
        ds_read_b32 v25, v2 offset:512
        ds_read_b32 v26, v2 offset:768
        s_lshl_b32 s62, s2, 11
        s_add_u32 s62, s62, 0xE00000
        s_waitcnt lgkmcnt(0)
        buffer_store_dword v20, v1, {sq(SRD_WS)}, s62 offen
        buffer_store_dword v21, v1, {sq(SRD_WS)}, s62 offen offset:256
        buffer_store_dword v22, v1, {sq(SRD_WS)}, s62 offen offset:512
        buffer_store_dword v23, v1, {sq(SRD_WS)}, s62 offen offset:1024
        buffer_store_dword v24, v1, {sq(SRD_WS)}, s62 offen offset:1280
        buffer_store_dword v25, v1, {sq(SRD_WS)}, s62 offen offset:1536
        buffer_store_dword v26, v1, {sq(SRD_WS)}, s62 offen offset:1792
        s_waitcnt vmcnt(0)
        """)
    if not CFG.get('noprio'): a.e("s_setprio 2")
    make_srd(a, SRD_W, S_W2, 1409024)
    read_nonce_lds(a, 1)
    p2_bases(a)
    w2_dma_lane(a, 18, 1)
    if CFG.get('nodma'):
        for g in w2_dma_list([0,1,2], 18, 80, 81):
            for l in g: a.e(l)
        gemm_epilogue2(a, [])
    elif CFG.get('skipfirst'):
        gs = w2_dma_list([0,1,2], 18, 80, 81)
        for g in gs[:3]:
            for l in g: a.e(l)
        gemm_epilogue2(a, gs[3:])
    else:
        gemm_epilogue2(a, w2_dma_list([0,1,2], 18, 80, 81))
    sg.mark('epi')
    a.e("s_waitcnt vmcnt(0)")
    t = S_T
    a.e(f"""
    s_lshl_b32 s{t}, s{S_RT}, 3
    s_add_u32 s{t}, s{t}, s{S_CT}
    s_lshl_b32 s{t}, s{t}, 6
    s_add_u32 s{t}, s{t}, {FB_OFF}
    """)
    lds_arrive_signal(a, 4, 4, t, 1)
    a.e("s_setprio 0")
    sg.mark('sigB')
    a.e(f"v_mov_b32 v{VD2}, v18")
    g2_map(a)
    a.e("s_branch L_tail")
    a.label("L_helper")
    a.e(f"s_sub_u32 s{S_HW}, s3, 4")
    V = kgen.kgen_vmap(8)
    a.e(f"""
    s_lshr_b32 s{S_T}, s{S_HW}, 1
    s_lshl_b32 s{S_KC}, s2, 1
    s_add_u32 s{S_KC}, s{S_KC}, s{S_T}
    s_and_b32 s{S_KNH}, s{S_HW}, 1
    """)
    kgen.kgen_load(a, V, S_KC, S_KNH, S_T)
    a.e(f"""
    s_lshl_b32 s{S_T}, s{S_HW}, 6
    v_add_u32 v145, s{S_T}, v0
    s_lshl_b32 s{S_T+1}, s{S_P}, 5
    v_add_u32 v146, s{S_T+1}, v145
    v_min_u32 v146, 1375, v146
    v_lshlrev_b32 v146, 1, v146
    global_load_ushort v146, v146, {sp(S_B1)}
    s_lshl_b32 s{S_T}, s{S_KC}, 1
    v_mov_b32 v147, s{S_T}
    global_load_ushort v147, v147, {sp(S_DSK)}
    """)
    a.e("s_barrier")
    make_srd(a, SRD_X, S_X, 2097152)
    make_srd(a, SRD_W, S_W1, 1409024)
    make_srd(a, SRD_WS, S_WS, WS_SIZE)
    make_srd(a, SRD_OUT, S_OUT, 2097152)
    Ln = a.newlabel("Lnn")
    a.e(f"""
    s_mul_i32 s{S_KTAB}, s{S_HW}, {KG_TAB}
    s_add_u32 s{S_KTAB}, s{S_KTAB}, {LDS_KG}
    s_cmp_lg_u32 s2, 0
    s_cbranch_scc1 {Ln}
    s_cmp_lg_u32 s3, 4
    s_cbranch_scc1 {Ln}
    s_memrealtime s[{S_T}:{S_T+1}]
    s_waitcnt lgkmcnt(0)
    s_or_b32 s{S_T}, s{S_T}, 1
    v_mov_b32 v1, s{S_T}
    v_mov_b32 v2, 0
    s_mov_b64 s[{S_EX}:{S_EX+1}], exec
    s_mov_b64 exec, 1
    global_store_dword v2, v1, {sp(S_DBG)} sc1
    s_mov_b64 exec, s[{S_EX}:{S_EX+1}]
    """)
    a.label(Ln)
    kgen.kgen_addr_setup(a, V, S_KTAB)
    w1_lane_setup(a, 232, 236)
    a.e("s_waitcnt vmcnt(0)")
    sh.mark('par')
    ch = kgen.kgen_chunks(V, S_KK, V['wr'])[:-1]
    nb0 = CFG['nb0']
    for f in ch[:nb0]: f(a)
    sh.mark('kgA')
    a.e("s_barrier")
    Ln2 = a.newlabel("Lnn")
    a.e(f"""
    s_cmp_lg_u32 s3, 4
    s_cbranch_scc1 {Ln2}
    v_mov_b32 v1, 0
    global_load_dword v2, v1, {sp(S_DBG)} sc1
    """)
    a.label(Ln2)
    for f in ch[nb0:]: f(a)
    kgen.kgen_x_write(a, V, S_KNH, S_KTAB)
    a.e(f"""
    v_lshlrev_b32 v146, 16, v146
    v_lshlrev_b32 v144, 2, v145
    v_add_u32 v144, {LDS_B1}, v144
    v_cmp_gt_u32 vcc, 192, v145
    s_and_saveexec_b64 s[{S_EX}:{S_EX+1}], vcc
    ds_write_b32 v144, v146
    s_mov_b64 exec, s[{S_EX}:{S_EX+1}]
    v_lshlrev_b32 v147, 16, v147
    v_readfirstlane_b32 s35, v147
    """)
    Ln3 = a.newlabel("Lnn"); Lp = a.newlabel("Lnp"); Lq = a.newlabel("Lnq")
    a.e(f"""
    s_cmp_lg_u32 s3, 4
    s_cbranch_scc1 {Ln3}
    s_mov_b32 s{S_SPIN}, 200000
    """)
    a.label(Lp)
    a.e(f"""
    s_waitcnt vmcnt(0)
    v_readfirstlane_b32 s{S_T}, v2
    s_cmp_lg_u32 s{S_T}, 0
    s_cbranch_scc1 {Lq}
    s_sub_u32 s{S_SPIN}, s{S_SPIN}, 1
    s_cmp_eq_u32 s{S_SPIN}, 0
    s_cbranch_scc1 {Lq}
    s_sleep 2
    v_mov_b32 v1, 0
    global_load_dword v2, v1, {sp(S_DBG)} sc1
    s_branch {Lp}
    """)
    a.label(Lq)
    a.e(f"""
    v_mov_b32 v1, {LDS_CNT+32}
    ds_write_b32 v1, v2
    """)
    a.label(Ln3)
    a.e("s_waitcnt lgkmcnt(0)")
    sh.mark('kgB')
    a.e("s_barrier")
    w1_issue(a, 2, 232, S_HW)
    w1_issue(a, 3, 232, S_HW)
    read_nonce_lds(a, 1)
    a.e(f"""
    s_lshr_b32 s{S_T}, s{S_HW}, 1
    s_mul_i32 s82, s{S_T}, 4224
    s_add_u32 s82, s82, {LDS_FB + 16}
    """)
    kgen.kgen_x_finish(a, V, S_KNH, S_KTAB, 82, S_T+2)
    sh.mark('kgC')
    a.e("s_barrier")
    a.e(f"""
    s_lshl_b32 s{S_T}, s{S_KNH}, 6
    v_add_u32 v8, s{S_T}, v0
    s_lshr_b32 s{S_T}, s{S_HW}, 1
    s_mul_i32 s83, s{S_T}, {KC_CH}
    s_add_u32 s83, s83, {LDS_KG}
    """)
    if CFG.get('dbgfb'):
        a.e(f"""
        s_mul_i32 s62, s2, 8448
        s_add_u32 s62, s62, 0xC00000
        s_lshl_b32 s63, s{S_HW}, 8
        v_lshl_add_u32 v60, v0, 2, s63
        """)
        for it in range(9):
            a.e(f"""
            v_add_u32 v61, {LDS_FB + 1024*it}, v60
            ds_read_b32 v62, v61
            v_add_u32 v61, {1024*it}, v60
            v_cmp_gt_u32 vcc, 8448, v61
            s_and_saveexec_b64 s[74:75], vcc
            s_waitcnt lgkmcnt(0)
            buffer_store_dword v62, v61, {sq(SRD_WS)}, s62 offen
            s_mov_b64 exec, s[74:75]
            """)
        a.e("s_waitcnt vmcnt(0)")
    kgen.k_copies(a, 12, 8, 82, 83, KC_COPY)
    sh.mark('kcp')
    a.e("s_waitcnt vmcnt(6)")
    a.e("s_barrier")
    w1_issue(a, 4, 232, S_HW)
    a.e("s_waitcnt vmcnt(6)")
    a.e("s_barrier")
    La = a.newlabel("Lsa")
    a.e(f"""
    s_cmp_lg_u32 s3, 4
    s_cbranch_scc1 {La}
    s_lshl_b32 s{S_T}, s{S_CT}, 5
    s_add_u32 s{S_T}, s{S_T}, s{S_RT}
    s_lshl_b32 s{S_T}, s{S_T}, 6
    s_add_u32 s{S_T}, s{S_T}, {FA_OFF}
    v_mov_b32 v1, 0
    v_mov_b32 v2, s{S_NONCE}
    s_mov_b64 s[{S_EX}:{S_EX+1}], exec
    s_mov_b64 exec, 1
    buffer_store_dword v2, v1, {sq(SRD_WS)}, s{S_T} offen sc1
    s_mov_b64 exec, s[{S_EX}:{S_EX+1}]
    """)
    a.label(La)
    w1_issue(a, 5, 232, S_HW)
    a.e("s_waitcnt vmcnt(6)")
    a.e("s_barrier")
    sh.mark('hS3')
    w1_issue(a, 6, 232, S_HW)
    sh.mark('hI6')
    a.e("s_waitcnt vmcnt(6)")
    sh.mark('hL5')
    a.e("s_barrier")
    sh.mark('hS4')
    w1_issue(a, 7, 232, S_HW)
    sh.mark('hI7')
    a.e("s_waitcnt vmcnt(6)")
    sh.mark('hL6')
    a.e("s_barrier")
    sh.mark('S5')
    a.e("s_waitcnt vmcnt(0)")
    a.e("s_barrier")
    C = conv.conv_vmap(8)
    u_load(a, C)
    a.e("s_waitcnt vmcnt(0)")
    u_write(a, C)
    sh.mark('uld')
    a.e("s_barrier")
    a.e(f"""
    s_lshr_b32 s{S_T}, s{S_HW}, 1
    s_mul_i32 s76, s{S_T}, {KC_CH}
    s_add_u32 s76, s76, {LDS_KG}
    s_mul_i32 s77, s{S_T}, {U_CH}
    s_add_u32 s77, s77, {LDS_U}
    s_and_b32 s78, s{S_HW}, 1
    """)
    conv.conv_addr_setup(a, C, 76, 77, 78, S_T)
    make_srd(a, SRD_W, S_W2, 1409024)
    p2_bases(a)
    w2_dma_lane(a, 232, 236)
    a.e("s_barrier")
    conv.conv_main(a, C, extra=w2_dma_list([0,1,2], 232, 80, 81))
    sh.mark('conv')
    a.e(f"""
    s_lshr_b32 s{S_T}, s{S_HW}, 1
    s_lshl_b32 s79, s2, 1
    s_add_u32 s79, s79, s{S_T}
    s_lshl_b32 s79, s79, 12
    s_add_u32 s79, s79, {WS_AOT}
    """)
    conv_exchange_epilogue(a, C, 77, 35, 79)
    a.e("s_waitcnt vmcnt(0)")
    a.e(f"""
    s_lshl_b32 s{S_T}, s2, 6
    s_add_u32 s{S_T}, s{S_T}, {FC_OFF}
    """)
    lds_arrive_signal(a, 8, 4, S_T, 1)
    sh.mark('sigC')
    a.e(f"v_mov_b32 v{VD2}, v232")
    g2_map(a)
    a.label("L_tail")
    tail = Stamps(a, stamp is not None, base=84)
    tail.n = (sg.n if stamp == 'g' else sh.n) if stamp else 0
    tail.names = list(sg.names if stamp == 'g' else sh.names)
    tail2(a, tail if stamp else None)
    a.e("s_waitcnt vmcnt(0)")
    if stamp: tail.dump()
    if CFG.get('rt'):
        a.e(f"""
        s_memrealtime s[98:99]
        s_waitcnt lgkmcnt(0)
        s_not_b32 s96, s96
        v_mov_b32 v1, s96
        v_mov_b32 v2, s98
        v_mov_b32 v3, 8
        s_mov_b64 exec, 1
        global_atomic_umax v3, v1, {sp(S_DBG)} sc1
        global_atomic_umax v3, v2, {sp(S_DBG)} offset:4 sc1
        s_waitcnt vmcnt(0)
        """)
    kernel_fused.names = tail.names
    a.label("L_end")
    a.e("s_endpgm")
    return (KNAME, a.text(), 256, 102)
```

```python
from fused2 import *
import fused2

CFG = fused2.CFG

def gemm_x_stats(a):
    t = S_T
    T = 28
    SA, QA, XS = 80, 84, 88
    a.e(f"""
    v_and_b32 v1, 15, v0
    v_lshrrev_b32 v2, 4, v0
    v_lshlrev_b32 v3, 10, v1
    s_lshl_b32 s{t}, s{S_LTA}, 14
    s_lshl_b32 s{t+1}, s{S_LTB}, 14
    """)
    for q in range(4):
        a.e(f"""
        v_add_u32 v14, {4*q}, v2
        v_xor_b32 v14, v14, v1
        v_lshl_add_u32 v14, v14, 4, v3
        v_add_u32 v{AF0+q}, s{t}, v14
        v_add_u32 v{AF0+4+q}, s{t+1}, v14
        """)
    R = lambda lt, s: f"ds_read_b128 {vr(xf(lt,s),4)}, v{AF0+4*lt+(s&3)} offset:{LDS_X + (s>>2)*256}"
    for s in range(12): a.e(R(0,s))
    a.e(f"""
    v_add_u32 v{T}, s{t}, v3
    s_sub_u32 s{t+2}, s{S_CT}, s{S_ROT}
    s_and_b32 s{t+2}, s{t+2}, 7
    s_lshl_b32 s{t+2}, s{t+2}, 3
    v_lshlrev_b32 v{T+1}, 1, v2
    v_add_u32 v{T+1}, s{t+2}, v{T+1}
    v_xor_b32 v{T+2}, v{T+1}, v1
    v_add_u32 v{T+1}, 1, v{T+1}
    v_xor_b32 v{T+3}, v{T+1}, v1
    v_lshl_add_u32 v{T+2}, v{T+2}, 4, v{T}
    v_lshl_add_u32 v{T+3}, v{T+3}, 4, v{T}
    s_waitcnt lgkmcnt(4)
    """)
    for s in range(12,16): a.e(R(0,s))
    a.e(f"ds_read_b128 {vr(XS,4)}, v{T+2} offset:{LDS_X}")
    a.e(f"ds_read_b128 {vr(XS+4,4)}, v{T+3} offset:{LDS_X}")
    def st(s):
        f = vr(xf(0,s),4)
        a.e(f"v_mfma_f32_16x16x32_bf16 {vr(SA,4)}, {vr(ONES,4)}, {f}, {'0' if s==0 else vr(SA,4)}")
        a.e(f"v_mfma_f32_16x16x32_bf16 {vr(QA,4)}, {f}, {f}, {'0' if s==0 else vr(QA,4)}")
    for s in range(4): st(s)
    a.e("s_waitcnt lgkmcnt(6)")
    for s in range(4,12): st(s); a.e(R(1,s-4))
    a.e("s_waitcnt lgkmcnt(10)")
    for s in range(12,16): st(s); a.e(R(1,s-4))
    a.e("s_waitcnt lgkmcnt(8)")
    for s in range(12,16): a.e(R(1,s))
    a.e(f"""
    v_and_b32 v{T+4}, 3, v0
    v_lshrrev_b32 v{T+6}, 2, v1
    v_lshl_add_u32 v{T+6}, v{T+6}, 4, v1
    v_lshlrev_b32 v{T+6}, 2, v{T+6}
    v_cmp_eq_u32 vcc, 1, v{T+4}
    v_cndmask_b32 v{T+5}, v{QA}, v{QA+1}, vcc
    v_cmp_eq_u32 vcc, 2, v{T+4}
    v_cndmask_b32 v{T+5}, v{T+5}, v{QA+2}, vcc
    v_cmp_eq_u32 vcc, 3, v{T+4}
    v_cndmask_b32 v{T+5}, v{T+5}, v{QA+3}, vcc
    ds_bpermute_b32 v{T+5}, v{T+6}, v{T+5}
    """)
    U = 44
    for i in range(8):
        a.e(f"v_lshlrev_b32 v{U+2*i}, 16, v{XS+i}")
        a.e(f"v_and_b32 v{U+2*i+1}, 0xffff0000, v{XS+i}")
    a.e("s_waitcnt lgkmcnt(0)")
    MN = 60
    ln_scalars(a, SA, T+5, MN, MN+1, MN+2, MN+3, T+6, T+7)
    a.e(f"""
    s_lshl_b32 s{t}, s{S_LTA}, 8
    s_add_u32 s{t}, s{t}, {LDS_STATS}
    v_lshl_add_u32 v{T+4}, v1, 4, s{t}
    v_cmp_gt_u32 vcc, 16, v0
    s_and_saveexec_b64 s[{S_EX}:{S_EX+1}], vcc
    ds_write_b64 v{T+4}, {vr(MN,2)}
    s_mov_b64 exec, s[{S_EX}:{S_EX+1}]
    v_lshrrev_b32 v{T+4}, 1, v1
    v_and_b32 v{T+4}, 3, v{T+4}
    v_xor_b32 v{T+4}, v{T+4}, v2
    v_lshlrev_b32 v{T+4}, 5, v{T+4}
    v_lshl_add_u32 v{T+4}, v1, 7, v{T+4}
    s_lshl_b32 s{t}, s{S_LTA}, 11
    s_add_u32 s{t}, s{t}, {LDS_XT}
    v_add_u32 v{T+4}, s{t}, v{T+4}
    """)
    for i in range(16): a.e(f"v_sub_f32 v{U+i}, v{U+i}, v{MN+2}")
    for i in range(8): a.e(f"v_cvt_pk_bf16_f32 v{XS+i}, v{U+2*i}, v{U+2*i+1}")
    for i in range(8):
        a.e(f"v_lshlrev_b32 v{U+2*i}, 16, v{XS+i}")
        a.e(f"v_and_b32 v{U+2*i+1}, 0xffff0000, v{XS+i}")
    for i in range(16): a.e(f"v_mul_f32 v{U+i}, v{U+i}, v{MN+3}")
    for i in range(8): a.e(f"v_cvt_pk_bf16_f32 v{XS+i}, v{U+2*i}, v{U+2*i+1}")
    a.e(f"ds_write_b128 v{T+4}, {vr(XS,4)}")
    a.e(f"ds_write_b128 v{T+4}, {vr(XS+4,4)} offset:16")
    a.e("s_waitcnt lgkmcnt(0)")

def w2_prefetch(a, vt, n):
    t = S_T
    a.e(f"""
    s_lshr_b32 s{t}, s2, 3
    s_mul_i32 s{t}, s{t}, {43*1024}
    v_lshlrev_b32 v{vt}, 7, v0
    """)
    a.e(f"""
    s_mov_b32 s64, s{S_W2}
    s_and_b32 s65, s{S_W2+1}, 0xffff
    s_mov_b32 s66, 1409024
    s_mov_b32 s67, 0x20000
    """)
    for i in range(6):
        a.e(f"s_add_u32 s{t+1}, s{t}, {i*8192}")
        a.e(f"buffer_load_dword v{vt+1+i}, v{vt}, s[64:67], s{t+1} offen")

def tail3(a, st_=None):
    t = S_T
    mk = (lambda n: st_.mark(n)) if st_ else (lambda n: None)
    w2_dma(a, [3,4], VD2, S_S0, S_DT)
    L6 = a.newlabel("Lno6")
    a.e(f"s_cmp_lt_u32 s{S_NS}, 6"); a.e(f"s_cbranch_scc1 {L6}")
    w2_dma(a, [5], VD2, S_S0, S_DT)
    a.label(L6)
    VX = 10
    a.e(f"""
    v_lshlrev_b32 v{VL2}, 4, v0
    s_mul_i32 s{S_HB}, s{S_RT2}, 43
    s_add_u32 s{S_HB}, s{S_HB}, s{S_S0}
    s_lshl_b32 s{S_HB}, s{S_HB}, 12
    s_add_u32 s{S_HB}, s{S_HB}, {WS_H}
    s_lshl_b32 s{t}, s{S_RT2}, 3
    s_add_u32 s{t}, s{t}, s3
    s_lshl_b32 s{t}, s{t}, 6
    s_add_u32 s78, s{t}, {FB_OFF}
    v_lshrrev_b32 v2, 4, v0
    v_lshrrev_b32 v3, 2, v0
    v_and_b32 v3, 3, v3
    v_and_b32 v1, 3, v0
    v_lshlrev_b32 v2, 5, v2
    v_lshl_add_u32 v2, v1, 3, v2
    v_lshl_add_u32 v3, v3, 12, v2
    s_lshl_b32 s{t}, s{S_RT2}, 16
    s_lshl_b32 s{t+1}, s{S_DT}, 7
    s_add_u32 s{t}, s{t}, s{t+1}
    s_lshr_b32 s{t+2}, s3, 1
    s_lshl_b32 s{t+2}, s{t+2}, 14
    s_add_u32 s{t}, s{t}, s{t+2}
    s_and_b32 s{t+2}, s3, 1
    s_lshl_b32 s{t+2}, s{t+2}, 11
    s_add_u32 s{t}, s{t}, s{t+2}
    v_add_u32 v3, s{t}, v3
    buffer_load_dwordx2 {vr(VX,2)}, v3, {sq(SRD_X)}, 0 offen
    buffer_load_dwordx2 {vr(VX+2,2)}, v3, {sq(SRD_X)}, 0 offen offset:1024
    v_add_u32 v2, s{t+1}, v2
    global_load_dwordx2 {vr(VX+4,2)}, v2, {sp(S_B2)}
    v_mov_b32 v1, 0
    """)
    poll_flags(a, 1, 1, 78, 2)
    mk('hflag')
    for s in range(5): h_load(a, s, VL2)
    w2_read(a, [3,4,5], VA2)
    a.e(f"""
    s_lshr_b32 s{t+1}, s3, 1
    s_lshl_b32 s{t}, s{S_DT}, 5
    s_lshl_b32 s{t+2}, s{t+1}, 3
    s_add_u32 s{t}, s{t}, s{t+2}
    s_lshl_b32 s{t}, s{t}, 6
    s_add_u32 s78, s{t}, {FC_OFF}
    v_lshlrev_b32 v1, 6, v0
    """)
    for s in range(5):
        a.e(f"s_waitcnt vmcnt({4*(4-s)})")
        g2_mfma(a, s)
    L6 = a.newlabel("Lno6")
    a.e(f"s_cmp_lt_u32 s{S_NS}, 6"); a.e(f"s_cbranch_scc1 {L6}")
    h_load(a, 5, VL2)
    a.e("s_waitcnt vmcnt(0)")
    g2_mfma(a, 5)
    a.label(L6)
    mk('g2mm')
    poll_flags(a, 8, 1, 78, 2)
    a.e(f"""
    v_and_b32 v1, 15, v0
    v_lshlrev_b32 v1, 12, v1
    v_lshrrev_b32 v2, 4, v0
    v_lshl_add_u32 v1, v2, 3, v1
    s_lshr_b32 s{t+1}, s3, 1
    s_lshl_b32 s{t}, s{S_DT}, 2
    s_add_u32 s{t}, s{t}, s{t+1}
    s_lshl_b32 s{t}, s{t}, 16
    s_lshl_b32 s{t+2}, s{S_RT2}, 7
    s_add_u32 s{t}, s{t}, s{t+2}
    s_and_b32 s{t+2}, s3, 1
    s_lshl_b32 s{t+2}, s{t+2}, 6
    s_add_u32 s{t}, s{t}, s{t+2}
    s_add_u32 s{t}, s{t}, {WS_AOT}
    buffer_load_dwordx2 v[16:17], v1, {sq(SRD_WS)}, s{t} offen sc1
    buffer_load_dwordx2 v[18:19], v1, {sq(SRD_WS)}, s{t} offen offset:32 sc1
    s_waitcnt vmcnt(0)
    v_lshlrev_b32 v24, 16, v16
    v_and_b32 v25, 0xffff0000, v16
    v_lshlrev_b32 v26, 16, v17
    v_and_b32 v27, 0xffff0000, v17
    v_lshlrev_b32 v28, 16, v18
    v_and_b32 v29, 0xffff0000, v18
    v_lshlrev_b32 v30, 16, v19
    v_and_b32 v31, 0xffff0000, v19
    """)
    Ld = a.newlabel("Laod")
    for w in range(8):
        Ln = a.newlabel("Laon")
        a.e(f"s_cmp_lg_u32 s3, {w}"); a.e(f"s_cbranch_scc1 {Ln}")
        for k in range(2):
            A_ = acc2(2*(w&1)+k, w>>1)
            for i in range(4): a.e(f"v_add_f32 v{A_+i}, v{A_+i}, v{24+4*k+i}")
        a.e(f"s_branch {Ld}")
        a.label(Ln)
    a.label(Ld)
    mk('ao')
    a.e("s_barrier")
    a.e(f"s_lshl_b32 s{t}, s3, 8")
    a.e(f"s_mov_b32 m0, s{t}")
    for idx in range(32):
        a.e(f"ds_write_addtid_b32 v{ACC2+idx} offset:{2048*idx}")
    a.e(f"s_add_u32 m0, s{t}, 63740")
    for idx in range(32, 64):
        a.e(f"ds_write_addtid_b32 v{ACC2+idx} offset:{2048*idx - 63740}")
    a.e("s_waitcnt lgkmcnt(0)")
    mk('pw')
    a.e("s_barrier")
    a.e(f"""
    v_lshrrev_b32 v2, 4, v0
    v_lshlrev_b32 v2, 13, v2
    v_and_b32 v1, 15, v0
    v_lshl_add_u32 v2, v1, 4, v2
    s_lshr_b32 s{t}, s3, 1
    s_lshl_b32 s{t}, s{t}, 15
    s_and_b32 s{t+1}, s3, 1
    s_lshl_b32 s{t+1}, s{t+1}, 12
    s_add_u32 s{t}, s{t}, s{t+1}
    v_add_u32 v2, s{t}, v2
    """)
    T = ACC2
    for k in range(2):
        for w in range(8):
            a.e(f"ds_read_b128 {vr(T+32*k+4*w,4)}, v2 offset:{2048*k + 256*w}")
        if k == 0: a.e("s_waitcnt lgkmcnt(4)")
    U = 24
    a.e(f"""
    v_lshlrev_b32 v{U+8}, 16, v{VX+4}
    v_and_b32 v{U+9}, 0xffff0000, v{VX+4}
    v_lshlrev_b32 v{U+10}, 16, v{VX+5}
    v_and_b32 v{U+11}, 0xffff0000, v{VX+5}
    """)
    for k in range(2):
        a.e(f"s_waitcnt lgkmcnt({8 if k == 0 else 0})")
        B_ = T + 32*k
        for step in (4,2,1):
            for w in range(step):
                for e in (0,2):
                    a.e(f"v_pk_add_f32 {vr(B_+4*w+e,2)}, {vr(B_+4*w+e,2)}, {vr(B_+4*(w+step)+e,2)}")
        a.e(f"""
        v_lshlrev_b32 v{U}, 16, v{VX+2*k}
        v_and_b32 v{U+1}, 0xffff0000, v{VX+2*k}
        v_lshlrev_b32 v{U+2}, 16, v{VX+2*k+1}
        v_and_b32 v{U+3}, 0xffff0000, v{VX+2*k+1}
        v_pk_add_f32 {vr(U,2)}, {vr(U,2)}, {vr(U+8,2)}
        v_pk_add_f32 {vr(U+2,2)}, {vr(U+2,2)}, {vr(U+10,2)}
        v_pk_add_f32 {vr(U,2)}, {vr(U,2)}, {vr(B_,2)}
        v_pk_add_f32 {vr(U+2,2)}, {vr(U+2,2)}, {vr(B_+2,2)}
        v_cvt_pk_bf16_f32 v{U+4+2*k}, v{U}, v{U+1}
        v_cvt_pk_bf16_f32 v{U+5+2*k}, v{U+2}, v{U+3}
        buffer_store_dwordx2 {vr(U+4+2*k,2)}, v3, {sq(SRD_OUT)}, 0 offen offset:{1024*k}
        """)
    mk('fin')

def kernel_fused(stamp=None):
    a = Asm()
    sg = Stamps(a, stamp == 'g', base=84); sh = Stamps(a, stamp == 'h', base=84)
    both = Stamps(a, stamp is not None, base=84)
    both.mark('start')
    prologue(a, 256, "L_end")
    g1_map(a)
    a.e("s_waitcnt lgkmcnt(0)")
    both.mark('karg')
    sg.n = sh.n = both.n; sg.names = list(both.names); sh.names = list(both.names)
    a.e("s_cmp_ge_u32 s3, 4")
    a.e("s_cbranch_scc1 L_helper")
    make_srd(a, SRD_X, S_X, 2097152)
    x_dma16(a, 1)
    make_srd(a, SRD_W, S_W1, 1409024)
    make_srd(a, SRD_WS, S_WS, WS_SIZE)
    make_srd(a, SRD_OUT, S_OUT, 2097152)
    w1_lane_setup(a, AF1, AF1+4)
    w1_issue(a, 0, AF1, 3)
    gemm_wave_setup(a)
    a.e(f"""
    v_mov_b32 v1, {LDS_CNT}
    v_lshl_add_u32 v1, v0, 2, v1
    v_mov_b32 v2, 0
    v_cmp_gt_u32 vcc, 8, v0
    s_and_saveexec_b64 s[{S_EX}:{S_EX+1}], vcc
    ds_write_b32 v1, v2
    s_mov_b64 exec, s[{S_EX}:{S_EX+1}]
    s_waitcnt lgkmcnt(0)
    s_waitcnt vmcnt(6)
    """)
    sg.mark('xland')
    a.e("s_barrier")
    sg.mark('B0')
    gemm_x_stats(a)
    a.e("s_waitcnt vmcnt(0)")
    sg.mark('xn')
    a.e("s_barrier")
    for l in a_reads(0, AF0): a.e(l)
    gemm_xn_store(a)
    a.e(f"s_cmp_eq_u32 s{S_LH}, 1")
    a.e("s_cbranch_scc1 L_gl1")
    for lh in range(2):
        if lh == 1: a.label("L_gl1")
        for st in range(8):
            if st == 2: a.e("s_waitcnt vmcnt(0)")
            a.e("s_barrier")
            if lh == 0 and st in (0,4): sg.mark(f'S{st}')
            gemm_stage(a, st, lh)
        cs_write(a, lh)
        if lh == 0: a.e("s_branch L_gdone")
    a.label("L_gdone")
    make_srd(a, SRD_W, S_W2, 1409024)
    read_nonce_lds(a, 1)
    p2_bases(a)
    w2_dma_lane(a, 18, 1)
    a.e("s_barrier")
    sg.mark('E0')
    a.e("s_setprio 2")
    gemm_epilogue2(a, w2_dma_list([0,1,2], 18, 80, 81))
    sg.mark('epi')
    t = S_T
    a.e(f"v_mov_b32 v{VD2}, v18")
    w2_read_lane(a, VA2, 1)
    Lw = a.newlabel("Lw"); Lw2 = a.newlabel("Lw")
    a.e(f"""
    s_mul_i32 s{t}, s{S_FH}, 3
    s_add_u32 s{t}, s{t}, 2
    s_cmp_ge_u32 s{t}, s{S_NP}
    s_cbranch_scc1 {Lw}
    s_waitcnt vmcnt(3)
    s_branch {Lw2}
    """)
    a.label(Lw); a.e("s_waitcnt vmcnt(1)"); a.label(Lw2)
    w2_read(a, [0,1,2], VA2)
    a.e("s_waitcnt vmcnt(0)")
    a.e(f"""
    s_lshl_b32 s{t}, s{S_RT}, 3
    s_add_u32 s{t}, s{t}, s{S_CT}
    s_lshl_b32 s{t}, s{t}, 6
    s_add_u32 s{t}, s{t}, {FB_OFF}
    """)
    lds_arrive_signal(a, 4, 4, t, 1)
    a.e("s_setprio 0")
    sg.mark('sigB')
    g2_map(a)
    a.e("s_branch L_tail")
    a.label("L_helper")
    a.e(f"s_sub_u32 s{S_HW}, s3, 4")
    V = kgen.kgen_vmap(8)
    a.e(f"""
    s_lshr_b32 s{S_T}, s{S_HW}, 1
    s_lshl_b32 s{S_KC}, s2, 1
    s_add_u32 s{S_KC}, s{S_KC}, s{S_T}
    s_and_b32 s{S_KNH}, s{S_HW}, 1
    """)
    kgen.kgen_load(a, V, S_KC, S_KNH, S_T)
    a.e(f"""
    s_lshl_b32 s{S_T}, s{S_HW}, 6
    v_add_u32 v145, s{S_T}, v0
    s_lshl_b32 s{S_T+1}, s{S_P}, 5
    v_add_u32 v146, s{S_T+1}, v145
    v_min_u32 v146, 1375, v146
    v_lshlrev_b32 v146, 1, v146
    global_load_ushort v146, v146, {sp(S_B1)}
    s_lshl_b32 s{S_T}, s{S_KC}, 1
    v_mov_b32 v147, s{S_T}
    global_load_ushort v147, v147, {sp(S_DSK)}
    """)
    make_srd(a, SRD_X, S_X, 2097152)
    make_srd(a, SRD_W, S_W1, 1409024)
    make_srd(a, SRD_WS, S_WS, WS_SIZE)
    make_srd(a, SRD_OUT, S_OUT, 2097152)
    Ln = a.newlabel("Lnn")
    a.e(f"""
    s_mul_i32 s{S_KTAB}, s{S_HW}, {KG_TAB}
    s_add_u32 s{S_KTAB}, s{S_KTAB}, {LDS_KG}
    s_cmp_lg_u32 s2, 0
    s_cbranch_scc1 {Ln}
    s_cmp_lg_u32 s3, 4
    s_cbranch_scc1 {Ln}
    s_memrealtime s[{S_T}:{S_T+1}]
    s_waitcnt lgkmcnt(0)
    s_or_b32 s{S_T}, s{S_T}, 1
    v_mov_b32 v1, s{S_T}
    v_mov_b32 v2, 0
    s_mov_b64 s[{S_EX}:{S_EX+1}], exec
    s_mov_b64 exec, 1
    global_store_dword v2, v1, {sp(S_DBG)} sc1
    s_mov_b64 exec, s[{S_EX}:{S_EX+1}]
    """)
    a.label(Ln)
    kgen.kgen_addr_setup(a, V, S_KTAB)
    w1_lane_setup(a, 232, 236)
    a.e(f"s_mov_b32 m0, s{S_KTAB}")
    a.e("s_waitcnt vmcnt(0)")
    sh.mark('par')
    ch = kgen.kgen_chunks(V, S_KK, None)[:-1]
    nb0 = CFG.get('nb0', 52)
    for f in ch[:nb0]: f(a)
    if nb0 >= len(ch): kgen.kgen_x_write(a, V, S_KNH, S_KTAB)
    sh.mark('kgA')
    a.e("s_barrier")
    w1_issue(a, 1, 232, S_HW)
    Ln2 = a.newlabel("Lnn")
    a.e(f"""
    s_cmp_lg_u32 s3, 4
    s_cbranch_scc1 {Ln2}
    v_mov_b32 v1, 0
    global_load_dword v2, v1, {sp(S_DBG)} sc1
    """)
    a.label(Ln2)
    if nb0 < len(ch):
        a.e(f"s_mov_b32 m0, s{S_KTAB}")
        for f in ch[nb0:]: f(a)
        kgen.kgen_x_write(a, V, S_KNH, S_KTAB)
    a.e(f"""
    v_lshlrev_b32 v146, 16, v146
    v_lshlrev_b32 v144, 2, v145
    v_add_u32 v144, {LDS_B1}, v144
    v_cmp_gt_u32 vcc, 192, v145
    s_and_saveexec_b64 s[{S_EX}:{S_EX+1}], vcc
    ds_write_b32 v144, v146
    s_mov_b64 exec, s[{S_EX}:{S_EX+1}]
    v_lshlrev_b32 v147, 16, v147
    v_readfirstlane_b32 s35, v147
    """)
    Ln3 = a.newlabel("Lnn"); Lp = a.newlabel("Lnp"); Lq = a.newlabel("Lnq")
    a.e(f"""
    s_cmp_lg_u32 s3, 4
    s_cbranch_scc1 {Ln3}
    s_mov_b32 s{S_SPIN}, 200000
    """)
    a.label(Lp)
    a.e(f"""
    s_waitcnt vmcnt(0)
    v_readfirstlane_b32 s{S_T}, v2
    s_cmp_lg_u32 s{S_T}, 0
    s_cbranch_scc1 {Lq}
    s_sub_u32 s{S_SPIN}, s{S_SPIN}, 1
    s_cmp_eq_u32 s{S_SPIN}, 0
    s_cbranch_scc1 {Lq}
    s_sleep 2
    v_mov_b32 v1, 0
    global_load_dword v2, v1, {sp(S_DBG)} sc1
    s_branch {Lp}
    """)
    a.label(Lq)
    a.e(f"""
    v_mov_b32 v1, {LDS_CNT+32}
    ds_write_b32 v1, v2
    """)
    a.label(Ln3)
    a.e("s_waitcnt lgkmcnt(0)")
    sh.mark('kgB')
    a.e("s_barrier")
    w1_issue(a, 2, 232, S_HW)
    w1_issue(a, 3, 232, S_HW)
    read_nonce_lds(a, 1)
    a.e("s_waitcnt vmcnt(12)")
    a.e("s_barrier")
    sh.mark('hS0')
    if CFG.get('w2pf', True):
        Lpf = a.newlabel("Lpf")
        a.e(f"s_cmp_lg_u32 s3, 7"); a.e(f"s_cbranch_scc1 {Lpf}")
        w2_prefetch(a, 150, 6)
        a.e("s_waitcnt vmcnt(12)")
        a.e(f"s_branch {Lpf}_j")
        a.label(Lpf)
        a.e("s_waitcnt vmcnt(6)")
        a.label(f"{Lpf}_j")
    else:
        a.e("s_waitcnt vmcnt(6)")
    a.e("s_barrier")
    w1_issue(a, 4, 232, S_HW)
    a.e("s_waitcnt vmcnt(6)" if not CFG.get('w2pf', True) else "s_waitcnt vmcnt(6)")
    a.e("s_barrier")
    La = a.newlabel("Lsa")
    a.e(f"""
    s_cmp_lg_u32 s3, 4
    s_cbranch_scc1 {La}
    s_lshl_b32 s{S_T}, s{S_CT}, 5
    s_add_u32 s{S_T}, s{S_T}, s{S_RT}
    s_lshl_b32 s{S_T}, s{S_T}, 6
    s_add_u32 s{S_T}, s{S_T}, {FA_OFF}
    v_mov_b32 v1, 0
    v_mov_b32 v2, s{S_NONCE}
    s_mov_b64 s[{S_EX}:{S_EX+1}], exec
    s_mov_b64 exec, 1
    buffer_store_dword v2, v1, {sq(SRD_WS)}, s{S_T} offen sc1
    s_mov_b64 exec, s[{S_EX}:{S_EX+1}]
    """)
    a.label(La)
    w1_issue(a, 5, 232, S_HW)
    a.e("s_waitcnt vmcnt(6)")
    a.e("s_barrier")
    w1_issue(a, 6, 232, S_HW)
    a.e("s_waitcnt vmcnt(6)")
    a.e("s_barrier")
    w1_issue(a, 7, 232, S_HW)
    a.e(f"""
    s_lshr_b32 s{S_T}, s{S_HW}, 1
    s_mul_i32 s80, s{S_T}, 4224
    s_add_u32 s80, s80, {LDS_FB + 16}
    """)
    kgen.kgen_x_finish(a, V, S_KNH, S_KTAB, 80, S_T+2)
    a.e("s_waitcnt vmcnt(6)")
    sh.mark('kgC')
    a.e("s_barrier")
    C = conv.conv_vmap(8)
    a.e(f"""
    v_lshlrev_b32 v60, 6, v0
    s_lshr_b32 s{S_T}, s2, 5
    s_lshl_b32 s{S_T}, s{S_T}, 11
    s_add_u32 s79, s{S_T}, {FA_OFF}
    s_lshl_b32 s{S_T}, s{S_KNH}, 6
    v_add_u32 v8, s{S_T}, v0
    s_lshr_b32 s{S_T}, s{S_HW}, 1
    s_mul_i32 s83, s{S_T}, {KC_CH}
    s_add_u32 s83, s83, {LDS_KG}
    """)
    kgen.k_copies(a, 12, 8, 80, 83, KC_COPY, rounds=(0,), tail=False)
    poll_flags(a, 32, 60, 79, 61)
    a.e(f"""
    s_lshr_b32 s{S_T+1}, s{S_HW}, 1
    s_lshl_b32 s{S_T+2}, s2, 1
    s_add_u32 s{S_T+2}, s{S_T+2}, s{S_T+1}
    s_lshl_b32 s{S_T+2}, s{S_T+2}, 12
    s_add_u32 s{S_T+2}, s{S_T+2}, {WS_XNT}
    v_lshlrev_b32 v62, 4, v8
    buffer_load_dwordx4 v[64:67], v62, {sq(SRD_WS)}, s{S_T+2} offen sc1
    buffer_load_dwordx4 v[68:71], v62, {sq(SRD_WS)}, s{S_T+2} offen offset:2048 sc1
    s_mul_i32 s{S_T+3}, s{S_T+1}, {U_CH}
    s_add_u32 s{S_T+3}, s{S_T+3}, {LDS_U}
    v_add_u32 v62, s{S_T+3}, v62
    """)
    sh.mark('upoll')
    a.e("s_barrier")
    kgen.k_copies(a, 12, 8, 80, 83, KC_COPY, rounds=(1,), tail=True)
    a.e(f"""
    v_mov_b32 v72, 0
    v_mov_b32 v73, 0
    v_mov_b32 v74, 0
    v_mov_b32 v75, 0
    v_cmp_gt_u32 vcc, 30, v8
    s_and_saveexec_b64 s[{S_EX}:{S_EX+1}], vcc
    ds_write_b128 v62, v[72:75]
    s_mov_b64 exec, s[{S_EX}:{S_EX+1}]
    s_waitcnt vmcnt(0)
    ds_write_b128 v62, v[64:67] offset:{U_PAD}
    ds_write_b128 v62, v[68:71] offset:{U_PAD+2048}
    s_waitcnt lgkmcnt(0)
    """)
    sh.mark('uld')
    a.e("s_barrier")
    a.e(f"""
    s_lshr_b32 s{S_T}, s{S_HW}, 1
    s_mul_i32 s76, s{S_T}, {KC_CH}
    s_add_u32 s76, s76, {LDS_KG}
    s_mul_i32 s77, s{S_T}, {U_CH}
    s_add_u32 s77, s77, {LDS_U}
    s_and_b32 s78, s{S_HW}, 1
    """)
    conv.conv_addr_setup(a, C, 76, 77, 78, S_T)
    make_srd(a, SRD_W, S_W2, 1409024)
    p2_bases(a)
    w2_dma_lane(a, 232, 236)
    a.e("s_barrier")
    conv.conv_main(a, C, extra=w2_dma_list([0,1,2], 232, 80, 81))
    sh.mark('conv')
    a.e(f"""
    s_lshr_b32 s{S_T}, s{S_HW}, 1
    s_lshl_b32 s79, s2, 1
    s_add_u32 s79, s79, s{S_T}
    s_lshl_b32 s79, s79, 12
    s_add_u32 s79, s79, {WS_AOT}
    """)
    conv_exchange_epilogue(a, C, 77, 35, 79)
    a.e(f"v_mov_b32 v{VD2}, v232")
    w2_read_lane(a, VA2, 1)
    a.e("s_waitcnt vmcnt(4)")
    w2_read(a, [0,1,2], VA2)
    a.e("s_waitcnt vmcnt(0)")
    a.e(f"""
    s_lshl_b32 s{S_T}, s2, 6
    s_add_u32 s{S_T}, s{S_T}, {FC_OFF}
    """)
    lds_arrive_signal(a, 8, 4, S_T, 1)
    sh.mark('sigC')
    g2_map(a)
    a.label("L_tail")
    tail = Stamps(a, stamp is not None, base=84)
    tail.n = (sg.n if stamp == 'g' else sh.n) if stamp else 0
    tail.names = list(sg.names if stamp == 'g' else sh.names)
    tail3(a, tail if stamp else None)
    a.e("s_waitcnt vmcnt(0)")
    if stamp: tail.dump()
    kernel_fused.names = tail.names
    a.label("L_end")
    a.e("s_endpgm")
    return (KNAME, a.text(), 256, 102)
```

```python
from common import *
import kgen, conv
from kgen import rbf, KG_TAB
from conv import KC_COPY, KC_CH, U_CH, U_PAD

LDS_KG = 0
LDS_X = 34816
W1_SLOT = [100352, 124928, 34816, 59392]
LDS_KR = 83968
LDS_STATS = 149504
LDS_CS = 150528
LDS_B1 = 151296
LDS_CNT = 152064
LDS_U = 152576
LDS_XT = LDS_U
LDS_W2 = 34816
LDS_RED = 133120
LDS_TOTAL = 161792
W2_STAGE = 12288

FA_OFF = 0x1000; FB_OFF = 0x8000; FC_OFF = 0x10000; FSTR = 64

C0 = -2.0*LOG2E*math.sqrt(2.0/math.pi)
C1 = C0*0.044715

S_NONCE=34
S_RT=52; S_CT=53; S_P=54; S_NP=55; S_ROT=56; S_LH=57; S_FH=58; S_LTA=59; S_LTB=60; S_HW=61
S_T=62
S_GC=70; S_ONE=72; S_EX=74
S_KC=76; S_KNH=77; S_KTAB=78; S_KK=79
S_RT2=52; S_DT=53; S_S0=54; S_NS=55
S_SPIN=82; S_HB=83

def g1_map(a):
    t = S_T
    a.e(f"""
    s_and_b32 s{t}, s2, 7
    s_lshr_b32 s{t+1}, s2, 3
    s_lshr_b32 s{S_RT}, s{t}, 1
    s_lshl_b32 s{S_RT}, s{S_RT}, 3
    s_and_b32 s{t+2}, s{t+1}, 7
    s_add_u32 s{S_RT}, s{S_RT}, s{t+2}
    s_and_b32 s{S_CT}, s{t}, 1
    s_lshl_b32 s{S_CT}, s{S_CT}, 2
    s_lshr_b32 s{t+2}, s{t+1}, 3
    s_add_u32 s{S_CT}, s{S_CT}, s{t+2}
    s_mul_i32 s{S_P}, s{S_CT}, 43
    s_add_u32 s{S_NP}, s{S_P}, 48
    s_add_u32 s{S_P}, s{S_P}, 5
    s_lshr_b32 s{S_P}, s{S_P}, 3
    s_lshr_b32 s{S_NP}, s{S_NP}, 3
    s_sub_u32 s{S_NP}, s{S_NP}, s{S_P}
    s_lshl_b32 s{S_ROT}, s{S_CT}, 1
    s_add_u32 s{S_ROT}, s{S_ROT}, s{S_RT}
    s_and_b32 s{S_ROT}, s{S_ROT}, 7
    """)

def x_dma16(a, vt):
    t = S_T
    a.e(f"""
    s_lshl_b32 s{t}, s{S_RT}, 16
    s_lshl_b32 s{t+1}, s3, 14
    s_add_u32 s{t}, s{t}, s{t+1}
    s_lshl_b32 s{t+3}, s{S_ROT}, 3
    """)
    for i in range(16):
        v = vt + (i & 1)
        a.e(f"""
        v_xor_b32 v{v}, {i}, v0
        v_add_u32 v{v}, s{t+3}, v{v}
        v_and_b32 v{v}, 63, v{v}
        v_lshlrev_b32 v{v}, 4, v{v}
        s_add_u32 m0, s{t+1}, {LDS_X + i*1024}
        s_add_u32 s{t+5}, s{t}, {i*1024}
        buffer_load_dwordx4 v{v}, {sq(SRD_X)}, s{t+5} offen lds
        """)

def w1_lane_setup(a, vp, vt):
    for p in range(3):
        a.e(f"""
        v_add_u32 v{vt}, {64*p}, v0
        v_mul_u32_u24 v{vt+1}, 2731, v{vt}
        v_lshrrev_b32 v{vt+1}, 16, v{vt+1}
        v_mul_u32_u24 v{vt+2}, 24, v{vt+1}
        v_sub_u32 v{vt+2}, v{vt}, v{vt+2}
        v_lshrrev_b32 v{vt+3}, 1, v{vt+1}
        v_and_b32 v{vt+3}, 3, v{vt+3}
        v_lshlrev_b32 v{vt+3}, 1, v{vt+3}
        v_xor_b32 v{vt+2}, v{vt+2}, v{vt+3}
        v_lshrrev_b32 v{vt+3}, 2, v{vt+1}
        v_lshlrev_b32 v{vt+3}, 3, v{vt+3}
        v_and_b32 v{vt+1}, 3, v{vt+1}
        v_add_u32 v{vt+1}, v{vt+1}, v{vt+3}
        v_mul_u32_u24 v{vt+1}, 2752, v{vt+1}
        v_lshl_add_u32 v{vp+p}, v{vt+2}, 4, v{vt+1}
        """)

def w1_issue(a, st, vp, sW):
    slot = W1_SLOT[st % 4]
    t = S_T
    a.e(f"""
    s_add_u32 s{t}, s{S_ROT}, {st}
    s_and_b32 s{t}, s{t}, 7
    s_lshl_b32 s{t}, s{t}, 6
    s_lshr_b32 s{t+1}, s{sW}, 1
    s_lshl_b32 s{t+1}, s{t+1}, 5
    s_add_u32 s{t}, s{t}, s{t+1}
    s_and_b32 s{t+1}, s{sW}, 1
    s_lshl_b32 s{t+1}, s{t+1}, 2
    s_add_u32 s{t}, s{t}, s{t+1}
    s_mul_i32 s{t}, s{t}, 2752
    s_lshl_b32 s{t+1}, s{S_P}, 6
    s_add_u32 s{t}, s{t}, s{t+1}
    s_mul_i32 s{t+2}, s{sW}, 6144
    """)
    for gg in range(2):
        if gg == 1: a.e(f"s_add_u32 s{t}, s{t}, {16*2752}")
        for p in range(3):
            a.e(f"s_add_u32 m0, s{t+2}, {slot + (gg*3+p)*1024}")
            a.e(f"buffer_load_dwordx4 v{vp+p}, {sq(SRD_W)}, s{t} offen lds")

XF = 128; ACC = 80; CSA = 68; AF0 = 20; AF1 = 44; ADR = 8; ONES = 4
def xf(lt, s): return XF + 64*lt + 4*s
def acc(f, lt): return ACC + (2*f + lt)*4

def gemm_wave_setup(a):
    t = S_T
    a.e(f"""
    s_and_b32 s{S_LH}, s3, 1
    s_lshr_b32 s{S_FH}, s3, 1
    s_lshl_b32 s{S_LTA}, s{S_LH}, 1
    s_add_u32 s{S_LTB}, s{S_LTA}, 1
    s_sub_u32 s{S_LTB}, s{S_LTB}, s{S_FH}
    s_add_u32 s{S_LTA}, s{S_LTA}, s{S_FH}
    s_mov_b32 s{S_GC}, {hx(C0)}
    s_mov_b32 s{S_GC+1}, {hx(C1)}
    s_mov_b32 s{S_ONE}, 1.0
    s_mov_b32 s{S_ONE+1}, 1.0
    v_lshrrev_b32 v1, 2, v0
    v_mul_u32_u24 v2, 384, v1
    v_and_b32 v3, 3, v0
    v_lshl_add_u32 v2, v3, 3, v2
    v_lshrrev_b32 v3, 1, v1
    v_and_b32 v3, 3, v3
    s_mul_i32 s{t}, s{S_FH}, 6
    """)
    for f in range(6):
        a.e(f"""
        s_add_u32 s{t+2}, s{t}, {f}
        v_xor_b32 v14, s{t+2}, v3
        v_lshl_add_u32 v{ADR+f}, v14, 5, v2
        v_add_u32 v{ADR+f}, {W1_SLOT[0]}, v{ADR+f}
        """)
    for i in range(4): a.e(f"v_mov_b32 v{ONES+i}, 0x3f803f80")

def gemm_load_x(a):
    t = S_T
    a.e(f"""
    v_and_b32 v1, 15, v0
    v_lshrrev_b32 v2, 4, v0
    v_lshlrev_b32 v3, 10, v1
    s_lshl_b32 s{t}, s{S_LTA}, 14
    s_lshl_b32 s{t+1}, s{S_LTB}, 14
    """)
    for q in range(4):
        a.e(f"""
        v_add_u32 v14, {4*q}, v2
        v_xor_b32 v14, v14, v1
        v_lshl_add_u32 v14, v14, 4, v3
        v_add_u32 v{AF0+q}, s{t}, v14
        v_add_u32 v{AF0+4+q}, s{t+1}, v14
        """)
    n = 0
    for lt in range(2):
        for s in range(16):
            a.e(f"ds_read_b128 {vr(xf(lt,s),4)}, v{AF0+4*lt+(s&3)} offset:{LDS_X + (s>>2)*256}")
            n += 1
            if n % 12 == 0: a.e("s_waitcnt lgkmcnt(4)")
    a.e("s_waitcnt lgkmcnt(0)")

def a_reads(sp_, buf):
    return [f"ds_read_b64_tr_b16 {vr(buf+4*f+2*h,2)}, v{ADR+f} offset:{(32*sp_+16*h)*384}" for f in range(6) for h in range(2)]

def gemm_stage(a, st, lh):
    cs_slots = [0,1,2] if lh == 0 else [3,4,5]
    def mm(sp_, buf):
        M = []
        s = 2*st + sp_
        for f in range(6):
            for lt in range(2):
                c = "0" if s == 0 else vr(acc(f,lt),4)
                M.append(f"v_mfma_f32_16x16x32_bf16 {vr(acc(f,lt),4)}, {vr(buf+4*f,4)}, {vr(xf(lt,s),4)}, {c}")
            if f in cs_slots:
                D = CSA + 4*cs_slots.index(f)
                c = "0" if s == 0 else vr(D,4)
                M.append(f"v_mfma_f32_16x16x32_bf16 {vr(D,4)}, {vr(buf+4*f,4)}, {vr(ONES,4)}, {c}")
        return M
    a.e("s_waitcnt lgkmcnt(0)")
    M = mm(0, AF0); L = a_reads(1, AF1)
    for i in range(len(M)):
        a.e(M[i])
        if i < len(L): a.e(L[i])
    a.e("s_waitcnt lgkmcnt(0)")
    M = mm(1, AF1); L = []
    if st < 7:
        d = W1_SLOT[(st+1)%4] - W1_SLOT[st%4]
        L = [f"v_add_u32 v{ADR+f}, {d & 0xffffffff:#x}, v{ADR+f}" for f in range(6)]
        R = a_reads(0, AF0)
        L = []
        for f in range(6):
            L.append(f"v_add_u32 v{ADR+f}, {d & 0xffffffff:#x}, v{ADR+f}")
            L.append(R[2*f]); L.append(R[2*f+1])
    li = 0
    for i in range(len(M)):
        a.e(M[i])
        for _ in range(2 if i < 3 else 1):
            if li < len(L): a.e(L[li]); li += 1
    while li < len(L): a.e(L[li]); li += 1

def cs_write(a, lh):
    t = S_T
    a.e(f"""
    v_lshrrev_b32 v1, 4, v0
    v_lshlrev_b32 v1, 4, v1
    s_mul_i32 s{t}, s{S_FH}, 384
    s_add_u32 s{t}, s{t}, {LDS_CS + (0 if lh == 0 else 192)}
    v_add_u32 v1, s{t}, v1
    v_and_b32 v2, 15, v0
    v_cmp_eq_u32 vcc, 0, v2
    s_and_saveexec_b64 s[{S_EX}:{S_EX+1}], vcc
    """)
    for i in range(3): a.e(f"ds_write_b128 v1, {vr(CSA+4*i,4)} offset:{64*i}")
    a.e(f"s_mov_b64 exec, s[{S_EX}:{S_EX+1}]")
    a.e("s_waitcnt lgkmcnt(0)")

def ln_scalars(a, S, Q, mean, r12, mbf, r1, t0, t1):
    a.e(f"""
    v_mul_f32 v{mean}, {hx(1/512)}, v{S}
    v_mul_f32 v{t0}, {hx(1/512)}, v{Q}
    v_fma_f32 v{t0}, -v{mean}, v{mean}, v{t0}
    v_max_f32 v{t0}, 0, v{t0}
    """)
    rbf(a, mbf, mean)
    rbf(a, t1, t0)
    a.e(f"v_add_f32 v{t1}, {hx(1e-5)}, v{t1}")
    rbf(a, t1, t1)
    a.e(f"v_sqrt_f32 v{t1}, v{t1}")
    rbf(a, t1, t1)
    a.e(f"v_rcp_f32 v{r1}, v{t1}")
    a.e(f"v_mul_f32 v{t0}, v{t0}, v{r1}")
    a.e(f"v_mul_f32 v{t0}, v{t0}, v{r1}")
    rbf(a, t0, t0)
    a.e(f"v_add_f32 v{t0}, {hx(1e-5)}, v{t0}")
    rbf(a, t0, t0)
    a.e(f"v_sqrt_f32 v{t0}, v{t0}")
    rbf(a, t0, t0)
    a.e(f"v_rcp_f32 v{t0}, v{t0}")
    a.e(f"v_mul_f32 v{r12}, v{r1}, v{t0}")

def gemm_epilogue(a, extra=None):
    t = S_T
    R = [14, 16]
    a.e(f"""
    v_and_b32 v1, 15, v0
    s_lshl_b32 s{t}, s{S_LTA}, 8
    s_add_u32 s{t}, s{t}, {LDS_STATS}
    v_lshl_add_u32 v2, v1, 4, s{t}
    ds_read_b64 v[20:21], v2
    s_lshl_b32 s{t}, s{S_LTB}, 8
    s_add_u32 s{t}, s{t}, {LDS_STATS}
    v_lshl_add_u32 v2, v1, 4, s{t}
    ds_read_b64 v[22:23], v2
    v_lshrrev_b32 v2, 4, v0
    v_lshlrev_b32 v2, 4, v2
    v_add_u32 v2, {LDS_CS}, v2
    s_mul_i32 s{t}, s{S_FH}, 384
    v_add_u32 v2, s{t}, v2
    v_lshlrev_b32 v3, 4, v0
    s_mul_i32 s{t+4}, s{S_RT}, {H_RT}
    s_add_u32 s{t+4}, s{t+4}, {WS_H}
    s_waitcnt lgkmcnt(0)
    v_mov_b32 v{R[0]}, v21
    v_mul_f32 v{R[0]+1}, v20, v21
    v_sub_f32 v{R[0]+1}, 0, v{R[0]+1}
    v_mov_b32 v{R[1]}, v23
    v_mul_f32 v{R[1]+1}, v22, v23
    v_sub_f32 v{R[1]+1}, 0, v{R[1]+1}
    """)
    CSr, B1r, TT, T2, OUT = 20, 28, 36, 44, 52
    for pp in range(3):
        for h in range(2):
            a.e(f"ds_read_b128 {vr(CSr+4*h,4)}, v2 offset:{128*pp + 64*h}")
            a.e(f"ds_read_b128 {vr(B1r+4*h,4)}, v2 offset:{LDS_B1 - LDS_CS + 128*pp + 64*h}")
        Lskip = a.newlabel("Lg1skip")
        a.e(f"""
        s_mul_i32 s{t}, s{S_FH}, 3
        s_add_u32 s{t}, s{t}, {pp}
        s_cmp_ge_u32 s{t}, s{S_NP}
        s_cbranch_scc1 {Lskip}
        s_add_u32 s{t+2}, s{t}, s{S_P}
        s_lshl_b32 s{t+2}, s{t+2}, 12
        s_add_u32 s{t+2}, s{t+2}, s{t+4}
        s_waitcnt lgkmcnt(0)
        """)
        for lt in range(2):
            items = [(h,q) for h in range(2) for q in range(2)]
            X = lambda h,q: acc(2*pp+h, lt) + 2*q
            k = lambda h,q: 2*(2*h+q)
            for (h,q) in items: a.e(f"v_pk_fma_f32 {vr(TT+k(h,q),2)}, {vr(CSr+4*h+2*q,2)}, {vr(R[lt],2)}, {vr(B1r+4*h+2*q,2)} op_sel:[0,1,0] op_sel_hi:[1,1,1]")
            for (h,q) in items: a.e(f"v_pk_fma_f32 {vr(X(h,q),2)}, {vr(X(h,q),2)}, {vr(R[lt],2)}, {vr(TT+k(h,q),2)} op_sel:[0,0,0] op_sel_hi:[1,0,1]")
            for (h,q) in items: a.e(f"v_pk_mul_f32 {vr(T2+k(h,q),2)}, {vr(X(h,q),2)}, {vr(X(h,q),2)}")
            for (h,q) in items: a.e(f"v_pk_fma_f32 {vr(T2+k(h,q),2)}, {vr(T2+k(h,q),2)}, s[{S_GC}:{S_GC+1}], s[{S_GC}:{S_GC+1}] op_sel:[0,1,0] op_sel_hi:[1,1,0]")
            for (h,q) in items: a.e(f"v_pk_mul_f32 {vr(T2+k(h,q),2)}, {vr(T2+k(h,q),2)}, {vr(X(h,q),2)}")
            for (h,q) in items:
                a.e(f"v_exp_f32 v{T2+k(h,q)}, v{T2+k(h,q)}"); a.e(f"v_exp_f32 v{T2+k(h,q)+1}, v{T2+k(h,q)+1}")
            for (h,q) in items: a.e(f"v_pk_add_f32 {vr(T2+k(h,q),2)}, {vr(T2+k(h,q),2)}, s[{S_ONE}:{S_ONE+1}]")
            for (h,q) in items:
                a.e(f"v_rcp_f32 v{T2+k(h,q)}, v{T2+k(h,q)}"); a.e(f"v_rcp_f32 v{T2+k(h,q)+1}, v{T2+k(h,q)+1}")
            for (h,q) in items: a.e(f"v_pk_mul_f32 {vr(X(h,q),2)}, {vr(X(h,q),2)}, {vr(T2+k(h,q),2)}")
            for (h,q) in items: a.e(f"v_cvt_pk_bf16_f32 v{OUT+4*lt+2*h+q}, v{X(h,q)}, v{X(h,q)+1}")
            sl = S_LTA if lt == 0 else S_LTB
            a.e(f"""
            s_lshl_b32 s{t+3}, s{sl}, 10
            s_add_u32 s{t+3}, s{t+3}, s{t+2}
            buffer_store_dwordx4 {vr(OUT+4*lt,4)}, v3, {sq(SRD_WS)}, s{t+3} offen sc1
            """)
        a.label(Lskip)
        a.e("s_waitcnt lgkmcnt(0)")

def lds_arrive_signal(a, cnt_off, nwaves, sFlagOff, vt):
    L = a.newlabel("Lsig")
    a.e(f"""
    v_mov_b32 v{vt}, {LDS_CNT + cnt_off}
    v_mov_b32 v{vt+1}, 1
    s_mov_b64 s[{S_EX}:{S_EX+1}], exec
    s_mov_b64 exec, 1
    ds_add_rtn_u32 v{vt+1}, v{vt}, v{vt+1}
    s_waitcnt lgkmcnt(0)
    v_readfirstlane_b32 s{S_T+6}, v{vt+1}
    s_cmp_lg_u32 s{S_T+6}, {nwaves-1}
    s_cbranch_scc1 {L}
    v_mov_b32 v{vt}, 0
    v_mov_b32 v{vt+1}, s{S_NONCE}
    buffer_store_dword v{vt+1}, v{vt}, {sq(SRD_WS)}, s{sFlagOff} offen sc1
    """)
    a.label(L)
    a.e(f"s_mov_b64 exec, s[{S_EX}:{S_EX+1}]")

def poll_flags(a, nl, vOff, sBase, vt):
    L = a.newlabel("Lpoll"); E = a.newlabel("Lpolld")
    a.e(f"""
    s_mov_b64 s[{S_EX}:{S_EX+1}], exec
    s_mov_b32 exec_lo, {hex((1<<nl)-1)}
    s_mov_b32 exec_hi, 0
    s_mov_b32 s{S_SPIN}, 200000
    """)
    a.label(L)
    a.e(f"""
    buffer_load_dword v{vt}, v{vOff}, {sq(SRD_WS)}, s{sBase} offen sc1
    s_waitcnt vmcnt(0)
    v_cmp_ne_u32 vcc, s{S_NONCE}, v{vt}
    s_nop 4
    s_cbranch_vccz {E}
    s_sub_u32 s{S_SPIN}, s{S_SPIN}, 1
    s_cmp_eq_u32 s{S_SPIN}, 0
    s_cbranch_scc1 {E}
    s_sleep 2
    s_branch {L}
    """)
    a.label(E)
    a.e(f"s_mov_b64 exec, s[{S_EX}:{S_EX+1}]")

def read_nonce_lds(a, vt):
    a.e(f"""
    v_mov_b32 v{vt}, {LDS_CNT + 32}
    ds_read_b32 v{vt}, v{vt}
    s_waitcnt lgkmcnt(0)
    v_readfirstlane_b32 s{S_NONCE}, v{vt}
    """)

HX = 160
def helper_stats_xn(a):
    t = S_T
    T = 140
    a.e(f"""
    v_and_b32 v{T}, 15, v0                    ; l'
    v_lshrrev_b32 v{T+1}, 4, v0               ; g
    v_lshlrev_b32 v{T+2}, 10, v{T}
    s_lshl_b32 s{t}, s{S_HW}, 14
    v_add_u32 v{T+2}, s{t}, v{T+2}            ; row*1024
    """)
    for q in range(4):
        a.e(f"""
        v_add_u32 v{T+3}, {4*q}, v{T+1}
        v_xor_b32 v{T+3}, v{T+3}, v{T}
        v_lshl_add_u32 v{T+4+q}, v{T+3}, 4, v{T+2}
        """)
    for s in range(16):
        a.e(f"ds_read_b128 {vr(HX+4*s,4)}, v{T+4+(s&3)} offset:{LDS_X + (s>>2)*256}")
        if s == 11: a.e("s_waitcnt lgkmcnt(4)")
    a.e(f"""
    s_sub_u32 s{t+1}, s{S_CT}, s{S_ROT}
    s_and_b32 s{t+1}, s{t+1}, 7
    s_lshl_b32 s{t+1}, s{t+1}, 3
    v_lshlrev_b32 v{T+3}, 1, v{T+1}
    v_add_u32 v{T+3}, s{t+1}, v{T+3}
    v_xor_b32 v{T+4}, v{T+3}, v{T}
    v_add_u32 v{T+3}, 1, v{T+3}
    v_xor_b32 v{T+5}, v{T+3}, v{T}
    v_lshl_add_u32 v{T+4}, v{T+4}, 4, v{T+2}
    v_lshl_add_u32 v{T+5}, v{T+5}, 4, v{T+2}
    """)
    ON = 236; SA = 148; QA = 152; XS = 224
    for i in range(4): a.e(f"v_mov_b32 v{ON+i}, 0x3f803f80")
    a.e(f"ds_read_b128 {vr(XS,4)}, v{T+4} offset:{LDS_X}")
    a.e(f"ds_read_b128 {vr(XS+4,4)}, v{T+5} offset:{LDS_X}")
    for s in range(16):
        if s == 0: a.e("s_waitcnt lgkmcnt(6)")
        if s == 12: a.e("s_waitcnt lgkmcnt(2)")
        f = vr(HX+4*s,4)
        a.e(f"v_mfma_f32_16x16x32_bf16 {vr(SA,4)}, {vr(ON,4)}, {f}, {'0' if s==0 else vr(SA,4)}")
        a.e(f"v_mfma_f32_16x16x32_bf16 {vr(QA,4)}, {f}, {f}, {'0' if s==0 else vr(QA,4)}")
    a.e(f"""
    v_and_b32 v{T+6}, 3, v0
    v_cmp_eq_u32 vcc, 1, v{T+6}
    v_cndmask_b32 v{T+7}, v{QA}, v{QA+1}, vcc
    v_cmp_eq_u32 vcc, 2, v{T+6}
    v_cndmask_b32 v{T+7}, v{T+7}, v{QA+2}, vcc
    v_cmp_eq_u32 vcc, 3, v{T+6}
    v_cndmask_b32 v{T+7}, v{T+7}, v{QA+3}, vcc
    v_lshrrev_b32 v{T+6}, 2, v{T}
    v_lshl_add_u32 v{T+6}, v{T+6}, 4, v{T}
    v_lshlrev_b32 v{T+6}, 2, v{T+6}
    ds_bpermute_b32 v{T+7}, v{T+6}, v{T+7}
    s_waitcnt lgkmcnt(0)
    """)
    MN = 156
    ln_scalars(a, SA, T+7, MN, MN+1, MN+2, MN+3, T+8, T+9)
    a.e(f"""
    s_lshl_b32 s{t}, s{S_HW}, 8
    s_add_u32 s{t}, s{t}, {LDS_STATS}
    v_lshl_add_u32 v{T+6}, v{T}, 4, s{t}
    v_cmp_gt_u32 vcc, 16, v0
    s_and_saveexec_b64 s[{S_EX}:{S_EX+1}], vcc
    ds_write_b128 v{T+6}, {vr(MN,4)}
    s_mov_b64 exec, s[{S_EX}:{S_EX+1}]
    """)
    a.e(f"""
    v_lshrrev_b32 v{T+6}, 1, v{T}
    v_and_b32 v{T+6}, 3, v{T+6}
    v_xor_b32 v{T+6}, v{T+6}, v{T+1}
    v_lshlrev_b32 v{T+6}, 5, v{T+6}
    v_lshl_add_u32 v{T+6}, v{T}, 7, v{T+6}
    s_lshl_b32 s{t}, s{S_HW}, 11
    s_add_u32 s{t}, s{t}, {LDS_XT}
    v_add_u32 v{T+6}, s{t}, v{T+6}
    """)
    for i in range(8):
        r = XS + i; u = T+8
        a.e(f"""
        v_lshlrev_b32 v{u}, 16, v{r}
        v_and_b32 v{u+1}, 0xffff0000, v{r}
        v_sub_f32 v{u}, v{u}, v{MN+2}
        v_sub_f32 v{u+1}, v{u+1}, v{MN+2}
        v_cvt_pk_bf16_f32 v{u}, v{u}, v{u+1}
        v_and_b32 v{u+1}, 0xffff0000, v{u}
        v_lshlrev_b32 v{u}, 16, v{u}
        v_mul_f32 v{u}, v{u}, v{MN+3}
        v_mul_f32 v{u+1}, v{u+1}, v{MN+3}
        v_cvt_pk_bf16_f32 v{r}, v{u}, v{u+1}
        """)
    a.e(f"ds_write_b128 v{T+6}, {vr(XS,4)}")
    a.e(f"ds_write_b128 v{T+6}, {vr(XS+4,4)} offset:16")

def xn_store(a):
    t = S_T; T = 140
    a.e(f"""
    v_lshrrev_b32 v{T}, 4, v0
    v_and_b32 v{T+1}, 15, v0
    v_lshrrev_b32 v{T+2}, 2, v{T+1}
    v_and_b32 v{T+3}, 3, v0
    v_lshl_add_u32 v{T+4}, v{T}, 3, v{T+2}
    v_lshlrev_b32 v{T+4}, 7, v{T+4}
    v_lshl_add_u32 v{T+4}, v{T+3}, 3, v{T+4}
    v_add_u32 v{T+4}, {LDS_XT}, v{T+4}
    v_lshrrev_b32 v{T+5}, 1, v{T+2}
    v_xor_b32 v{T+6}, s{S_HW}, v{T+5}
    v_lshl_add_u32 v{T+6}, v{T+6}, 5, v{T+4}
    v_add_u32 v{T+5}, 2, v{T+5}
    v_xor_b32 v{T+7}, s{S_HW}, v{T+5}
    v_lshl_add_u32 v{T+7}, v{T+7}, 5, v{T+4}
    """)
    XS = 224
    for half in range(2):
        a.e(f"ds_read_b64_tr_b16 {vr(XS+4*half,2)}, v{T+6} offset:{half*32*128}")
        a.e(f"ds_read_b64_tr_b16 {vr(XS+2+4*half,2)}, v{T+7} offset:{half*32*128 + 4*128}")
    a.e(f"""
    v_lshlrev_b32 v{T+8}, 12, v{T+1}
    v_lshl_add_u32 v{T+8}, v{T}, 4, v{T+8}
    s_lshl_b32 s{t}, s{S_CT}, 6
    s_lshl_b32 s{t+1}, s{S_HW}, 4
    s_add_u32 s{t}, s{t}, s{t+1}
    s_lshl_b32 s{t}, s{t}, 12
    s_lshl_b32 s{t+1}, s{S_RT}, 7
    s_add_u32 s{t}, s{t}, s{t+1}
    s_add_u32 s{t}, s{t}, {WS_XNT}
    s_waitcnt lgkmcnt(0)
    buffer_store_dwordx4 {vr(XS,4)}, v{T+8}, {sq(SRD_WS)}, s{t} offen sc1
    buffer_store_dwordx4 {vr(XS+4,4)}, v{T+8}, {sq(SRD_WS)}, s{t} offen offset:64 sc1
    """)

def gather_to_lds(a, G):
    t = S_T
    a.e(f"""
    s_and_b32 s{t}, s{S_HW}, 1
    s_lshl_b32 s{t}, s{t}, 6
    v_add_u32 v{G['tid']}, s{t}, v0
    s_lshr_b32 s{t+1}, s{S_HW}, 1
    s_mul_i32 s{t+2}, s{t+1}, {2*KG_TAB}
    s_add_u32 s{t+2}, s{t+2}, {LDS_KG}
    v_mov_b32 v{G['tab']}, s{t+2}
    s_mul_i32 s{t+3}, s{t+1}, {KR_STRIDE}
    s_add_u32 s{t+3}, s{t+3}, {LDS_KR}
    """)
    def st(a, rnd):
        a.e(f"""
        v_lshl_add_u32 v{G['off']}, v{G['ck']}, 4, s{t+3}
        v_cmp_gt_u32 vcc, 264, v{G['ck']}
        s_and_saveexec_b64 s[{S_EX}:{S_EX+1}], vcc
        ds_write_b128 v{G['off']}, {vr(G['o'],4)}
        s_mov_b64 exec, s[{S_EX}:{S_EX+1}]
        """)
    kgen.gather(a, G, G['tid'], G['tab'], 128, st)
    a.e("s_waitcnt lgkmcnt(0)")

def build_copies(a, C):
    t = S_T
    a.e(f"""
    s_and_b32 s{t}, s{S_HW}, 1
    s_lshl_b32 s{t}, s{t}, 6
    v_add_u32 v{C['tid']}, s{t}, v0
    s_lshr_b32 s{t+1}, s{S_HW}, 1
    s_mul_i32 s{t+2}, s{t+1}, {KC_CH}
    s_add_u32 s{t+2}, s{t+2}, {LDS_KG}
    v_mov_b32 v{C['ua']}, s{t+2}
    s_mul_i32 s{t+3}, s{t+1}, {KR_STRIDE}
    s_add_u32 s{t+3}, s{t+3}, {LDS_KR}
    """)
    def ld(a, rnd, d):
        a.e(f"""
        v_lshl_add_u32 v{C['wb']}, v{C['ck']}, 4, s{t+3}
        ds_read_b128 {vr(d,4)}, v{C['wb']}
        ds_read_b64 {vr(d+4,2)}, v{C['wb']} offset:16
        s_waitcnt lgkmcnt(0)
        """)
    conv.conv_build_copies(a, C, C['tid'], 128, C['ua'], ld)
    a.e("s_waitcnt lgkmcnt(0)")

def u_load(a, C):
    t = S_T
    a.e(f"""
    v_lshlrev_b32 v{C['t0']}, 6, v0              ; lane*64
    s_lshr_b32 s{t}, s2, 5
    s_lshl_b32 s{t}, s{t}, 11                    ; slice*32*64
    s_add_u32 s{t}, s{t}, {FA_OFF}
    """)
    poll_flags(a, 32, C['t0'], t, C['t1'])
    a.e(f"""
    s_lshr_b32 s{t+1}, s{S_HW}, 1
    s_lshl_b32 s{t+2}, s2, 1
    s_add_u32 s{t+2}, s{t+2}, s{t+1}             ; channel
    s_lshl_b32 s{t+2}, s{t+2}, 12
    s_add_u32 s{t+2}, s{t+2}, {WS_XNT}
    s_and_b32 s{t+3}, s{S_HW}, 1
    s_lshl_b32 s{t+3}, s{t+3}, 6
    v_add_u32 v{C['tid']}, s{t+3}, v0
    v_lshlrev_b32 v{C['t2']}, 4, v{C['tid']}
    buffer_load_dwordx4 {vr(C['B0'],4)}, v{C['t2']}, {sq(SRD_WS)}, s{t+2} offen sc1
    buffer_load_dwordx4 {vr(C['B0']+4,4)}, v{C['t2']}, {sq(SRD_WS)}, s{t+2} offen offset:2048 sc1
    s_mul_i32 s{t+3}, s{t+1}, {U_CH}
    s_add_u32 s{t+3}, s{t+3}, {LDS_U}
    v_add_u32 v{C['t3']}, s{t+3}, v{C['t2']}
    v_mov_b32 v{C['B1']}, 0
    v_mov_b32 v{C['B1']+1}, 0
    v_mov_b32 v{C['B1']+2}, 0
    v_mov_b32 v{C['B1']+3}, 0
    v_cmp_gt_u32 vcc, 30, v{C['tid']}
    s_and_saveexec_b64 s[{S_EX}:{S_EX+1}], vcc
    ds_write_b128 v{C['t3']}, {vr(C['B1'],4)}
    s_mov_b64 exec, s[{S_EX}:{S_EX+1}]
    """)
def u_write(a, C):
    a.e(f"""
    ds_write_b128 v{C['t3']}, {vr(C['B0'],4)} offset:{U_PAD}
    ds_write_b128 v{C['t3']}, {vr(C['B0']+4,4)} offset:{U_PAD+2048}
    s_waitcnt lgkmcnt(0)
    """)

def conv_exchange_epilogue(a, C, sU, sD, sOut):
    t = S_T
    Lh1 = a.newlabel("Lxh"); Lj = a.newlabel("Lxj"); Lsp = a.newlabel("Lxs"); Lsd = a.newlabel("Lxd")
    a.e(f"""
    s_lshl_b32 s{t}, s{S_HW}, 12
    s_add_u32 s{t}, s{t}, {LDS_RED}
    v_lshl_add_u32 v{C['t0']}, v0, 4, s{t}
    s_xor_b32 s{t+1}, s{S_HW}, 1
    s_lshl_b32 s{t+2}, s{t+1}, 12
    s_add_u32 s{t+2}, s{t+2}, {LDS_RED}
    v_lshl_add_u32 v{C['t1']}, v0, 4, s{t+2}
    s_and_b32 s{t+3}, s{S_HW}, 1
    s_cmp_eq_u32 s{t+3}, 1
    s_cbranch_scc1 {Lh1}
    """)
    for G in range(4,8): a.e(f"ds_write_b128 v{C['t0']}, {vr(C['acc']+4*G,4)} offset:{1024*(G-4)}")
    a.e(f"s_branch {Lj}")
    a.label(Lh1)
    for G in range(0,4): a.e(f"ds_write_b128 v{C['t0']}, {vr(C['acc']+4*G,4)} offset:{1024*G}")
    for i in range(16): a.e(f"v_mov_b32 v{C['acc']+i}, v{C['acc']+16+i}")
    a.label(Lj)
    a.e(f"""
    s_waitcnt lgkmcnt(0)
    s_lshl_b32 s{t+4}, s{S_HW}, 2
    s_add_u32 s{t+4}, s{t+4}, {LDS_CNT+16}
    v_mov_b32 v{C['t2']}, s{t+4}
    v_mov_b32 v{C['t3']}, 1
    ds_write_b32 v{C['t2']}, v{C['t3']}
    s_lshl_b32 s{t+4}, s{t+1}, 2
    s_add_u32 s{t+4}, s{t+4}, {LDS_CNT+16}
    v_mov_b32 v{C['t2']}, s{t+4}
    s_mov_b32 s{S_SPIN}, 1000000
    """)
    a.label(Lsp)
    a.e(f"""
    ds_read_b32 v{C['t3']}, v{C['t2']}
    s_waitcnt lgkmcnt(0)
    v_readfirstlane_b32 s{t+4}, v{C['t3']}
    s_cmp_eq_u32 s{t+4}, 1
    s_cbranch_scc1 {Lsd}
    s_sub_u32 s{S_SPIN}, s{S_SPIN}, 1
    s_cmp_lg_u32 s{S_SPIN}, 0
    s_cbranch_scc1 {Lsp}
    """)
    a.label(Lsd)
    for G in range(4): a.e(f"ds_read_b128 {vr(C['A1']+4*G,4)}, v{C['t1']} offset:{1024*G}")
    a.e(f"""
    v_and_b32 v{C['t0']}, 15, v0
    v_lshrrev_b32 v{C['t1']}, 4, v0
    v_lshlrev_b32 v{C['t2']}, 5, v{C['t0']}
    v_lshl_add_u32 v{C['t2']}, v{C['t1']}, 3, v{C['t2']}
    s_lshl_b32 s{t+3}, s{t+3}, 11
    s_add_u32 s{t+4}, s{sU}, s{t+3}
    v_add_u32 v{C['ua']}, s{t+4}, v{C['t2']}
    s_add_u32 s{sOut}, s{sOut}, s{t+3}
    """)
    U0 = C['A0']
    for G in range(4): a.e(f"ds_read_b64 {vr(U0+2*G,2)}, v{C['ua']} offset:{U_PAD+512*G}")
    a.e("s_waitcnt lgkmcnt(0)")
    for i in range(16): a.e(f"v_add_f32 v{C['acc']+i}, v{C['acc']+i}, v{C['A1']+i}")
    for G in range(4):
        y = C['acc'] + 4*G; u0 = U0 + 2*G; w = C['B0'] + 4*G
        a.e(f"""
        v_lshlrev_b32 v{w}, 16, v{u0}
        v_and_b32 v{w+1}, 0xffff0000, v{u0}
        v_lshlrev_b32 v{w+2}, 16, v{u0+1}
        v_and_b32 v{w+3}, 0xffff0000, v{u0+1}
        v_mul_f32 v{w}, s{sD}, v{w}
        v_mul_f32 v{w+1}, s{sD}, v{w+1}
        v_mul_f32 v{w+2}, s{sD}, v{w+2}
        v_mul_f32 v{w+3}, s{sD}, v{w+3}
        v_cvt_pk_bf16_f32 v{w}, v{w}, v{w+1}
        v_cvt_pk_bf16_f32 v{w+2}, v{w+2}, v{w+3}
        v_cvt_pk_bf16_f32 v{y}, v{y}, v{y+1}
        v_cvt_pk_bf16_f32 v{y+2}, v{y+2}, v{y+3}
        v_lshlrev_b32 v{w+1}, 16, v{w}
        v_and_b32 v{w}, 0xffff0000, v{w}
        v_lshlrev_b32 v{w+3}, 16, v{w+2}
        v_and_b32 v{w+2}, 0xffff0000, v{w+2}
        v_lshlrev_b32 v{y+1}, 16, v{y}
        v_and_b32 v{y}, 0xffff0000, v{y}
        v_lshlrev_b32 v{y+3}, 16, v{y+2}
        v_and_b32 v{y+2}, 0xffff0000, v{y+2}
        v_add_f32 v{w+1}, v{w+1}, v{y+1}
        v_add_f32 v{w}, v{w}, v{y}
        v_add_f32 v{w+3}, v{w+3}, v{y+3}
        v_add_f32 v{w+2}, v{w+2}, v{y+2}
        v_cvt_pk_bf16_f32 v{y}, v{w+1}, v{w}
        v_cvt_pk_bf16_f32 v{y+1}, v{w+3}, v{w+2}
        buffer_store_dwordx2 {vr(y,2)}, v{C['t2']}, {sq(SRD_WS)}, s{sOut} offen offset:{512*G} sc1
        """)

W2F = 128; ACC2 = 64
HFB = [16, 32, 48, 224, 240]
VD2 = 4; VA2 = 5; VL2 = 9
def w2f(s, d): return W2F + (4*s + d)*4
def acc2(l, d): return ACC2 + (4*l + d)*4

def g2_map(a):
    t = S_T
    a.e(f"""
    s_and_b32 s{t}, s2, 7
    s_lshr_b32 s{t+1}, s2, 3
    s_lshl_b32 s{S_RT2}, s{t}, 2
    s_and_b32 s{t+2}, s{t+1}, 3
    s_add_u32 s{S_RT2}, s{S_RT2}, s{t+2}
    s_lshr_b32 s{S_DT}, s{t+1}, 2
    s_mul_i32 s{S_S0}, s3, 43
    s_add_u32 s{S_NS}, s{S_S0}, 48
    s_add_u32 s{S_S0}, s{S_S0}, 5
    s_lshr_b32 s{S_S0}, s{S_S0}, 3
    s_lshr_b32 s{S_NS}, s{S_NS}, 3
    s_sub_u32 s{S_NS}, s{S_NS}, s{S_S0}
    """)

def w2_dma_lane(a, vD, vt):
    a.e(f"""
    v_lshrrev_b32 v{vt}, 3, v0
    v_lshlrev_b32 v{vt}, 10, v{vt}
    v_lshrrev_b32 v{vt+1}, 4, v0
    v_and_b32 v{vt+1}, 3, v{vt+1}
    v_lshlrev_b32 v{vt+1}, 1, v{vt+1}
    v_and_b32 v{vt+2}, 7, v0
    v_xor_b32 v{vt+1}, v{vt+1}, v{vt+2}
    v_lshl_add_u32 v{vD}, v{vt+1}, 4, v{vt}
    """)
def w2_read_lane(a, vA, vt):
    t = S_T
    a.e(f"""
    v_lshrrev_b32 v{vt}, 2, v0
    v_lshlrev_b32 v{vt+1}, 7, v{vt}
    v_and_b32 v{vt+2}, 3, v0
    v_lshl_add_u32 v{vt+1}, v{vt+2}, 3, v{vt+1}
    v_lshrrev_b32 v{vt+2}, 1, v{vt}
    v_and_b32 v{vt+2}, 3, v{vt+2}
    s_mul_i32 s{t}, s3, {W2_STAGE}
    s_add_u32 s{t}, s{t}, {LDS_W2}
    v_add_u32 v{vt+1}, s{t}, v{vt+1}
    """)
    for ds in range(4):
        a.e(f"v_xor_b32 v{vt}, {ds}, v{vt+2}")
        a.e(f"v_lshl_add_u32 v{vA+ds}, v{vt}, 5, v{vt+1}")

def w2_dma(a, steps, vD, sS0, sDT):
    t = S_T
    for s in steps:
        a.e(f"""
        s_add_u32 s{t}, s{sS0}, {s}
        s_lshl_b32 s{t}, s{t}, 15
        s_lshl_b32 s{t+1}, s{sDT}, 7
        s_add_u32 s{t}, s{t}, s{t+1}
        s_mul_i32 s{t+2}, s3, {W2_STAGE}
        """)
        for q in range(4):
            a.e(f"s_add_u32 m0, s{t+2}, {LDS_W2 + (s%3)*4096 + q*1024}")
            a.e(f"s_add_u32 s{t+1}, s{t}, {q*8192}")
            a.e(f"buffer_load_dwordx4 v{vD}, {sq(SRD_W)}, s{t+1} offen lds")

def w2_read(a, steps, vA):
    n = 0
    for s in steps:
        for ds in range(4):
            for h in range(2):
                a.e(f"ds_read_b64_tr_b16 {vr(w2f(s,ds)+2*h,2)}, v{vA+ds} offset:{(s%3)*4096 + h*2048}")
                n += 1
                if n % 12 == 0: a.e("s_waitcnt lgkmcnt(3)")
    a.e("s_waitcnt lgkmcnt(0)")

def h_load(a, s, vL):
    buf = HFB[s % 5]
    for ls in range(4):
        a.e(f"s_add_u32 s{S_T}, s{S_HB}, {s*4096 + ls*1024}")
        a.e(f"buffer_load_dwordx4 {vr(buf+4*ls,4)}, v{vL}, {sq(SRD_WS)}, s{S_T} offen sc1")

def g2_mfma(a, s):
    buf = HFB[s % 5]
    for ls in range(4):
        for ds in range(4):
            c = "0" if s == 0 else vr(acc2(ls,ds),4)
            a.e(f"v_mfma_f32_16x16x32_bf16 {vr(acc2(ls,ds),4)}, {vr(buf+4*ls,4)}, {vr(w2f(s,ds),4)}, {c}")

def gemm2_and_final(a, st_=None):
    t = S_T
    mk = (lambda n: st_.mark(n)) if st_ else (lambda n: None)
    w2_read_lane(a, VA2, 1)
    a.e("s_waitcnt vmcnt(0)")
    w2_read(a, [0,1,2], VA2)
    w2_dma(a, [3,4], VD2, S_S0, S_DT)
    L6 = a.newlabel("Lno6")
    a.e(f"s_cmp_lt_u32 s{S_NS}, 6"); a.e(f"s_cbranch_scc1 {L6}")
    w2_dma(a, [5], VD2, S_S0, S_DT)
    a.label(L6)
    a.e(f"""
    v_lshlrev_b32 v{VL2}, 4, v0
    s_mul_i32 s{S_HB}, s{S_RT2}, 43
    s_add_u32 s{S_HB}, s{S_HB}, s{S_S0}
    s_lshl_b32 s{S_HB}, s{S_HB}, 12
    s_add_u32 s{S_HB}, s{S_HB}, {WS_H}
    s_waitcnt vmcnt(0)
    """)
    w2_read(a, [3,4,5], VA2)
    mk('w2rd')
    a.e(f"""
    s_lshl_b32 s{t}, s{S_RT2}, 3
    s_add_u32 s{t}, s{t}, s3
    s_lshl_b32 s{t}, s{t}, 6
    s_add_u32 s{t}, s{t}, {FB_OFF}
    v_mov_b32 v1, 0
    """)
    poll_flags(a, 1, 1, t, 2)
    mk('hflag')
    for s in range(5): h_load(a, s, VL2)
    for s in range(5):
        a.e(f"s_waitcnt vmcnt({4*(4-s)})")
        g2_mfma(a, s)
    L6 = a.newlabel("Lno6")
    a.e(f"s_cmp_lt_u32 s{S_NS}, 6"); a.e(f"s_cbranch_scc1 {L6}")
    h_load(a, 5, VL2)
    a.e("s_waitcnt vmcnt(0)")
    g2_mfma(a, 5)
    a.label(L6)
    mk('g2mm')
    a.e(f"""
    s_lshr_b32 s{t+1}, s3, 1                    ; da
    s_lshl_b32 s{t}, s{S_DT}, 5
    s_lshl_b32 s{t+2}, s{t+1}, 3
    s_add_u32 s{t}, s{t}, s{t+2}
    s_lshl_b32 s{t}, s{t}, 6
    s_add_u32 s{t}, s{t}, {FC_OFF}
    v_lshlrev_b32 v1, 6, v0
    """)
    poll_flags(a, 8, 1, t, 2)
    a.e(f"""
    v_and_b32 v1, 15, v0
    v_lshlrev_b32 v1, 12, v1
    v_lshrrev_b32 v2, 4, v0
    v_lshl_add_u32 v1, v2, 3, v1                ; d'*4096 + rg*8
    s_lshr_b32 s{t+1}, s3, 1
    s_lshl_b32 s{t}, s{S_DT}, 2
    s_add_u32 s{t}, s{t}, s{t+1}
    s_lshl_b32 s{t}, s{t}, 16                   ; *16*4096
    s_lshl_b32 s{t+2}, s{S_RT2}, 7
    s_add_u32 s{t}, s{t}, s{t+2}
    s_and_b32 s{t+2}, s3, 1
    s_lshl_b32 s{t+2}, s{t+2}, 6                ; 2*(w&1)*16*2 bytes
    s_add_u32 s{t}, s{t}, s{t+2}
    s_add_u32 s{t}, s{t}, {WS_AOT}
    buffer_load_dwordx2 v[10:11], v1, {sq(SRD_WS)}, s{t} offen sc1
    buffer_load_dwordx2 v[12:13], v1, {sq(SRD_WS)}, s{t} offen offset:32 sc1
    """)
    VX = 16
    a.e(f"""
    v_lshrrev_b32 v2, 4, v0                     ; da
    v_lshrrev_b32 v3, 2, v0
    v_and_b32 v3, 3, v3                         ; rg
    v_and_b32 v14, 3, v0                        ; dq
    v_lshlrev_b32 v15, 5, v2
    v_lshl_add_u32 v15, v14, 3, v15
    v_lshl_add_u32 v{VX+6}, v3, 12, v15         ; + rg*4*1024
    s_lshl_b32 s{t}, s{S_RT2}, 16
    s_lshl_b32 s{t+1}, s{S_DT}, 7
    s_add_u32 s{t}, s{t}, s{t+1}
    s_lshr_b32 s{t+2}, s3, 1
    s_lshl_b32 s{t+2}, s{t+2}, 14               ; la*16*1024
    s_add_u32 s{t}, s{t}, s{t+2}
    s_and_b32 s{t+2}, s3, 1
    s_lshl_b32 s{t+2}, s{t+2}, 11               ; 2*(w&1)*1024
    s_add_u32 s{t}, s{t}, s{t+2}
    v_add_u32 v{VX+6}, s{t}, v{VX+6}
    buffer_load_dwordx2 {vr(VX,2)}, v{VX+6}, {sq(SRD_X)}, 0 offen
    buffer_load_dwordx2 {vr(VX+2,2)}, v{VX+6}, {sq(SRD_X)}, 0 offen offset:1024
    v_add_u32 v15, s{t+1}, v15
    global_load_dwordx2 {vr(VX+4,2)}, v15, {sp(S_B2)}
    s_waitcnt vmcnt(3)
    v_lshlrev_b32 v24, 16, v10
    v_and_b32 v25, 0xffff0000, v10
    v_lshlrev_b32 v26, 16, v11
    v_and_b32 v27, 0xffff0000, v11
    v_lshlrev_b32 v28, 16, v12
    v_and_b32 v29, 0xffff0000, v12
    v_lshlrev_b32 v30, 16, v13
    v_and_b32 v31, 0xffff0000, v13
    """)
    Ld = a.newlabel("Laod")
    for w in range(8):
        Ln = a.newlabel("Laon")
        a.e(f"s_cmp_lg_u32 s3, {w}"); a.e(f"s_cbranch_scc1 {Ln}")
        for k in range(2):
            A_ = acc2(2*(w&1)+k, w>>1)
            for i in range(4): a.e(f"v_add_f32 v{A_+i}, v{A_+i}, v{24+4*k+i}")
        a.e(f"s_branch {Ld}")
        a.label(Ln)
    a.label(Ld)
    mk('ao')
    a.e("s_barrier")
    a.e(f"s_lshl_b32 s{t}, s3, 8")
    a.e(f"s_mov_b32 m0, s{t}")
    for idx in range(32):
        a.e(f"ds_write_addtid_b32 v{ACC2+idx} offset:{2048*idx}")
    a.e(f"s_add_u32 m0, s{t}, 63740")
    for idx in range(32, 64):
        a.e(f"ds_write_addtid_b32 v{ACC2+idx} offset:{2048*idx - 63740}")
    a.e("s_waitcnt lgkmcnt(0)")
    mk('pw')
    a.e("s_barrier")
    a.e(f"""
    v_lshrrev_b32 v2, 4, v0
    v_lshlrev_b32 v2, 13, v2                    ; da*4*2048
    v_and_b32 v3, 15, v0
    v_lshl_add_u32 v2, v3, 4, v2
    s_lshr_b32 s{t}, s3, 1
    s_lshl_b32 s{t}, s{t}, 15                   ; la*16*2048
    s_and_b32 s{t+1}, s3, 1
    s_lshl_b32 s{t+1}, s{t+1}, 12               ; 2*(w&1)*2048
    s_add_u32 s{t}, s{t}, s{t+1}
    v_add_u32 v2, s{t}, v2
    """)
    T = ACC2
    for k in range(2):
        for w in range(8):
            a.e(f"ds_read_b128 {vr(T+32*k+4*w,4)}, v2 offset:{2048*k + 256*w}")
        if k == 0: a.e("s_waitcnt lgkmcnt(4)")
    a.e("s_waitcnt lgkmcnt(0)")
    for k in range(2):
        B_ = T + 32*k
        for step in (4,2,1):
            for w in range(step):
                for e in (0,2):
                    a.e(f"v_pk_add_f32 {vr(B_+4*w+e,2)}, {vr(B_+4*w+e,2)}, {vr(B_+4*(w+step)+e,2)}")
    a.e("s_waitcnt vmcnt(0)")
    U = 24
    a.e(f"""
    v_lshlrev_b32 v{U+8}, 16, v{VX+4}
    v_and_b32 v{U+9}, 0xffff0000, v{VX+4}
    v_lshlrev_b32 v{U+10}, 16, v{VX+5}
    v_and_b32 v{U+11}, 0xffff0000, v{VX+5}
    """)
    for k in range(2):
        B_ = T + 32*k
        a.e(f"""
        v_lshlrev_b32 v{U}, 16, v{VX+2*k}
        v_and_b32 v{U+1}, 0xffff0000, v{VX+2*k}
        v_lshlrev_b32 v{U+2}, 16, v{VX+2*k+1}
        v_and_b32 v{U+3}, 0xffff0000, v{VX+2*k+1}
        v_pk_add_f32 {vr(U,2)}, {vr(U,2)}, {vr(U+8,2)}
        v_pk_add_f32 {vr(U+2,2)}, {vr(U+2,2)}, {vr(U+10,2)}
        v_pk_add_f32 {vr(U,2)}, {vr(U,2)}, {vr(B_,2)}
        v_pk_add_f32 {vr(U+2,2)}, {vr(U+2,2)}, {vr(B_+2,2)}
        v_cvt_pk_bf16_f32 v{U+4+2*k}, v{U}, v{U+1}
        v_cvt_pk_bf16_f32 v{U+5+2*k}, v{U+2}, v{U+3}
        buffer_store_dwordx2 {vr(U+4+2*k,2)}, v{VX+6}, {sq(SRD_OUT)}, 0 offen offset:{1024*k}
        """)
    mk('fin')
```

```python
from common import *

KG_TAB = 8704

def cmul(a, X, W, T):
    a.e(f"v_pk_mul_f32 {vr(T,2)}, {vr(X,2)}, {vr(W,2)} op_sel:[0,0] op_sel_hi:[1,0]")
    a.e(f"v_pk_fma_f32 {vr(X,2)}, {vr(X,2)}, {vr(W+2,2)}, {vr(T,2)} op_sel:[1,0,0] op_sel_hi:[0,0,1] neg_lo:[1,0,0]")

def acc_exp(a, dst, x, t, u, sL, sLlo, sLn2):
    a.e(f"""
    v_mul_f32 v{t}, s{sL}, v{x}
    v_fma_f32 v{u}, v{x}, s{sL}, -v{t}
    v_fma_f32 v{u}, v{x}, s{sLlo}, v{u}
    v_exp_f32 v{dst}, v{t}
    v_mul_f32 v{u}, s{sLn2}, v{u}
    v_fma_f32 v{dst}, v{dst}, v{u}, v{dst}
    """)
def rbf(a, dst, x):
    a.e(f"v_cvt_pk_bf16_f32 v{dst}, v{x}, v{x}")
    a.e(f"v_and_b32 v{dst}, 0xffff0000, v{dst}")

def cexp(a, Z, k, arl, rv, t0, t1, conj=False):
    a.e(f"v_mul_f32 v{t0}, {hx(float(k))}, v{arl}")
    a.e(f"v_mul_f32 v{t1}, {hx(float(-k if conj else k))}, v{rv}")
    a.e(f"v_exp_f32 v{t0}, v{t0}")
    a.e(f"v_fract_f32 v{t1}, v{t1}")
    a.e(f"v_cos_f32 v{Z}, v{t1}")
    a.e(f"v_sin_f32 v{Z+1}, v{t1}")
    a.e(f"v_mul_f32 v{Z}, v{Z}, v{t0}")
    a.e(f"v_mul_f32 v{Z+1}, v{Z+1}, v{t0}")

def kgen_load(a, V, sC, sNH, st):
    a.e(f"""
    s_lshl_b32 s{st}, s{sC}, 8
    s_lshl_b32 s{st+1}, s{sNH}, 7
    s_add_u32 s{st}, s{st}, s{st+1}
    v_lshl_add_u32 v{V['t0']}, v0, 1, s{st}
    s_lshl_b32 s{st}, s{sC}, 1
    v_mov_b32 v{V['t1']}, s{st}
    global_load_ushort v{V['la']}, v{V['t0']}, {sp(S_LOGA)}
    global_load_ushort v{V['ai']}, v{V['t0']}, {sp(S_AIM)}
    global_load_ushort v{V['cr']}, v{V['t0']}, {sp(S_CRE)}
    global_load_ushort v{V['ci']}, v{V['t0']}, {sp(S_CIM)}
    global_load_ushort v{V['dt']}, v{V['t1']}, {sp(S_LDT)}
    """)

def kgen_chunks(V, sK, tabbase_v):
    sL, sLlo, sLn2 = sK, sK+1, sK+2
    ch = []
    def setup(a):
        a.e(f"""
        s_mov_b32 s{sL}, {hx(LOG2E_F)}
        s_mov_b32 s{sLlo}, {hx(LOG2E_LO)}
        s_mov_b32 s{sLn2}, {hx(LN2)}
        v_lshlrev_b32 v{V['la']}, 16, v{V['la']}
        v_lshlrev_b32 v{V['ai']}, 16, v{V['ai']}
        v_lshlrev_b32 v{V['cr']}, 16, v{V['cr']}
        v_lshlrev_b32 v{V['ci']}, 16, v{V['ci']}
        v_lshlrev_b32 v{V['dt']}, 16, v{V['dt']}
        """)
        t0,t1,t2 = V['t0'],V['t1'],V['t2']
        u0 = V['A']
        xs = [V['dt'], V['la']]
        for i,x in enumerate(xs): a.e(f"v_mul_f32 v{u0+3*i}, s{sL}, v{x}")
        for i,x in enumerate(xs): a.e(f"v_fma_f32 v{u0+3*i+1}, v{x}, s{sL}, -v{u0+3*i}")
        for i,x in enumerate(xs): a.e(f"v_exp_f32 v{u0+3*i+2}, v{u0+3*i}")
        for i,x in enumerate(xs): a.e(f"v_fma_f32 v{u0+3*i+1}, v{x}, s{sLlo}, v{u0+3*i+1}")
        for i,x in enumerate(xs): a.e(f"v_mul_f32 v{u0+3*i+1}, s{sLn2}, v{u0+3*i+1}")
        for i,x in enumerate(xs): a.e(f"v_fma_f32 v{u0+3*i+2}, v{u0+3*i+2}, v{u0+3*i+1}, v{u0+3*i+2}")
        for i,x in enumerate(xs): a.e(f"v_cvt_pk_bf16_f32 v{x}, v{u0+3*i+2}, v{u0+3*i+2}")
        for i,x in enumerate(xs): a.e(f"v_and_b32 v{x}, 0xffff0000, v{x}")
        a.e(f"""
        v_mul_f32 v{V['la']}, v{V['la']}, v{V['dt']}
        v_mul_f32 v{V['ai']}, v{V['ai']}, v{V['dt']}
        v_mul_f32 v{V['cr']}, v{V['cr']}, v{V['dt']}
        v_mul_f32 v{V['ci']}, v{V['ci']}, v{V['dt']}
        v_mul_f32 v{V['la']}, {hx(-LOG2E_F)}, v{V['la']}
        v_mul_f32 v{V['ai']}, {hx(1.0/(2*math.pi))}, v{V['ai']}
        """)
        arl, rv = V['la'], V['ai']
        specs = [(V['Yo'],1,False),(V['Z2'],2,False),(V['Wc'],32,True),(V['W2'],64,True)]
        tm = [V['A']+2*i for i in range(4)]
        for (Z,k,cj),T in zip(specs,tm): a.e(f"v_mul_f32 v{T}, {hx(float(k))}, v{arl}")
        for (Z,k,cj),T in zip(specs,tm): a.e(f"v_mul_f32 v{T+1}, {hx(float(-k if cj else k))}, v{rv}")
        for (Z,k,cj),T in zip(specs,tm): a.e(f"v_fract_f32 v{T+1}, v{T+1}")
        for (Z,k,cj),T in zip(specs,tm): a.e(f"v_exp_f32 v{T}, v{T}")
        for (Z,k,cj),T in zip(specs,tm): a.e(f"v_cos_f32 v{Z}, v{T+1}")
        for (Z,k,cj),T in zip(specs,tm): a.e(f"v_sin_f32 v{Z+1}, v{T+1}")
        for (Z,k,cj),T in zip(specs,tm): a.e(f"v_mul_f32 v{Z}, v{Z}, v{T}")
        for (Z,k,cj),T in zip(specs,tm): a.e(f"v_mul_f32 v{Z+1}, v{Z+1}, v{T}")
        for k_ in ('Z2','Wc','W2'): a.e(f"v_mov_b32 v{V[k_]+2}, v{V[k_]+1}")
        a.e(f"""
        v_mov_b32 v{V['Ye']}, 1.0
        v_mov_b32 v{V['Ye']+1}, 0
        v_add_f32 v{V['Xe']}, v{V['cr']}, v{V['cr']}
        v_mul_f32 v{V['Xe']+1}, -2.0, v{V['ci']}
        v_add_f32 v{V['Xo']}, v{V['cr']}, v{V['cr']}
        v_mul_f32 v{V['Xo']+1}, -2.0, v{V['ci']}
        """)
        cmul(a, V['Xo'], V['Wc'], V['T0'])
    ch.append(setup)
    def chain_step(E, O, M, row, last=False):
        def f(a, scalar=False):
            if scalar:
                T0, T1 = V['T0'], V['T1']
                pa, pb = (V['p0'], V['p1']) if (row//2) % 2 == 0 else (V['p2'], V['p3'])
                a.e(f"v_mul_f32 v{T0}, v{E+1}, v{M+1}")
                a.e(f"v_mul_f32 v{T0+1}, v{E+1}, v{M}")
                if not last:
                    a.e(f"v_mul_f32 v{T1}, v{O+1}, v{M+1}")
                    a.e(f"v_mul_f32 v{T1+1}, v{O+1}, v{M}")
                a.e(f"v_cvt_pk_bf16_f32 v{pa}, v{E}, v{E+1}")
                a.e(f"v_cvt_pk_bf16_f32 v{pb}, v{O}, v{O+1}")
                a.e(f"v_fma_f32 v{E+1}, v{E}, v{M+1}, v{T0+1}")
                a.e(f"v_fma_f32 v{E}, v{E}, v{M}, -v{T0}")
                if not last:
                    a.e(f"v_fma_f32 v{O+1}, v{O}, v{M+1}, v{T1+1}")
                    a.e(f"v_fma_f32 v{O}, v{O}, v{M}, -v{T1}")
                a.e(f"ds_write_addtid_b32 v{pa} offset:{row*272}")
                a.e(f"ds_write_addtid_b32 v{pb} offset:{(row+1)*272}")
                return
            T0, T1 = V['T0'], V['T1']
            pa, pb = (V['p0'], V['p1']) if (row//2) % 2 == 0 else (V['p2'], V['p3'])
            a.e(f"v_pk_mul_f32 {vr(T0,2)}, {vr(E,2)}, {vr(M,2)} op_sel:[0,0] op_sel_hi:[1,0]")
            if not last: a.e(f"v_pk_mul_f32 {vr(T1,2)}, {vr(O,2)}, {vr(M,2)} op_sel:[0,0] op_sel_hi:[1,0]")
            a.e(f"v_cvt_pk_bf16_f32 v{pa}, v{E}, v{E+1}")
            a.e(f"v_cvt_pk_bf16_f32 v{pb}, v{O}, v{O+1}")
            a.e(f"v_pk_fma_f32 {vr(E,2)}, {vr(E,2)}, {vr(M+2,2)}, {vr(T0,2)} op_sel:[1,0,0] op_sel_hi:[0,0,1] neg_lo:[1,0,0]")
            if not last: a.e(f"v_pk_fma_f32 {vr(O,2)}, {vr(O,2)}, {vr(M+2,2)}, {vr(T1,2)} op_sel:[1,0,0] op_sel_hi:[0,0,1] neg_lo:[1,0,0]")
            if tabbase_v is None:
                a.e(f"ds_write_addtid_b32 v{pa} offset:{row*272}")
                a.e(f"ds_write_addtid_b32 v{pb} offset:{(row+1)*272}")
            else:
                a.e(f"ds_write_b32 v{tabbase_v}, v{pa} offset:{row*272}")
                a.e(f"ds_write_b32 v{tabbase_v}, v{pb} offset:{(row+1)*272}")
        f.is_step = True
        return f
    for i in range(16): ch.append(chain_step(V['Ye'], V['Yo'], V['Z2'], 2*i, last=(i==15)))
    def readB(a):
        a.e("s_waitcnt lgkmcnt(0)")
        for s in range(8): a.e(f"ds_read_b128 {vr(V['B']+4*s,4)}, v{V['rd']} offset:{32*s}")
        a.e("s_waitcnt lgkmcnt(0)")
    ch.append(readB)
    for t in range(2):
        for i in range(16): ch.append(chain_step(V['Xe'], V['Xo'], V['W2'], 2*i, last=(t==1 and i==15)))
        def mm(a, t=t):
            a.e("s_waitcnt lgkmcnt(0)")
            for s in range(8): a.e(f"ds_read_b128 {vr(V['A']+4*s,4)}, v{V['rd']} offset:{32*s}")
            D = V['D'] + 16*t
            for s in range(8):
                a.e(f"s_waitcnt lgkmcnt({7-s})")
                c = "0" if s == 0 else vr(D,16)
                if V.get('transposed'):
                    a.e(f"v_mfma_f32_32x32x16_bf16 {vr(D,16)}, {vr(V['B']+4*s,4)}, {vr(V['A']+4*s,4)}, {c}")
                else:
                    a.e(f"v_mfma_f32_32x32x16_bf16 {vr(D,16)}, {vr(V['A']+4*s,4)}, {vr(V['B']+4*s,4)}, {c}")
        ch.append(mm)
    def fin(a):
        x = V['Xe']
        for sh in (1,2,4,8):
            a.e(f"v_add_f32_dpp v{x}, v{x}, v{x} row_shr:{sh} row_mask:0xf bank_mask:0xf bound_ctrl:0")
        a.e(f"v_add_f32_dpp v{x}, v{x}, v{x} row_bcast:15 row_mask:0xa bank_mask:0xf")
        a.e(f"v_add_f32_dpp v{x}, v{x}, v{x} row_bcast:31 row_mask:0xc bank_mask:0xf")
        for t in range(2):
            for r in range(16):
                a.e(f"ds_write_b32 v{V['fw']}, v{V['D']+16*t+r} offset:{4096*t + 128*(8*(r>>2)+(r&3))}")
        a.e(f"""
        v_cmp_eq_u32 vcc, 63, v0
        s_and_saveexec_b64 s[74:75], vcc
        ds_write_b32 v{V['f2k']}, v{x}
        s_mov_b64 exec, s[74:75]
        s_waitcnt lgkmcnt(0)
        """)
    ch.append(fin)
    return ch

def kgen_addr_setup(a, V, sTab):
    a.e(f"""
    v_lshl_add_u32 v{V['wr']}, v0, 2, s{sTab}
    v_and_b32 v{V['t0']}, 31, v0
    v_lshrrev_b32 v{V['t1']}, 5, v0
    v_mul_u32_u24 v{V['rd']}, 272, v{V['t0']}
    v_lshl_add_u32 v{V['rd']}, v{V['t1']}, 4, v{V['rd']}
    v_add_u32 v{V['rd']}, s{sTab}, v{V['rd']}
    v_lshlrev_b32 v{V['fw']}, 2, v{V['t0']}
    v_lshl_add_u32 v{V['fw']}, v{V['t1']}, 9, v{V['fw']}
    v_add_u32 v{V['fw']}, s{sTab}, v{V['fw']}
    v_mov_b32 v{V['f2k']}, s{sTab}
    v_add_u32 v{V['f2k']}, 8192, v{V['f2k']}
    """)

def kgen_vmap(base):
    V = {}
    n = base
    for k in ('la','ai','cr','ci','dt','t0','t1','t2','p0','p1','p2','p3','wr','rd','fw','f2k'): V[k] = n; n += 1
    n = (n+1)//2*2
    for k in ('Ye','Yo','Z2','Z2i','Wc','Wci','W2','W2i','Xe','Xo','T0','T1'): V[k] = n; n += 2
    n = (n+3)//4*4
    V['B'] = n; n += 32
    V['A'] = n; n += 32
    V['D'] = n; n += 32
    V['end'] = n
    return V

def gather(a, G, tid_v, tabF0, nthreads_per_ch, emit_store):
    nch = 258
    rounds = (nch + nthreads_per_ch - 1)//nthreads_per_ch
    for rnd in range(rounds):
        a.e(f"v_add_u32 v{G['ck']}, {rnd*nthreads_per_ch}, v{tid_v}")
        a.e(f"v_lshlrev_b32 v{G['j']}, 3, v{G['ck']}")
        a.e(f"v_sub_u32 v{G['j']}, 2048, v{G['j']}")
        for e in range(8):
            t = G['t'] + e
            a.e(f"v_subrev_u32 v{t}, {e}, v{G['j']}")
            a.e(f"v_max_i32 v{t}, 0, v{t}")
            a.e(f"v_min_i32 v{t}, 2047, v{t}")
            a.e(f"v_cvt_f32_u32 v{t}, v{t}")
            a.e(f"v_cvt_pk_bf16_f32 v{t}, v{t}, v{t}")
            a.e(f"v_and_b32 v{t}, 0xffff0000, v{t}")
            a.e(f"v_cvt_u32_f32 v{t}, v{t}")
            a.e(f"v_lshl_add_u32 v{t}, v{t}, 2, v{tabF0}")
        for e in range(8):
            t = G['t'] + e
            a.e(f"ds_read_b32 v{G['f0']+e}, v{t}")
            a.e(f"ds_read_b32 v{G['f1']+e}, v{t} offset:{KG_TAB}")
        a.e("s_waitcnt lgkmcnt(0)")
        for e in range(8):
            a.e(f"v_add_f32 v{G['f0']+e}, v{G['f0']+e}, v{G['f1']+e}")
            t = G['t'] + e
            a.e(f"v_subrev_u32 v{t}, {e}, v{G['j']}")
            a.e(f"v_cmp_gt_u32 vcc, 2048, v{t}")
            a.e(f"v_cndmask_b32 v{G['f0']+e}, 0, v{G['f0']+e}, vcc")
        for q in range(4):
            a.e(f"v_cvt_pk_bf16_f32 v{G['o']+q}, v{G['f0']+2*q}, v{G['f0']+2*q+1}")
        emit_store(a, rnd)

def kernel_kgen():
    a = Asm()
    V = kgen_vmap(8)
    prologue(a, 256, "Lkg_end")
    a.e(f"""
    s_lshr_b32 s52, s3, 1
    s_lshl_b32 s53, s2, 1
    s_add_u32 s53, s53, s52          ; channel
    s_and_b32 s54, s3, 1             ; nh
    s_mul_i32 s56, s3, {KG_TAB}
    s_waitcnt lgkmcnt(0)
    """)
    kgen_load(a, V, 53, 54, 58)
    kgen_addr_setup(a, V, 56)
    make_srd(a, SRD_WS, S_WS, WS_SIZE)
    a.e("s_waitcnt vmcnt(0)")
    for f in kgen_chunks(V, 60, V['wr']): f(a)
    a.e("s_barrier")
    G = dict(ck=V['B'], j=V['B']+1, tid=V['B']+2, tab=V['B']+3, off=V['B']+4, t=V['B']+8, f0=V['A'], f1=V['A']+8, o=V['A']+16)
    a.e(f"""
    v_lshl_add_u32 v{G['tid']}, s54, 6, v0
    s_mul_i32 s57, s52, {2*KG_TAB}
    v_mov_b32 v{G['tab']}, s57
    s_mul_i32 s57, s53, {KR_STRIDE}
    s_add_u32 s57, s57, {WS_KR}
    """)
    def st(a, rnd):
        a.e(f"""
        v_lshlrev_b32 v{G['off']}, 4, v{G['ck']}
        v_cmp_gt_u32 vcc, 264, v{G['ck']}
        s_and_saveexec_b64 s[66:67], vcc
        buffer_store_dwordx4 {vr(G['o'],4)}, v{G['off']}, {sq(SRD_WS)}, s57 offen
        s_mov_b64 exec, s[66:67]
        """)
    gather(a, G, G['tid'], G['tab'], 128, st)
    a.e("s_waitcnt vmcnt(0)")
    a.label("Lkg_end")
    a.e("s_endpgm")
    return ("kg_kernel", a.text(), V['end'], 80)


def kgen_x_write(a, V, sNH, sTab):
    x = V['Xe']
    for sh in (1,2,4,8):
        a.e(f"v_add_f32_dpp v{x}, v{x}, v{x} row_shr:{sh} row_mask:0xf bank_mask:0xf bound_ctrl:0")
    a.e(f"v_add_f32_dpp v{x}, v{x}, v{x} row_bcast:15 row_mask:0xa bank_mask:0xf")
    a.e(f"v_add_f32_dpp v{x}, v{x}, v{x} row_bcast:31 row_mask:0xc bank_mask:0xf")
    L1 = a.newlabel("Lkx"); L2 = a.newlabel("Lkx")
    a.e(f"v_lshl_add_u32 v{V['t0']}, v0, 4, s{sTab}")
    a.e(f"s_cmp_eq_u32 s{sNH}, 1")
    a.e(f"s_cbranch_scc1 {L1}")
    for q in range(4): a.e(f"ds_write_b128 v{V['t0']}, {vr(V['D']+16+4*q,4)} offset:{1024*q}")
    a.e(f"s_branch {L2}")
    a.label(L1)
    for q in range(4): a.e(f"ds_write_b128 v{V['t0']}, {vr(V['D']+4*q,4)} offset:{1024*q}")
    for i in range(16): a.e(f"v_mov_b32 v{V['D']+i}, v{V['D']+16+i}")
    a.label(L2)
    a.e(f"""
    v_mov_b32 v{V['t1']}, s{sTab}
    v_cmp_eq_u32 vcc, 63, v0
    s_and_saveexec_b64 s[74:75], vcc
    ds_write_b32 v{V['t1']}, v{x} offset:4096
    s_mov_b64 exec, s[74:75]
    s_waitcnt lgkmcnt(0)
    """)

def kgen_x_finish(a, V, sNH, sTab, sFb, st):
    a.e(f"""
    s_mul_i32 s{st}, s{sNH}, {2*KG_TAB}
    s_sub_u32 s{st}, {KG_TAB}, s{st}
    s_add_u32 s{st}, s{st}, s{sTab}
    v_lshl_add_u32 v{V['t0']}, v0, 4, s{st}
    """)
    A = V['A']
    for q in range(4): a.e(f"ds_read_b128 {vr(A+4*q,4)}, v{V['t0']} offset:{1024*q}")
    a.e(f"""
    v_mov_b32 v{V['t1']}, s{st}
    ds_read_b32 v{V['t2']}, v{V['t1']} offset:4096
    v_and_b32 v{V['p0']}, 31, v0
    v_lshrrev_b32 v{V['p1']}, 5, v0
    v_lshlrev_b32 v{V['p0']}, 1, v{V['p0']}
    v_lshl_add_u32 v{V['p0']}, v{V['p1']}, 8, v{V['p0']}
    s_lshl_b32 s{st+1}, s{sNH}, 11
    s_add_u32 s{st+1}, s{st+1}, s{sFb}
    v_add_u32 v{V['p0']}, s{st+1}, v{V['p0']}
    s_waitcnt lgkmcnt(0)
    """)
    D = V['D']
    for i in range(16): a.e(f"v_add_f32 v{D+i}, v{D+i}, v{A+i}")
    for i in range(0,16,2): a.e(f"v_cvt_pk_bf16_f32 v{A+i//2}, v{D+i}, v{D+i+1}")
    for i in range(0,16,2):
        r0 = 8*(i>>2)+(i&3); r1 = 8*((i+1)>>2)+((i+1)&3)
        a.e(f"ds_write_b16 v{V['p0']}, v{A+i//2} offset:{64*r0}")
        a.e(f"ds_write_b16_d16_hi v{V['p0']}, v{A+i//2} offset:{64*r1}")
    L = a.newlabel("Lkf")
    a.e(f"""
    s_cmp_eq_u32 s{sNH}, 1
    s_cbranch_scc1 {L}
    v_add_f32 v{V['t2']}, v{V['t2']}, v{V['Xe']}
    v_cvt_pk_bf16_f32 v{V['t2']}, v{V['t2']}, v{V['t2']}
    v_mov_b32 v{V['t1']}, s{sFb}
    v_mov_b32 v{V['p1']}, 0
    v_subrev_u32 v{V['p2']}, 2, v{V['t1']}
    v_cmp_eq_u32 vcc, 63, v0
    s_and_saveexec_b64 s[74:75], vcc
    ds_write_b16 v{V['t1']}, v{V['t2']} offset:4096
    ds_write_b16 v{V['p2']}, v{V['p1']}
    s_mov_b64 exec, s[74:75]
    """)
    a.label(L)
    a.e("s_waitcnt lgkmcnt(0)")

def k_copies(a, R, tid_v, sFb, sKC, KC_COPY, rounds=(0,1), tail=True):
    ck, fj, wa, wb = R, R+1, R+2, R+3
    f = R+4
    ad = R+16
    d = R+28
    al = R+36
    for rnd in rounds:
        a.e(f"v_add_u32 v{ck}, {128*rnd}, v{tid_v}")
        a.e(f"v_lshlrev_b32 v{fj}, 3, v{ck}")
        a.e(f"v_sub_u32 v{fj}, 2048, v{fj}")
        a.e(f"v_cvt_f32_u32 v{fj}, v{fj}")
        for e in range(12): a.e(f"v_add_f32 v{f+e}, {hx(float(-e))}, v{fj}")
        for e in range(12): a.e(f"v_max_f32 v{f+e}, -1.0, v{f+e}")
        for e in range(0,12,2): a.e(f"v_cvt_pk_bf16_f32 v{ad+e}, v{f+e}, v{f+e+1}")
        for e in range(0,12,2):
            a.e(f"v_and_b32 v{f+e+1}, 0xffff0000, v{ad+e}")
            a.e(f"v_lshlrev_b32 v{f+e}, 16, v{ad+e}")
        for e in range(12): a.e(f"v_cvt_i32_f32 v{f+e}, v{f+e}")
        for e in range(12): a.e(f"v_lshl_add_u32 v{ad+e}, v{f+e}, 1, s{sFb}")
        for e in range(12): a.e(f"ds_read_u16 v{f+e}, v{ad+e}")
        a.e(f"v_lshl_add_u32 v{wa}, v{ck}, 4, s{sKC}")
        a.e(f"v_add_u32 v{wb}, {2*KC_COPY}, v{wa}")
        a.e("s_waitcnt lgkmcnt(0)")
        for e in range(0,12,2): a.e(f"v_lshl_or_b32 v{d+e//2}, v{f+e+1}, 16, v{f+e}")
        for i in range(5): a.e(f"v_alignbit_b32 v{al+i}, v{d+i+1}, v{d+i}, 16")
        a.e(f"ds_write_b128 v{wa}, {vr(d,4)}")
        a.e(f"ds_write2_b32 v{wb}, v{d+1}, v{d+2} offset0:0 offset1:1")
        a.e(f"ds_write2_b32 v{wb}, v{d+3}, v{d+4} offset0:2 offset1:3")
        a.e(f"ds_write_b128 v{wa}, {vr(al,4)} offset:{KC_COPY}")
        a.e(f"v_add_u32 v{wb}, {3*KC_COPY}, v{wa}")
        a.e(f"ds_write2_b32 v{wb}, v{al+1}, v{al+2} offset0:0 offset1:1")
        a.e(f"ds_write2_b32 v{wb}, v{al+3}, v{al+4} offset0:2 offset1:3")
    if not tail:
        a.e("s_waitcnt lgkmcnt(0)")
        return
    a.e(f"""
    v_and_b32 v{f}, 3, v{tid_v}
    v_lshrrev_b32 v{f+1}, 2, v{tid_v}
    v_mul_u32_u24 v{f+1}, {KC_COPY}, v{f+1}
    v_lshl_add_u32 v{f}, v{f}, 4, v{f+1}
    v_add_u32 v{f}, s{sKC}, v{f}
    v_mov_b32 v{d}, 0
    v_mov_b32 v{d+1}, 0
    v_mov_b32 v{d+2}, 0
    v_mov_b32 v{d+3}, 0
    v_mov_b32 v{ad}, s{sFb}
    ds_read_u16 v{al}, v{ad}
    v_cmp_gt_u32 vcc, 16, v{tid_v}
    s_and_saveexec_b64 s[74:75], vcc
    ds_write_b128 v{f}, {vr(d,4)} offset:4096
    s_waitcnt lgkmcnt(0)
    v_cmp_eq_u32 vcc, 0, v{tid_v}
    s_and_b64 exec, exec, vcc
    ds_write_b16 v{f}, v{al} offset:4096
    s_mov_b64 exec, s[74:75]
    s_waitcnt lgkmcnt(0)
    """)
```

```python
from common import *

def x_write(a, V, sNH, sTab):
    import kgen
    kgen.kgen_x_write(a, V, sNH, sTab)

def finish(a, V, sNH, sTab, sG, st):
    from kgen import KG_TAB
    A = V['A']; D = V['D']
    a.e(f"""
    s_mul_i32 s{st}, s{sNH}, {2*KG_TAB}
    s_sub_u32 s{st}, {KG_TAB}, s{st}
    s_add_u32 s{st}, s{st}, s{sTab}
    v_lshl_add_u32 v{V['t0']}, v0, 4, s{st}
    """)
    for q in range(4): a.e(f"ds_read_b128 {vr(A+4*q,4)}, v{V['t0']} offset:{1024*q}")
    a.e(f"""
    v_mov_b32 v{V['t1']}, s{st}
    ds_read_b32 v{V['t2']}, v{V['t1']} offset:4096
    v_and_b32 v{V['p0']}, 31, v0
    v_lshrrev_b32 v{V['p1']}, 5, v0
    v_lshlrev_b32 v{V['p0']}, 6, v{V['p0']}
    v_lshl_add_u32 v{V['p0']}, v{V['p1']}, 3, v{V['p0']}       ; 64h' + 8gl
    s_lshl_b32 s{st+1}, s{sNH}, 11
    s_sub_u32 s{st+1}, s{sG}, s{st+1}
    s_add_u32 s{st+1}, s{st+1}, {4088-48}
    v_sub_u32 v{V['p0']}, s{st+1}, v{V['p0']}
    s_waitcnt lgkmcnt(0)
    """)
    for i in range(16): a.e(f"v_add_f32 v{D+i}, v{D+i}, v{A+i}")
    for q in range(4):
        a.e(f"v_cvt_pk_bf16_f32 v{A+2*q}, v{D+4*q+3}, v{D+4*q+2}")
        a.e(f"v_cvt_pk_bf16_f32 v{A+2*q+1}, v{D+4*q+1}, v{D+4*q}")
    for q in range(4): a.e(f"ds_write_b64 v{V['p0']}, {vr(A+2*q,2)} offset:{16*(3-q)}")
    L = a.newlabel("Lkf")
    a.e(f"""
    s_cmp_eq_u32 s{sNH}, 1
    s_cbranch_scc1 {L}
    v_add_f32 v{V['t2']}, v{V['t2']}, v{V['Xe']}
    v_cvt_pk_bf16_f32 v{V['t2']}, v{V['t2']}, v{V['t2']}
    v_mov_b32 v{V['t1']}, s{sG}
    v_mov_b32 v{V['p2']}, 0
    v_mov_b32 v{V['p3']}, 0
    v_subrev_u32 v{V['p1']}, 2, v{V['t1']}
    v_cmp_eq_u32 vcc, 63, v0
    s_and_saveexec_b64 s[74:75], vcc
    ds_write_b16 v{V['p1']}, v{V['t2']}
    ds_write_b64 v{V['t1']}, {vr(V['p2'],2)} offset:4096
    s_mov_b64 exec, s[74:75]
    """)
    a.label(L)
    a.e("s_waitcnt lgkmcnt(0)")

def pk(a, d, lo, hi):
    a.e(f"v_lshl_or_b32 v{d}, v{hi}, 16, v{lo}")

def write4(a, wa, O, KC_COPY):
    for c in range(4): a.e(f"ds_write_b128 v{wa}, {vr(O+4*c,4)} offset:{c*KC_COPY}")

def copies(a, R, tid_v, sNH, sG, sKC, KC_COPY):
    ck, ad, wa = R, R+1, R+2
    x = R+4
    O = R+12
    a.e(f"""
    v_lshl_add_u32 v{ad}, v{tid_v}, 4, s{sG}
    v_subrev_u32 v{ad}, 2, v{ad}
    ds_read_u16 v{x}, v{ad}
    ds_read_u16 v{x+1}, v{ad} offset:16
    v_lshl_add_u32 v{wa}, v{tid_v}, 4, s{sKC}
    v_and_b32 v{ck}, 1, v{tid_v}
    v_cmp_eq_u32 vcc, 0, v{ck}
    s_waitcnt lgkmcnt(0)
    v_cndmask_b32 v{x+2}, v{x+1}, v{x}, vcc
    """)
    A_, B_, S_ = x, x+1, x+2
    pk(a, O+0, A_, A_); pk(a, O+3, B_, B_); pk(a, O+2, S_, B_); pk(a, O+5, A_, S_)
    a.e(f"""
    v_mov_b32 v{O+1}, v{O+0}
    v_mov_b32 v{O+4}, v{O+0}
    v_mov_b32 v{O+6}, v{O+3}
    v_mov_b32 v{O+7}, v{O+3}
    v_mov_b32 v{O+8}, v{O+0}
    v_mov_b32 v{O+9}, v{O+2}
    v_mov_b32 v{O+10}, v{O+3}
    v_mov_b32 v{O+11}, v{O+3}
    v_mov_b32 v{O+12}, v{O+5}
    v_mov_b32 v{O+13}, v{O+3}
    v_mov_b32 v{O+14}, v{O+3}
    v_mov_b32 v{O+15}, v{O+3}
    """)
    write4(a, wa, O, KC_COPY)
    L1 = a.newlabel("Lcb"); L2 = a.newlabel("Lcb")
    a.e(f"""
    v_add_u32 v{ad}, 2048, v{ad}
    v_add_u32 v{wa}, 2048, v{wa}
    s_cmp_eq_u32 s{sNH}, 1
    s_cbranch_scc1 {L1}
    ds_read_u16 v{x}, v{ad}
    ds_read_u16 v{x+1}, v{ad} offset:8
    ds_read_u16 v{x+2}, v{ad} offset:16
    s_waitcnt lgkmcnt(0)
    """)
    A_, B_, C_ = x, x+1, x+2
    pk(a, O+0, A_, A_); pk(a, O+1, A_, B_); pk(a, O+2, B_, B_); pk(a, O+3, C_, C_); pk(a, O+6, B_, C_)
    a.e(f"""
    v_mov_b32 v{O+4}, v{O+0}
    v_mov_b32 v{O+5}, v{O+2}
    v_mov_b32 v{O+7}, v{O+3}
    v_mov_b32 v{O+8}, v{O+1}
    v_mov_b32 v{O+9}, v{O+2}
    v_mov_b32 v{O+10}, v{O+3}
    v_mov_b32 v{O+11}, v{O+3}
    v_mov_b32 v{O+12}, v{O+2}
    v_mov_b32 v{O+13}, v{O+6}
    v_mov_b32 v{O+14}, v{O+3}
    v_mov_b32 v{O+15}, v{O+3}
    """)
    write4(a, wa, O, KC_COPY)
    a.e(f"s_branch {L2}")
    a.label(L1)
    P = R+28
    for k in range(6): a.e(f"ds_read_u16 v{x+k}, v{ad} offset:{4*k}")
    D_ = R+44
    a.e(f"v_subrev_u32 v{ck}, 2, v{ad}")
    a.e(f"ds_read_b32 v{D_}, v{ck}")
    a.e(f"ds_read_b32 v{D_+1}, v{ck} offset:4")
    a.e(f"ds_read_b32 v{D_+2}, v{ck} offset:8")
    a.e(f"ds_read_b32 v{D_+3}, v{ck} offset:12")
    a.e(f"ds_read_b32 v{D_+4}, v{ck} offset:16")
    a.e(f"ds_read_b32 v{D_+5}, v{ck} offset:20")
    a.e("s_waitcnt lgkmcnt(6)")
    F = lambda k: x + k//2
    pk(a, O+0, F(0), F(0)); pk(a, O+1, F(2), F(4)); pk(a, O+2, F(4), F(4)); pk(a, O+3, F(6), F(8))
    pk(a, O+4, F(0), F(2)); pk(a, O+6, F(4), F(6)); pk(a, O+7, F(8), F(8)); pk(a, O+15, F(8), F(10))
    a.e(f"""
    v_mov_b32 v{O+5}, v{O+2}
    v_mov_b32 v{O+8}, v{O+1}
    v_mov_b32 v{O+9}, v{O+2}
    v_mov_b32 v{O+10}, v{O+3}
    v_mov_b32 v{O+11}, v{O+7}
    v_mov_b32 v{O+12}, v{O+2}
    v_mov_b32 v{O+13}, v{O+6}
    v_mov_b32 v{O+14}, v{O+7}
    s_waitcnt lgkmcnt(0)
    """)
    for k in range(4): a.e(f"v_alignbit_b32 v{P+k}, v{D_+k+1}, v{D_+k}, 16")
    for k in range(4): a.e(f"v_mov_b32 v{P+4+k}, v{D_+1+k}")
    for k in range(3): a.e(f"v_mov_b32 v{P+8+k}, v{P+1+k}")
    a.e(f"v_alignbit_b32 v{P+11}, v{D_+5}, v{D_+4}, 16")
    for k in range(4): a.e(f"v_mov_b32 v{P+12+k}, v{D_+2+k}")
    a.e("v_cmp_lt_u32 vcc, 31, v0")
    for k in range(16): a.e(f"v_cndmask_b32 v{O+k}, v{O+k}, v{P+k}, vcc")
    write4(a, wa, O, KC_COPY)
    a.label(L2)
    a.e("s_waitcnt lgkmcnt(0)")

def tail_patch(a, R, sNH, sG, sKC, KC_COPY):
    L = a.newlabel("Ltp"); L2 = a.newlabel("Ltp")
    f, d, g = R, R+2, R+6
    a.e(f"""
    v_mov_b32 v{g}, s{sG}
    ds_read_u16 v{g+1}, v{g} offset:{2*2047}
    ds_read_u16 v{g+2}, v{g} offset:{2*1537}
    ds_read_u16 v{g+3}, v{g} offset:{2*1792}
    s_mov_b64 s[74:75], exec
    s_cmp_eq_u32 s{sNH}, 1
    s_cbranch_scc1 {L}
    v_and_b32 v{f}, 3, v0
    v_lshrrev_b32 v{f+1}, 2, v0
    v_mul_u32_u24 v{f+1}, {KC_COPY}, v{f+1}
    v_lshl_add_u32 v{f}, v{f}, 4, v{f+1}
    v_add_u32 v{f}, s{sKC}, v{f}
    v_mov_b32 v{d}, 0
    v_mov_b32 v{d+1}, 0
    v_mov_b32 v{d+2}, 0
    v_mov_b32 v{d+3}, 0
    s_mov_b64 exec, 0xffff
    ds_write_b128 v{f}, {vr(d,4)} offset:4096
    s_waitcnt lgkmcnt(0)
    s_mov_b64 exec, 1
    v_mov_b32 v{g}, s{sKC}
    ds_write_b16 v{g}, v{g+1} offset:4096
    ds_write_b16 v{g}, v{g+2} offset:{3*KC_COPY + 2*1535}
    s_branch {L2}
    """)
    a.label(L)
    a.e(f"""
    s_waitcnt lgkmcnt(0)
    s_mov_b64 exec, 1
    v_mov_b32 v{g}, s{sKC}
    ds_write_b16 v{g}, v{g+3} offset:{2*KC_COPY + 2*1791}
    ds_write_b16 v{g}, v{g+3} offset:{3*KC_COPY + 2*1790}
    """)
    a.label(L2)
    a.e("s_mov_b64 exec, s[74:75]")
    a.e("s_waitcnt lgkmcnt(0)")
```

```python
from fused3 import *
import fused3, fused_head as FH, kpost
CFG = fused3.CFG

KC_STR = 2*KG_TAB
LDS_FB4 = LDS_U
LDS_FB4 = 83968
F_SYNC1 = 40; F_SYNC2 = 56; F_SYNC3 = 72; F_CONV = 16

def x_dma16r(a, vt):
    t = S_T
    a.e(f"""
    s_lshl_b32 s{t}, s{S_RT}, 16
    s_lshl_b32 s{t+1}, s3, 14
    s_add_u32 s{t}, s{t}, s{t+1}
    s_add_u32 s{t+1}, s{t+1}, {LDS_X}
    s_lshl_b32 s{t+3}, s{S_ROT}, 3
    s_and_b32 s{t+2}, s{S_CT}, 1
    s_lshl_b32 s{t+2}, s{t+2}, 3
    """)
    for i in range(16):
        v = vt + (i & 1)
        a.e(f"""
        s_xor_b32 s{t+4}, s{t+2}, {i}
        v_xor_b32 v{v}, s{t+4}, v0
        s_lshl_b32 s{t+4}, s{t+4}, 10
        v_add_u32 v{v}, s{t+3}, v{v}
        s_add_u32 m0, s{t+1}, s{t+4}
        v_and_b32 v{v}, 63, v{v}
        s_add_u32 s{t+5}, s{t}, s{t+4}
        v_lshlrev_b32 v{v}, 4, v{v}
        buffer_load_dwordx4 v{v}, {sq(SRD_X)}, s{t+5} offen lds
        """)

def pair_sync(a, flag_off, v0_, v1_):
    t = S_T
    L = a.newlabel("Lps"); D = a.newlabel("Lpd")
    a.e(f"""
    s_lshl_b32 s{t+4}, s{S_HW}, 2
    s_add_u32 s{t+4}, s{t+4}, {LDS_CNT+flag_off}
    v_mov_b32 v{v0_}, s{t+4}
    v_mov_b32 v{v1_}, 1
    ds_write_b32 v{v0_}, v{v1_}
    s_xor_b32 s{t+4}, s{t+4}, 4
    v_mov_b32 v{v0_}, s{t+4}
    s_mov_b32 s{S_SPIN}, 1000000
    """)
    a.label(L)
    a.e(f"""
    ds_read_b32 v{v1_}, v{v0_}
    s_waitcnt lgkmcnt(0)
    v_readfirstlane_b32 s{t+4}, v{v1_}
    s_cmp_eq_u32 s{t+4}, 1
    s_cbranch_scc1 {D}
    s_sub_u32 s{S_SPIN}, s{S_SPIN}, 1
    s_cmp_lg_u32 s{S_SPIN}, 0
    s_cbranch_scc1 {L}
    """)
    a.label(D)

F_GDONE = 12
def lds_wait_cnt(a, off, n, v0_, v1_):
    t = S_T
    L = a.newlabel("Lwc"); D = a.newlabel("Lwd")
    a.e(f"""
    v_mov_b32 v{v0_}, {LDS_CNT+off}
    s_mov_b32 s{S_SPIN}, 2000000
    """)
    a.label(L)
    a.e(f"""
    ds_read_b32 v{v1_}, v{v0_}
    s_waitcnt lgkmcnt(0)
    v_readfirstlane_b32 s{t+4}, v{v1_}
    s_cmp_ge_u32 s{t+4}, {n}
    s_cbranch_scc1 {D}
    s_sub_u32 s{S_SPIN}, s{S_SPIN}, 1
    s_cmp_lg_u32 s{S_SPIN}, 0
    s_cbranch_scc1 {L}
    """)
    a.label(D)
def lds_arrive(a, off, v0_, v1_):
    a.e(f"""
    v_mov_b32 v{v0_}, {LDS_CNT+off}
    v_mov_b32 v{v1_}, 1
    s_mov_b64 s[{S_EX}:{S_EX+1}], exec
    s_mov_b64 exec, 1
    ds_add_u32 v{v0_}, v{v1_}
    s_mov_b64 exec, s[{S_EX}:{S_EX+1}]
    """)

S_R2 = 77
def g2_map4(a):
    t = S_T
    if CFG.get('map48'):
        a.e(f"""
        s_and_b32 s{t}, s2, 7
        s_lshr_b32 s{t+1}, s2, 3
        s_lshl_b32 s{S_RT2}, s{t}, 2
        s_and_b32 s{t+2}, s{t+1}, 3
        s_add_u32 s{S_RT2}, s{S_RT2}, s{t+2}
        s_lshr_b32 s{S_DT}, s{t+1}, 2
        """)
    a.e(f"""
    s_mul_i32 s{S_S0}, s3, 43
    s_add_u32 s{S_NS}, s{S_S0}, 48
    s_add_u32 s{S_S0}, s{S_S0}, 5
    s_lshr_b32 s{S_S0}, s{S_S0}, 3
    s_lshr_b32 s{S_NS}, s{S_NS}, 3
    s_sub_u32 s{S_NS}, s{S_NS}, s{S_S0}
    """)

S_STEP = 94
def p2_setup(a, rt_sgpr, dt_sgpr):
    t = S_T
    a.e(f"""
    s_mul_i32 s{t}, s3, 43
    s_add_u32 s{t+1}, s{t}, 48
    s_add_u32 s{t}, s{t}, 5
    s_lshr_b32 s{t}, s{t}, 3                 ; S0
    s_lshr_b32 s{t+1}, s{t+1}, 3
    s_sub_u32 s{t+1}, s{t+1}, s{t}           ; n
    s_add_u32 s{t+2}, s{rt_sgpr}, s{dt_sgpr}
    s_and_b32 s{t+2}, s{t+2}, 7
    s_cmp_ge_u32 s{t+2}, s{t+1}
    s_cselect_b32 s{t+3}, s{t+1}, 0
    s_sub_u32 s{t+2}, s{t+2}, s{t+3}         ; r
    """)
    for k in range(6):
        a.e(f"""
        s_add_u32 s{t+4}, s{t+2}, {k}
        s_cmp_ge_u32 s{t+4}, s{t+1}
        s_cselect_b32 s{t+3}, s{t+1}, 0
        s_sub_u32 s{t+4}, s{t+4}, s{t+3}
        s_add_u32 s{S_STEP+k}, s{t+4}, s{t}
        """)
    a.e(f"""
    s_lshl_b32 s80, s{dt_sgpr}, 7
    s_mul_i32 s81, s3, {W2_STAGE}
    s_add_u32 s81, s81, {LDS_W2}
    s_mov_b32 s{S_NS2}, s{t+1}
    """)
S_NS2 = 93
def w2_groups(slots, vD):
    L = []
    for k in slots:
        for q in range(4):
            g = []
            if q == 0: g += [f"s_lshl_b32 s69, s{S_STEP+k}, 15", "s_add_u32 s69, s69, s80"]
            g += [f"s_add_u32 m0, s81, {(k%3)*4096 + q*1024}",
                  f"s_add_u32 s68, s69, {q*8192}",
                  f"buffer_load_dwordx4 v{vD}, {sq(SRD_W)}, s68 offen lds"]
            L.append(g)
    return L
def h_load4(a, k, vL):
    buf = HFB[k % 5]
    a.e(f"s_lshl_b32 s69, s{S_STEP+k}, 12")
    a.e(f"s_add_u32 s69, s69, s{S_HB}")
    for ls in range(4):
        a.e(f"s_add_u32 s68, s69, {ls*1024}")
        a.e(f"buffer_load_dwordx4 {vr(buf+4*ls,4)}, v{vL}, {sq(SRD_WS)}, s68 offen sc1")

def tail4(a, st_=None):
    t = S_T
    mk = (lambda n: st_.mark(n)) if st_ else (lambda n: None)
    for g in w2_groups([3,4], VD2):
        for l in g: a.e(l)
    L6 = a.newlabel("Lno6")
    a.e(f"s_cmp_lt_u32 s{S_NS2}, 6"); a.e(f"s_cbranch_scc1 {L6}")
    for g in w2_groups([5], VD2):
        for l in g: a.e(l)
    a.label(L6)
    VX = 10
    a.e(f"""
    v_lshlrev_b32 v{VL2}, 4, v0
    s_mul_i32 s{S_HB}, s{S_RT2}, {H_RT}
    s_add_u32 s{S_HB}, s{S_HB}, {WS_H}
    s_lshl_b32 s{t}, s{S_RT2}, 3
    s_add_u32 s{t}, s{t}, s3
    s_lshl_b32 s{t}, s{t}, 6
    s_add_u32 s78, s{t}, {FB_OFF}
    v_lshrrev_b32 v2, 4, v0
    v_lshrrev_b32 v3, 2, v0
    v_and_b32 v3, 3, v3
    v_and_b32 v1, 3, v0
    v_lshlrev_b32 v2, 5, v2
    v_lshl_add_u32 v2, v1, 3, v2
    v_lshl_add_u32 v3, v3, 12, v2
    s_lshl_b32 s{t}, s{S_RT2}, 16
    s_lshl_b32 s{t+1}, s{S_DT}, 7
    s_add_u32 s{t}, s{t}, s{t+1}
    s_lshr_b32 s{t+2}, s3, 1
    s_lshl_b32 s{t+2}, s{t+2}, 14
    s_add_u32 s{t}, s{t}, s{t+2}
    s_and_b32 s{t+2}, s3, 1
    s_lshl_b32 s{t+2}, s{t+2}, 11
    s_add_u32 s{t}, s{t}, s{t+2}
    v_add_u32 v3, s{t}, v3
    buffer_load_dwordx2 {vr(VX,2)}, v3, {sq(SRD_X)}, 0 offen
    buffer_load_dwordx2 {vr(VX+2,2)}, v3, {sq(SRD_X)}, 0 offen offset:1024
    v_add_u32 v2, s{t+1}, v2
    global_load_dwordx2 {vr(VX+4,2)}, v2, {sp(S_B2)}
    v_mov_b32 v1, 0
    """)
    poll_flags(a, 1, 1, 78, 2)
    mk('hflag')
    for k in range(5): h_load4(a, k, VL2)
    w2_read(a, [3,4,5], VA2)
    a.e(f"""
    s_lshr_b32 s{t+1}, s3, 1
    s_lshl_b32 s{t}, s{S_DT}, 5
    s_lshl_b32 s{t+2}, s{t+1}, 3
    s_add_u32 s{t}, s{t}, s{t+2}
    s_lshl_b32 s{t}, s{t}, 6
    s_add_u32 s78, s{t}, {FC_OFF}
    v_lshlrev_b32 v1, 6, v0
    """)
    for s in range(5):
        a.e(f"s_waitcnt vmcnt({4*(4-s)})")
        g2_mfma(a, s)
    L6 = a.newlabel("Lno6")
    a.e(f"s_cmp_lt_u32 s{S_NS2}, 6"); a.e(f"s_cbranch_scc1 {L6}")
    h_load4(a, 5, VL2)
    a.e("s_waitcnt vmcnt(0)")
    g2_mfma(a, 5)
    a.label(L6)
    mk('g2mm')
    poll_flags(a, 8, 1, 78, 2)
    a.e(f"""
    v_and_b32 v1, 15, v0
    v_lshlrev_b32 v1, 12, v1
    v_lshrrev_b32 v2, 4, v0
    v_lshl_add_u32 v1, v2, 3, v1
    s_lshr_b32 s{t+1}, s3, 1
    s_lshl_b32 s{t}, s{S_DT}, 2
    s_add_u32 s{t}, s{t}, s{t+1}
    s_lshl_b32 s{t}, s{t}, 16
    s_lshl_b32 s{t+2}, s{S_RT2}, 7
    s_add_u32 s{t}, s{t}, s{t+2}
    s_and_b32 s{t+2}, s3, 1
    s_lshl_b32 s{t+2}, s{t+2}, 6
    s_add_u32 s{t}, s{t}, s{t+2}
    s_add_u32 s{t}, s{t}, {WS_AOT}
    buffer_load_dwordx2 v[16:17], v1, {sq(SRD_WS)}, s{t} offen sc1
    buffer_load_dwordx2 v[18:19], v1, {sq(SRD_WS)}, s{t} offen offset:32 sc1
    s_waitcnt vmcnt(0)
    v_lshlrev_b32 v24, 16, v16
    v_and_b32 v25, 0xffff0000, v16
    v_lshlrev_b32 v26, 16, v17
    v_and_b32 v27, 0xffff0000, v17
    v_lshlrev_b32 v28, 16, v18
    v_and_b32 v29, 0xffff0000, v18
    v_lshlrev_b32 v30, 16, v19
    v_and_b32 v31, 0xffff0000, v19
    """)
    Ld = a.newlabel("Laod")
    for w in range(8):
        Ln = a.newlabel("Laon")
        a.e(f"s_cmp_lg_u32 s3, {w}"); a.e(f"s_cbranch_scc1 {Ln}")
        for k in range(2):
            A_ = acc2(2*(w&1)+k, w>>1)
            for i in range(4): a.e(f"v_add_f32 v{A_+i}, v{A_+i}, v{24+4*k+i}")
        a.e(f"s_branch {Ld}")
        a.label(Ln)
    a.label(Ld)
    mk('ao')
    a.e("s_barrier")
    a.e(f"s_lshl_b32 s{t}, s3, 8")
    a.e(f"s_mov_b32 m0, s{t}")
    for idx in range(32):
        a.e(f"ds_write_addtid_b32 v{ACC2+idx} offset:{2048*idx}")
    a.e(f"s_add_u32 m0, s{t}, 63740")
    for idx in range(32, 64):
        a.e(f"ds_write_addtid_b32 v{ACC2+idx} offset:{2048*idx - 63740}")
    a.e("s_waitcnt lgkmcnt(0)")
    mk('pw')
    a.e("s_barrier")
    a.e(f"""
    v_lshrrev_b32 v2, 4, v0
    v_lshlrev_b32 v2, 13, v2
    v_and_b32 v1, 15, v0
    v_lshl_add_u32 v2, v1, 4, v2
    s_lshr_b32 s{t}, s3, 1
    s_lshl_b32 s{t}, s{t}, 15
    s_and_b32 s{t+1}, s3, 1
    s_lshl_b32 s{t+1}, s{t+1}, 12
    s_add_u32 s{t}, s{t}, s{t+1}
    v_add_u32 v2, s{t}, v2
    """)
    T = ACC2
    for k in range(2):
        for w in range(8):
            a.e(f"ds_read_b128 {vr(T+32*k+4*w,4)}, v2 offset:{2048*k + 256*w}")
        if k == 0: a.e("s_waitcnt lgkmcnt(4)")
    U = 24
    a.e(f"""
    v_lshlrev_b32 v{U+8}, 16, v{VX+4}
    v_and_b32 v{U+9}, 0xffff0000, v{VX+4}
    v_lshlrev_b32 v{U+10}, 16, v{VX+5}
    v_and_b32 v{U+11}, 0xffff0000, v{VX+5}
    """)
    for k in range(2):
        a.e(f"s_waitcnt lgkmcnt({8 if k == 0 else 0})")
        B_ = T + 32*k
        for step in (4,2,1):
            for w in range(step):
                for e in (0,2):
                    a.e(f"v_pk_add_f32 {vr(B_+4*w+e,2)}, {vr(B_+4*w+e,2)}, {vr(B_+4*(w+step)+e,2)}")
        a.e(f"""
        v_lshlrev_b32 v{U}, 16, v{VX+2*k}
        v_and_b32 v{U+1}, 0xffff0000, v{VX+2*k}
        v_lshlrev_b32 v{U+2}, 16, v{VX+2*k+1}
        v_and_b32 v{U+3}, 0xffff0000, v{VX+2*k+1}
        v_pk_add_f32 {vr(U,2)}, {vr(U,2)}, {vr(U+8,2)}
        v_pk_add_f32 {vr(U+2,2)}, {vr(U+2,2)}, {vr(U+10,2)}
        v_pk_add_f32 {vr(U,2)}, {vr(U,2)}, {vr(B_,2)}
        v_pk_add_f32 {vr(U+2,2)}, {vr(U+2,2)}, {vr(B_+2,2)}
        v_cvt_pk_bf16_f32 v{U+4+2*k}, v{U}, v{U+1}
        v_cvt_pk_bf16_f32 v{U+5+2*k}, v{U+2}, v{U+3}
        buffer_store_dwordx2 {vr(U+4+2*k,2)}, v3, {sq(SRD_OUT)}, 0 offen offset:{1024*k}
        """)
    mk('fin')

def rt2dt_regs(a):
    if not CFG.get('map48'): return S_RT, S_CT
    t = S_T
    a.e(f"""
    s_and_b32 s{t}, s2, 7
    s_lshr_b32 s{t+1}, s2, 3
    s_lshl_b32 s92, s{t}, 2
    s_and_b32 s{t+2}, s{t+1}, 3
    s_add_u32 s92, s92, s{t+2}
    s_lshr_b32 s79, s{t+1}, 2
    """)
    return 92, 79

def kernel_fused(stamp=None):
    a = Asm()
    SB = 84
    sg = Stamps(a, stamp == 'g', base=SB); sh = Stamps(a, stamp == 'h', base=SB)
    both = Stamps(a, stamp is not None, base=SB)
    both.mark('start')
    prologue(a, 256, "L_end")
    g1_map(a)
    a.e("s_waitcnt lgkmcnt(0)")
    both.mark('karg')
    sg.n = sh.n = both.n; sg.names = list(both.names); sh.names = list(both.names)
    a.e("s_cmp_ge_u32 s3, 4")
    a.e("s_cbranch_scc1 L_helper")
    t = S_T
    make_srd(a, SRD_X, S_X, 2097152)
    make_srd(a, SRD_W, S_W1, 1409024)
    a.e("s_barrier")
    x_dma16r(a, 1)
    make_srd(a, SRD_WS, S_WS, WS_SIZE)
    make_srd(a, SRD_OUT, S_OUT, 2097152)
    w1_lane_setup(a, AF1, AF1+4)
    w1_issue(a, 0, AF1, 3)
    gemm_wave_setup(a)
    a.e(f"""
    v_mov_b32 v1, {LDS_CNT}
    v_lshl_add_u32 v1, v0, 2, v1
    v_mov_b32 v2, 0
    v_cmp_gt_u32 vcc, 24, v0
    s_and_saveexec_b64 s[{S_EX}:{S_EX+1}], vcc
    ds_write_b32 v1, v2
    s_mov_b64 exec, s[{S_EX}:{S_EX+1}]
    s_waitcnt lgkmcnt(0)
    s_waitcnt vmcnt(6)
    """)
    sg.mark('xland')
    a.e("s_barrier")
    sg.mark('B0')
    a.e("s_setprio 1")
    gemm_x_stats(a)
    a.e("s_waitcnt vmcnt(0)")
    sg.mark('xn')
    a.e("s_barrier")
    for l in a_reads(0, AF0): a.e(l)
    gemm_xn_store(a)
    a.e(f"s_cmp_eq_u32 s{S_LH}, 1")
    a.e("s_cbranch_scc1 L_gl1")
    for lh in range(2):
        if lh == 1: a.label("L_gl1")
        for st in range(8):
            if st == 2: a.e("s_waitcnt vmcnt(0)")
            if st < 7: a.e("s_barrier")
            if lh == 0 and st in (0,4): sg.mark(f'S{st}')
            gemm_stage(a, st, lh)
        cs_write(a, lh)
        if lh == 0: a.e("s_branch L_gdone")
    a.label("L_gdone")
    lds_arrive(a, F_GDONE, 1, 2)
    make_srd(a, SRD_W, S_W2, 1409024)
    read_nonce_lds(a, 1)
    r2, d2 = rt2dt_regs(a)
    p2_setup(a, r2, d2)
    w2_dma_lane(a, 18, 1)
    lds_wait_cnt(a, F_GDONE, 4, 1, 2)
    sg.mark('E0')
    a.e("s_setprio 2")
    if CFG.get('gsleep'):
        for _ in range(CFG['gsleep']): a.e("s_sleep 16")
        sg.mark('E0b')
    if CFG.get('nodma'):
        gemm_epilogue2(a, [])
        for g in w2_groups([0,1,2], 18):
            for l in g: a.e(l)
        a.e("s_waitcnt vmcnt(0)")
    else:
        gemm_epilogue2(a, w2_groups([0,1,2], 18))
    sg.mark('epi')
    a.e(f"v_mov_b32 v{VD2}, v18")
    w2_read_lane(a, VA2, 1)
    Lw = a.newlabel("Lw"); Lw2 = a.newlabel("Lw")
    a.e(f"""
    s_mul_i32 s{t}, s{S_FH}, 3
    s_add_u32 s{t}, s{t}, 2
    s_cmp_ge_u32 s{t}, s{S_NP}
    s_cbranch_scc1 {Lw}
    s_waitcnt vmcnt(3)
    s_branch {Lw2}
    """)
    a.label(Lw); a.e("s_waitcnt vmcnt(1)"); a.label(Lw2)
    w2_read(a, [0,1,2], VA2)
    a.e("s_waitcnt vmcnt(0)")
    a.e(f"""
    s_lshl_b32 s{t}, s{S_RT}, 3
    s_add_u32 s{t}, s{t}, s{S_CT}
    s_lshl_b32 s{t}, s{t}, 6
    s_add_u32 s{t}, s{t}, {FB_OFF}
    """)
    lds_arrive_signal(a, 4, 4, t, 1)
    a.e("s_setprio 0")
    sg.mark('sigB')
    g2_map4(a)
    a.e("s_branch L_tail")
    a.label("L_helper")
    if CFG.get('hprio'): a.e(f"s_setprio {CFG['hprio']}")
    a.e(f"s_sub_u32 s{S_HW}, s3, 4")
    V = kgen.kgen_vmap(8); V['transposed'] = True
    a.e(f"""
    s_lshr_b32 s{S_T}, s{S_HW}, 1
    s_lshl_b32 s{S_KC}, s2, 1
    s_add_u32 s{S_KC}, s{S_KC}, s{S_T}
    s_and_b32 s{S_KNH}, s{S_HW}, 1
    """)
    kgen.kgen_load(a, V, S_KC, S_KNH, S_T)
    a.e(f"""
    s_lshl_b32 s{S_T}, s{S_HW}, 6
    v_add_u32 v145, s{S_T}, v0
    s_lshl_b32 s{S_T+1}, s{S_P}, 5
    v_add_u32 v146, s{S_T+1}, v145
    v_min_u32 v146, 1375, v146
    v_lshlrev_b32 v146, 1, v146
    global_load_ushort v146, v146, {sp(S_B1)}
    s_lshl_b32 s{S_T}, s{S_KC}, 1
    v_mov_b32 v147, s{S_T}
    global_load_ushort v147, v147, {sp(S_DSK)}
    """)
    a.e("s_barrier")
    make_srd(a, SRD_X, S_X, 2097152)
    make_srd(a, SRD_W, S_W1, 1409024)
    make_srd(a, SRD_WS, S_WS, WS_SIZE)
    make_srd(a, SRD_OUT, S_OUT, 2097152)
    Ln = a.newlabel("Lnn")
    a.e(f"""
    s_mul_i32 s{S_KTAB}, s{S_HW}, {KG_TAB}
    s_add_u32 s{S_KTAB}, s{S_KTAB}, {LDS_KG}
    s_cmp_lg_u32 s2, 0
    s_cbranch_scc1 {Ln}
    s_cmp_lg_u32 s3, 4
    s_cbranch_scc1 {Ln}
    s_memrealtime s[{S_T}:{S_T+1}]
    s_waitcnt lgkmcnt(0)
    s_or_b32 s{S_T}, s{S_T}, 1
    v_mov_b32 v1, s{S_T}
    v_mov_b32 v2, 0
    s_mov_b64 s[{S_EX}:{S_EX+1}], exec
    s_mov_b64 exec, 1
    global_store_dword v2, v1, {sp(S_DBG)} sc1
    s_mov_b64 exec, s[{S_EX}:{S_EX+1}]
    """)
    a.label(Ln)
    kgen.kgen_addr_setup(a, V, S_KTAB)
    w1_lane_setup(a, 232, 236)
    a.e(f"s_mov_b32 m0, s{S_KTAB}")
    a.e("s_waitcnt vmcnt(0)")
    sh.mark('par')
    ch = list(kgen.kgen_chunks(V, S_KK, None)[:-1])
    ch.append(lambda a: kgen.kgen_x_write(a, V, S_KNH, S_KTAB))
    pos = [0]
    def bg(n, scalar=True):
        if n <= 0 or pos[0] >= len(ch): return
        a.e(f"s_mov_b32 m0, s{S_KTAB}")
        for f in ch[pos[0]:pos[0]+n]:
            if getattr(f, 'is_step', False): f(a, scalar)
            else: f(a)
        pos[0] = min(len(ch), pos[0]+n)
    sched = CFG.get('sched', [26, 14, 0, 0, 0, 0, 0, 2, 5])
    bg(sched[0], scalar=False)
    sh.mark('kgA')
    a.e("s_barrier")
    w1_issue(a, 1, 232, S_HW)
    Ln2 = a.newlabel("Lnn")
    a.e(f"""
    s_cmp_lg_u32 s3, 4
    s_cbranch_scc1 {Ln2}
    v_mov_b32 v1, 0
    global_load_dword v2, v1, {sp(S_DBG)} sc1
    """)
    a.label(Ln2)
    bg(sched[1])
    a.e(f"""
    v_lshlrev_b32 v146, 16, v146
    v_lshlrev_b32 v144, 2, v145
    v_add_u32 v144, {LDS_B1}, v144
    v_cmp_gt_u32 vcc, 192, v145
    s_and_saveexec_b64 s[{S_EX}:{S_EX+1}], vcc
    ds_write_b32 v144, v146
    s_mov_b64 exec, s[{S_EX}:{S_EX+1}]
    v_lshlrev_b32 v147, 16, v147
    v_readfirstlane_b32 s35, v147
    """)
    Ln3 = a.newlabel("Lnn"); Lp = a.newlabel("Lnp"); Lq = a.newlabel("Lnq")
    a.e(f"""
    s_cmp_lg_u32 s3, 4
    s_cbranch_scc1 {Ln3}
    s_mov_b32 s{S_SPIN}, 200000
    """)
    a.label(Lp)
    a.e(f"""
    s_waitcnt vmcnt(0)
    v_readfirstlane_b32 s{S_T}, v2
    s_cmp_lg_u32 s{S_T}, 0
    s_cbranch_scc1 {Lq}
    s_sub_u32 s{S_SPIN}, s{S_SPIN}, 1
    s_cmp_eq_u32 s{S_SPIN}, 0
    s_cbranch_scc1 {Lq}
    s_sleep 2
    v_mov_b32 v1, 0
    global_load_dword v2, v1, {sp(S_DBG)} sc1
    s_branch {Lp}
    """)
    a.label(Lq)
    a.e(f"""
    v_mov_b32 v1, {LDS_CNT+32}
    ds_write_b32 v1, v2
    """)
    a.label(Ln3)
    a.e("s_waitcnt lgkmcnt(0)")
    sh.mark('kgB')
    a.e("s_barrier")
    w1_issue(a, 2, 232, S_HW)
    read_nonce_lds(a, 1)
    bg(sched[2])
    a.e("s_waitcnt vmcnt(6)")
    a.e("s_barrier")
    sh.mark('hS0')
    w1_issue(a, 3, 232, S_HW)
    bg(sched[3])
    a.e("s_waitcnt vmcnt(6)")
    a.e("s_barrier")
    w1_issue(a, 4, 232, S_HW)
    bg(sched[4])
    a.e("s_waitcnt vmcnt(6)")
    a.e("s_barrier")
    La = a.newlabel("Lsa")
    a.e(f"""
    s_cmp_lg_u32 s3, 4
    s_cbranch_scc1 {La}
    s_lshl_b32 s{S_T}, s{S_CT}, 5
    s_add_u32 s{S_T}, s{S_T}, s{S_RT}
    s_lshl_b32 s{S_T}, s{S_T}, 6
    s_add_u32 s{S_T}, s{S_T}, {FA_OFF}
    v_mov_b32 v1, 0
    v_mov_b32 v2, s{S_NONCE}
    s_mov_b64 s[{S_EX}:{S_EX+1}], exec
    s_mov_b64 exec, 1
    buffer_store_dword v2, v1, {sq(SRD_WS)}, s{S_T} offen sc1
    s_mov_b64 exec, s[{S_EX}:{S_EX+1}]
    """)
    a.label(La)
    w1_issue(a, 5, 232, S_HW)
    bg(sched[5])
    a.e("s_waitcnt vmcnt(6)")
    a.e("s_barrier")
    w1_issue(a, 6, 232, S_HW)
    bg(sched[6])
    a.e("s_waitcnt vmcnt(6)")
    a.e("s_barrier")
    w1_issue(a, 7, 232, S_HW)
    bg(sched[7])
    a.e("s_waitcnt vmcnt(6)")
    a.e("s_barrier")
    bg(sched[8])
    a.e("s_waitcnt vmcnt(0)")
    a.e("s_barrier")
    sh.mark('hS6')
    if CFG.get('w2pf', 1):
        Lpf = a.newlabel("Lpf")
        a.e(f"s_cmp_lg_u32 s3, 7"); a.e(f"s_cbranch_scc1 {Lpf}")
        a.e(f"""
        s_lshr_b32 s{t}, s2, 3
        s_mul_i32 s{t}, s{t}, {43*1024}
        s_and_b32 s{t+1}, s2, 1
        s_lshl_b32 s{t+1}, s{t+1}, 9
        s_add_u32 s{t}, s{t}, s{t+1}
        v_lshrrev_b32 v154, 2, v0
        v_lshlrev_b32 v154, 10, v154
        v_and_b32 v155, 3, v0
        v_lshl_add_u32 v154, v155, 7, v154
        s_mov_b32 s64, s{S_W2}
        s_and_b32 s65, s{S_W2+1}, 0xffff
        s_mov_b32 s66, 1409024
        s_mov_b32 s67, 0x20000
        """)
        for i in range(3):
            a.e(f"s_add_u32 s{t+1}, s{t}, {i*16384}")
            a.e(f"buffer_load_dword v{164+i}, v154, s[64:67], s{t+1} offen")
        a.label(Lpf)
    a.e(f"""
    v_lshlrev_b32 v150, 6, v0
    s_lshr_b32 s{S_T}, s2, 5
    s_lshl_b32 s{S_T}, s{S_T}, 11
    s_add_u32 s92, s{S_T}, {FA_OFF}
    """)
    bg(100)
    sh.mark('kgC')
    pair_sync(a, F_SYNC3, 1, 2)
    lds_wait_cnt(a, F_GDONE, 4, 1, 2)
    sh.mark('gdone')
    a.e(f"""
    s_lshr_b32 s{S_T}, s{S_HW}, 1
    s_lshl_b32 s80, s{S_T}, 13
    s_add_u32 s80, s80, {LDS_RED + 16}
    s_mul_i32 s83, s{S_T}, {KC_STR}
    s_add_u32 s83, s83, {LDS_KG}
    """)
    if CFG.get('hsleep'):
        for _ in range(CFG['hsleep']): a.e("s_sleep 16")
    poll_flags(a, 32, 150, 92, 151)
    a.e(f"""
    s_lshl_b32 s{S_T}, s{S_KNH}, 6
    v_add_u32 v152, s{S_T}, v0
    s_lshr_b32 s{S_T+1}, s{S_HW}, 1
    s_lshl_b32 s{S_T+2}, s2, 1
    s_add_u32 s{S_T+2}, s{S_T+2}, s{S_T+1}
    s_lshl_b32 s{S_T+2}, s{S_T+2}, 12
    s_add_u32 s{S_T+2}, s{S_T+2}, {WS_XNT}
    v_lshlrev_b32 v153, 4, v152
    buffer_load_dwordx4 v[156:159], v153, {sq(SRD_WS)}, s{S_T+2} offen sc1
    buffer_load_dwordx4 v[160:163], v153, {sq(SRD_WS)}, s{S_T+2} offen offset:2048 sc1
    s_mul_i32 s{S_T+3}, s{S_T+1}, {U_CH}
    s_add_u32 s{S_T+3}, s{S_T+3}, {LDS_U}
    v_add_u32 v153, s{S_T+3}, v153
    """)
    kpost.finish(a, V, S_KNH, S_KTAB, 80, S_T+2)
    pair_sync(a, F_SYNC2, 1, 2)
    sh.mark('kfin')
    a.e("v_mov_b32 v8, v152")
    kpost.copies(a, 12, 8, S_KNH, 80, 83, KC_COPY)
    kpost.tail_patch(a, 12, S_KNH, 80, 83, KC_COPY)
    a.e(f"""
    v_mov_b32 v72, 0
    v_mov_b32 v73, 0
    v_mov_b32 v74, 0
    v_mov_b32 v75, 0
    v_cmp_gt_u32 vcc, 30, v8
    s_and_saveexec_b64 s[{S_EX}:{S_EX+1}], vcc
    ds_write_b128 v153, v[72:75]
    s_mov_b64 exec, s[{S_EX}:{S_EX+1}]
    s_waitcnt vmcnt(0)
    ds_write_b128 v153, v[156:159] offset:{U_PAD}
    ds_write_b128 v153, v[160:163] offset:{U_PAD+2048}
    """)
    C = conv.conv_vmap(8)
    r2, d2 = rt2dt_regs(a)
    p2_setup(a, r2, d2)
    a.e(f"""
    s_lshr_b32 s{S_T}, s{S_HW}, 1
    s_mul_i32 s76, s{S_T}, {KC_STR}
    s_add_u32 s76, s76, {LDS_KG}
    s_mul_i32 s77, s{S_T}, {U_CH}
    s_add_u32 s77, s77, {LDS_U}
    s_and_b32 s78, s{S_HW}, 1
    """)
    conv.conv_addr_setup(a, C, 76, 77, 78, S_T)
    make_srd(a, SRD_W, S_W2, 1409024)
    w2_dma_lane(a, 232, 236)
    a.e("s_waitcnt lgkmcnt(0)")
    pair_sync(a, F_SYNC1, 1, 2)
    sh.mark('kcp')
    conv.conv_main(a, C, extra=w2_groups([0,1,2], 232))
    sh.mark('conv')
    a.e(f"""
    s_lshr_b32 s{S_T}, s{S_HW}, 1
    s_lshl_b32 s79, s2, 1
    s_add_u32 s79, s79, s{S_T}
    s_lshl_b32 s79, s79, 12
    s_add_u32 s79, s79, {WS_AOT}
    """)
    conv_exchange_epilogue(a, C, 77, 35, 79)
    a.e(f"v_mov_b32 v{VD2}, v232")
    w2_read_lane(a, VA2, 1)
    a.e("s_waitcnt vmcnt(4)")
    w2_read(a, [0,1,2], VA2)
    a.e("s_waitcnt vmcnt(0)")
    a.e(f"""
    s_lshl_b32 s{S_T}, s2, 6
    s_add_u32 s{S_T}, s{S_T}, {FC_OFF}
    """)
    lds_arrive_signal(a, 8, 4, S_T, 1)
    sh.mark('sigC')
    g2_map4(a)
    a.label("L_tail")
    tail = Stamps(a, stamp is not None, base=SB)
    tail.n = (sg.n if stamp == 'g' else sh.n) if stamp else 0
    tail.names = list(sg.names if stamp == 'g' else sh.names)
    tail4(a, tail if stamp else None)
    a.e("s_waitcnt vmcnt(0)")
    if stamp: tail.dump()
    kernel_fused.names = tail.names
    a.label("L_end")
    a.e("s_endpgm")
    return (KNAME, a.text(), 256, 102)
```

```python
from v4 import *
import v4
CFG = v4.CFG

G_NS = 7; H_NS = 4
STG_G = LDS_W2
STG_H = LDS_W2 + 65536
F_SYNC4 = 96
F_GELU = 88
S_STEP = 94
S_NS2 = 93
ACC2 = 64
def acc2(l, d): return ACC2 + (4*l + d)*4

class Role:
    def __init__(s, name, w2f, hbufs, nslots, nstg):
        s.name = name; s.w2f = w2f; s.hb = hbufs; s.n = nslots; s.nstg = nstg
    def wf(s, k, d): return s.w2f + (4*k + d)*4
RG = Role('g', 128, [16, 32, 48, 240], 7, 4)
RH = Role('h', 180, [16, 32, 48, 128], 4, 2)

def p2_setup5(a, role):
    t = S_T
    if role is RG:
        a.e(f"""
        s_mul_i32 s{t}, s3, 7
        s_mov_b32 s{t+1}, 7
        s_lshl_b32 s81, s3, 14
        s_add_u32 s81, s81, {STG_G}
        """)
    else:
        a.e(f"""
        s_lshl_b32 s{t}, s{S_HW}, 2
        s_add_u32 s{t}, s{t}, 28
        s_cmp_eq_u32 s{S_HW}, 3
        s_cselect_b32 s{t+1}, 3, 4
        s_lshl_b32 s81, s{S_HW}, 13
        s_add_u32 s81, s81, {STG_H}
        """)
    a.e(f"""
    s_add_u32 s{t+2}, s{S_RT}, s{S_CT}
    s_and_b32 s{t+2}, s{t+2}, 3
    s_cmp_ge_u32 s{t+2}, s{t+1}
    s_cselect_b32 s{t+3}, s{t+1}, 0
    s_sub_u32 s{t+2}, s{t+2}, s{t+3}
    """)
    for k in range(role.n):
        a.e(f"""
        s_add_u32 s{t+4}, s{t+2}, {k}
        s_cmp_ge_u32 s{t+4}, s{t+1}
        s_cselect_b32 s{t+3}, s{t+1}, 0
        s_sub_u32 s{t+4}, s{t+4}, s{t+3}
        s_add_u32 s{S_STEP+k}, s{t+4}, s{t}
        """)
    a.e(f"""
    s_lshl_b32 s80, s{S_CT}, 7
    s_mov_b32 s{S_NS2}, s{t+1}
    """)

def w2_groups5(role, slots, vD):
    L = []
    for k in slots:
        for q in range(4):
            g = []
            if q == 0: g += [f"s_lshl_b32 s69, s{S_STEP+k}, 15", "s_add_u32 s69, s69, s80"]
            g += [f"s_add_u32 m0, s81, {(k%role.nstg)*4096 + q*1024}",
                  f"s_add_u32 s68, s69, {q*8192}",
                  f"buffer_load_dwordx4 v{vD}, {sq(SRD_W)}, s68 offen lds"]
            L.append(g)
    return L

def w2_read_lane5(a, vA, vt):
    a.e(f"""
    v_lshrrev_b32 v{vt}, 2, v0
    v_lshlrev_b32 v{vt+1}, 7, v{vt}
    v_and_b32 v{vt+2}, 3, v0
    v_lshl_add_u32 v{vt+1}, v{vt+2}, 3, v{vt+1}
    v_lshrrev_b32 v{vt+2}, 1, v{vt}
    v_and_b32 v{vt+2}, 3, v{vt+2}
    v_add_u32 v{vt+1}, s81, v{vt+1}
    """)
    for ds in range(4):
        a.e(f"v_xor_b32 v{vt}, {ds}, v{vt+2}")
        a.e(f"v_lshl_add_u32 v{vA+ds}, v{vt}, 5, v{vt+1}")

def w2_read5(a, role, slots, vA):
    n = 0
    for k in slots:
        for ds in range(4):
            for h in range(2):
                a.e(f"ds_read_b64_tr_b16 {vr(role.wf(k,ds)+2*h,2)}, v{vA+ds} offset:{(k%role.nstg)*4096 + h*2048}")
                n += 1
                if n % 12 == 0: a.e("s_waitcnt lgkmcnt(3)")
    a.e("s_waitcnt lgkmcnt(0)")

def h_load5(a, role, k, vL):
    buf = role.hb[k % len(role.hb)]
    a.e(f"s_lshl_b32 s69, s{S_STEP+k}, 12")
    a.e(f"s_add_u32 s69, s69, s{S_HB}")
    for ls in range(4):
        a.e(f"s_add_u32 s68, s69, {ls*1024}")
        a.e(f"buffer_load_dwordx4 {vr(buf+4*ls,4)}, v{vL}, {sq(SRD_WS)}, s68 offen sc1")

def mfma5(a, role, k):
    buf = role.hb[k % len(role.hb)]
    for ls in range(4):
        for ds in range(4):
            c = "0" if k == 0 else vr(acc2(ls,ds),4)
            a.e(f"v_mfma_f32_16x16x32_bf16 {vr(acc2(ls,ds),4)}, {vr(buf+4*ls,4)}, {vr(role.wf(k,ds),4)}, {c}")

VL5 = 9; VX5 = 10
def g2_pre(a):
    t = S_T
    a.e(f"""
    v_lshlrev_b32 v{VL5}, 4, v0
    s_mul_i32 s{S_HB}, s{S_RT}, {H_RT}
    s_add_u32 s{S_HB}, s{S_HB}, {WS_H}
    s_lshl_b32 s{t}, s{S_RT}, 9
    s_add_u32 s78, s{t}, {FB_OFF}
    v_lshrrev_b32 v2, 4, v0
    v_lshrrev_b32 v3, 2, v0
    v_and_b32 v3, 3, v3
    v_and_b32 v1, 3, v0
    v_lshlrev_b32 v2, 5, v2
    v_lshl_add_u32 v2, v1, 3, v2
    v_lshl_add_u32 v3, v3, 12, v2
    s_lshl_b32 s{t}, s{S_RT}, 16
    s_lshl_b32 s{t+1}, s{S_CT}, 7
    s_add_u32 s{t}, s{t}, s{t+1}
    s_lshr_b32 s{t+2}, s3, 1
    s_lshl_b32 s{t+2}, s{t+2}, 14
    s_add_u32 s{t}, s{t}, s{t+2}
    s_and_b32 s{t+2}, s3, 1
    s_lshl_b32 s{t+2}, s{t+2}, 11
    s_add_u32 s{t}, s{t}, s{t+2}
    v_add_u32 v3, s{t}, v3
    buffer_load_dwordx2 {vr(VX5,2)}, v3, {sq(SRD_X)}, 0 offen
    buffer_load_dwordx2 {vr(VX5+2,2)}, v3, {sq(SRD_X)}, 0 offen offset:1024
    v_add_u32 v2, s{t+1}, v2
    global_load_dwordx2 {vr(VX5+4,2)}, v2, {sp(S_B2)}
    v_lshlrev_b32 v1, 6, v0
    """)

def g2_main(a, role, mk):
    poll_flags(a, 8, 1, 78, 2)
    mk('hflag')
    nb = len(role.hb)
    for k in range(min(nb, role.n)): h_load5(a, role, k, VL5)
    issued = min(nb, role.n)
    for k in range(role.n):
        last_opt = (role is RH and k == 3)
        if last_opt:
            L = a.newlabel("Lno4")
            a.e(f"s_cmp_lt_u32 s{S_NS2}, 4"); a.e(f"s_cbranch_scc1 {L}")
        a.e(f"s_waitcnt vmcnt({4*(issued-1-k)})")
        mfma5(a, role, k)
        if issued < role.n:
            h_load5(a, role, issued, VL5); issued += 1
        if last_opt: a.label(L)
    mk('g2mm')

def final_part(a, mk):
    t = S_T
    a.e(f"""
    s_lshr_b32 s{t+1}, s3, 1
    s_lshl_b32 s{t}, s{S_CT}, 5
    s_lshl_b32 s{t+2}, s{t+1}, 3
    s_add_u32 s{t}, s{t}, s{t+2}
    s_lshl_b32 s{t}, s{t}, 6
    s_add_u32 s78, s{t}, {FC_OFF}
    v_lshlrev_b32 v1, 6, v0
    """)
    poll_flags(a, 8, 1, 78, 2)
    a.e(f"""
    v_and_b32 v1, 15, v0
    v_lshlrev_b32 v1, 12, v1
    v_lshrrev_b32 v2, 4, v0
    v_lshl_add_u32 v1, v2, 3, v1
    s_lshr_b32 s{t+1}, s3, 1
    s_lshl_b32 s{t}, s{S_CT}, 2
    s_add_u32 s{t}, s{t}, s{t+1}
    s_lshl_b32 s{t}, s{t}, 16
    s_lshl_b32 s{t+2}, s{S_RT}, 7
    s_add_u32 s{t}, s{t}, s{t+2}
    s_and_b32 s{t+2}, s3, 1
    s_lshl_b32 s{t+2}, s{t+2}, 6
    s_add_u32 s{t}, s{t}, s{t+2}
    s_add_u32 s{t}, s{t}, {WS_AOT}
    buffer_load_dwordx2 v[16:17], v1, {sq(SRD_WS)}, s{t} offen sc1
    buffer_load_dwordx2 v[18:19], v1, {sq(SRD_WS)}, s{t} offen offset:32 sc1
    s_waitcnt vmcnt(0)
    v_lshlrev_b32 v24, 16, v16
    v_and_b32 v25, 0xffff0000, v16
    v_lshlrev_b32 v26, 16, v17
    v_and_b32 v27, 0xffff0000, v17
    v_lshlrev_b32 v28, 16, v18
    v_and_b32 v29, 0xffff0000, v18
    v_lshlrev_b32 v30, 16, v19
    v_and_b32 v31, 0xffff0000, v19
    """)
    Ld = a.newlabel("Laod")
    for w in range(8):
        Ln = a.newlabel("Laon")
        a.e(f"s_cmp_lg_u32 s3, {w}"); a.e(f"s_cbranch_scc1 {Ln}")
        for k in range(2):
            A_ = acc2(2*(w&1)+k, w>>1)
            for i in range(4): a.e(f"v_add_f32 v{A_+i}, v{A_+i}, v{24+4*k+i}")
        a.e(f"s_branch {Ld}")
        a.label(Ln)
    a.label(Ld)
    mk('ao')
    a.e("s_barrier")
    a.e(f"s_lshl_b32 s{t}, s3, 8")
    a.e(f"s_mov_b32 m0, s{t}")
    for idx in range(32):
        a.e(f"ds_write_addtid_b32 v{ACC2+idx} offset:{2048*idx}")
    a.e(f"s_add_u32 m0, s{t}, 63740")
    for idx in range(32, 64):
        a.e(f"ds_write_addtid_b32 v{ACC2+idx} offset:{2048*idx - 63740}")
    a.e("s_waitcnt lgkmcnt(0)")
    mk('pw')
    a.e("s_barrier")
    a.e(f"""
    v_lshrrev_b32 v2, 4, v0
    v_lshlrev_b32 v2, 13, v2
    v_and_b32 v1, 15, v0
    v_lshl_add_u32 v2, v1, 4, v2
    s_lshr_b32 s{t}, s3, 1
    s_lshl_b32 s{t}, s{t}, 15
    s_and_b32 s{t+1}, s3, 1
    s_lshl_b32 s{t+1}, s{t+1}, 12
    s_add_u32 s{t}, s{t}, s{t+1}
    v_add_u32 v2, s{t}, v2
    """)
    T = ACC2; VX = VX5
    for k in range(2):
        for w in range(8):
            a.e(f"ds_read_b128 {vr(T+32*k+4*w,4)}, v2 offset:{2048*k + 256*w}")
        if k == 0: a.e("s_waitcnt lgkmcnt(4)")
    U = 24
    a.e(f"""
    v_lshlrev_b32 v{U+8}, 16, v{VX+4}
    v_and_b32 v{U+9}, 0xffff0000, v{VX+4}
    v_lshlrev_b32 v{U+10}, 16, v{VX+5}
    v_and_b32 v{U+11}, 0xffff0000, v{VX+5}
    """)
    for k in range(2):
        a.e(f"s_waitcnt lgkmcnt({8 if k == 0 else 0})")
        B_ = T + 32*k
        for step in (4,2,1):
            for w in range(step):
                for e in (0,2):
                    a.e(f"v_pk_add_f32 {vr(B_+4*w+e,2)}, {vr(B_+4*w+e,2)}, {vr(B_+4*(w+step)+e,2)}")
        a.e(f"""
        v_lshlrev_b32 v{U}, 16, v{VX+2*k}
        v_and_b32 v{U+1}, 0xffff0000, v{VX+2*k}
        v_lshlrev_b32 v{U+2}, 16, v{VX+2*k+1}
        v_and_b32 v{U+3}, 0xffff0000, v{VX+2*k+1}
        v_pk_add_f32 {vr(U,2)}, {vr(U,2)}, {vr(U+8,2)}
        v_pk_add_f32 {vr(U+2,2)}, {vr(U+2,2)}, {vr(U+10,2)}
        v_pk_add_f32 {vr(U,2)}, {vr(U,2)}, {vr(B_,2)}
        v_pk_add_f32 {vr(U+2,2)}, {vr(U+2,2)}, {vr(B_+2,2)}
        v_cvt_pk_bf16_f32 v{U+4+2*k}, v{U}, v{U+1}
        v_cvt_pk_bf16_f32 v{U+5+2*k}, v{U+2}, v{U+3}
        buffer_store_dwordx2 {vr(U+4+2*k,2)}, v3, {sq(SRD_OUT)}, 0 offen offset:{1024*k}
        """)
    mk('fin')

def w1_groups(st, vp, sW):
    slot = W1_SLOT[st % 4]
    t = S_T
    hdr = f"""
    s_add_u32 s79, s{S_ROT}, {st}
    s_and_b32 s79, s79, 7
    s_lshl_b32 s79, s79, 6
    s_lshr_b32 s{t+1}, s{sW}, 1
    s_lshl_b32 s{t+1}, s{t+1}, 5
    s_add_u32 s79, s79, s{t+1}
    s_and_b32 s{t+1}, s{sW}, 1
    s_lshl_b32 s{t+1}, s{t+1}, 2
    s_add_u32 s79, s79, s{t+1}
    s_mul_i32 s79, s79, 2752
    s_lshl_b32 s{t+1}, s{S_P}, 6
    s_add_u32 s79, s79, s{t+1}
    s_mul_i32 s81, s{sW}, 6144
    """
    G = []
    for gg in range(2):
        for p in range(3):
            g = []
            if gg == 1 and p == 0: g.append(f"s_add_u32 s79, s79, {16*2752}")
            g += [f"s_add_u32 m0, s81, {slot + (gg*3+p)*1024}", f"buffer_load_dwordx4 v{vp+p}, {sq(SRD_W)}, s79 offen lds"]
            G.append(g)
    return hdr, G

def kernel_fused(stamp=None):
    a = Asm()
    SB = 84
    sg = Stamps(a, stamp == 'g', base=SB); sh = Stamps(a, stamp == 'h', base=SB)
    both = Stamps(a, stamp is not None, base=SB)
    both.mark('start')
    prologue(a, 256, "L_end")
    g1_map(a)
    a.e("s_waitcnt lgkmcnt(0)")
    both.mark('karg')
    sg.n = sh.n = both.n; sg.names = list(both.names); sh.names = list(both.names)
    a.e("s_cmp_ge_u32 s3, 4")
    a.e("s_cbranch_scc1 L_helper")
    t = S_T
    make_srd(a, SRD_X, S_X, 2097152)
    make_srd(a, SRD_W, S_W1, 1409024)
    a.e("s_barrier")
    x_dma16r(a, 1)
    make_srd(a, SRD_WS, S_WS, WS_SIZE)
    make_srd(a, SRD_OUT, S_OUT, 2097152)
    w1_lane_setup(a, AF1, AF1+4)
    w1_issue(a, 0, AF1, 3)
    gemm_wave_setup(a)
    a.e(f"""
    v_mov_b32 v1, {LDS_CNT}
    v_lshl_add_u32 v1, v0, 2, v1
    v_mov_b32 v2, 0
    v_cmp_gt_u32 vcc, 32, v0
    s_and_saveexec_b64 s[{S_EX}:{S_EX+1}], vcc
    ds_write_b32 v1, v2
    s_mov_b64 exec, s[{S_EX}:{S_EX+1}]
    s_waitcnt lgkmcnt(0)
    s_waitcnt vmcnt(6)
    """)
    sg.mark('xland')
    a.e("s_barrier")
    sg.mark('B0')
    a.e("s_setprio 1")
    gemm_x_stats(a)
    a.e("s_waitcnt vmcnt(0)")
    sg.mark('xn')
    a.e("s_barrier")
    for l in a_reads(0, AF0): a.e(l)
    gemm_xn_store(a)
    a.e(f"s_cmp_eq_u32 s{S_LH}, 1")
    a.e("s_cbranch_scc1 L_gl1")
    for lh in range(2):
        if lh == 1: a.label("L_gl1")
        for st in range(8):
            if st == 2: a.e("s_waitcnt vmcnt(0)")
            if st < 7: a.e("s_barrier")
            if lh == 0 and st in (0,4): sg.mark(f'S{st}')
            gemm_stage(a, st, lh)
        cs_write(a, lh)
        if lh == 0: a.e("s_branch L_gdone")
    a.label("L_gdone")
    lds_arrive(a, F_GDONE, 1, 2)
    make_srd(a, SRD_W, S_W2, 1409024)
    read_nonce_lds(a, 1)
    p2_setup5(a, RG)
    w2_dma_lane(a, 18, 1)
    lds_wait_cnt(a, F_GDONE, 4, 1, 2)
    sg.mark('E0')
    a.e("s_setprio 2")
    CFG['dma_si'] = (1,3,5,7)
    gemm_epilogue2(a, w2_groups5(RG, [0,1,2,3], 18))
    lds_arrive(a, F_GELU, 1, 2)
    sg.mark('epi')
    a.e(f"v_mov_b32 v4, v18")
    w2_read_lane5(a, 5, 1)
    Lw = a.newlabel("Lw"); Lw2 = a.newlabel("Lw")
    a.e(f"""
    s_mul_i32 s{t}, s{S_FH}, 3
    s_add_u32 s{t}, s{t}, 2
    s_cmp_ge_u32 s{t}, s{S_NP}
    s_cbranch_scc1 {Lw}
    s_waitcnt vmcnt(3)
    s_branch {Lw2}
    """)
    a.label(Lw); a.e("s_waitcnt vmcnt(1)"); a.label(Lw2)
    w2_read5(a, RG, [0,1,2,3], 5)
    a.e("s_waitcnt vmcnt(0)")
    a.e(f"""
    s_lshl_b32 s{t}, s{S_RT}, 3
    s_add_u32 s{t}, s{t}, s{S_CT}
    s_lshl_b32 s{t}, s{t}, 6
    s_add_u32 s{t}, s{t}, {FB_OFF}
    """)
    lds_arrive_signal(a, 4, 4, t, 1)
    a.e("s_setprio 0")
    sg.mark('sigB')
    for g in w2_groups5(RG, [4,5,6], 4):
        for l in g: a.e(l)
    g2_pre(a)
    a.e("s_waitcnt vmcnt(0)")
    w2_read5(a, RG, [4,5,6], 5)
    tg = Stamps(a, stamp == 'g', base=SB); tg.n = sg.n; tg.names = list(sg.names)
    g2_main(a, RG, tg.mark)
    a.e("s_branch L_tail")
    a.label("L_helper")
    a.e(f"s_sub_u32 s{S_HW}, s3, 4")
    V = kgen.kgen_vmap(8); V['transposed'] = True
    a.e(f"""
    s_lshr_b32 s{S_T}, s{S_HW}, 1
    s_lshl_b32 s{S_KC}, s2, 1
    s_add_u32 s{S_KC}, s{S_KC}, s{S_T}
    s_and_b32 s{S_KNH}, s{S_HW}, 1
    """)
    kgen.kgen_load(a, V, S_KC, S_KNH, S_T)
    a.e(f"""
    s_lshl_b32 s{S_T}, s{S_HW}, 6
    v_add_u32 v145, s{S_T}, v0
    s_lshl_b32 s{S_T+1}, s{S_P}, 5
    v_add_u32 v146, s{S_T+1}, v145
    v_min_u32 v146, 1375, v146
    v_lshlrev_b32 v146, 1, v146
    global_load_ushort v146, v146, {sp(S_B1)}
    s_lshl_b32 s{S_T}, s{S_KC}, 1
    v_mov_b32 v147, s{S_T}
    global_load_ushort v147, v147, {sp(S_DSK)}
    """)
    a.e("s_barrier")
    make_srd(a, SRD_X, S_X, 2097152)
    make_srd(a, SRD_W, S_W1, 1409024)
    make_srd(a, SRD_WS, S_WS, WS_SIZE)
    make_srd(a, SRD_OUT, S_OUT, 2097152)
    Ln = a.newlabel("Lnn")
    a.e(f"""
    s_mul_i32 s{S_KTAB}, s{S_HW}, {KG_TAB}
    s_add_u32 s{S_KTAB}, s{S_KTAB}, {LDS_KG}
    s_cmp_lg_u32 s2, 0
    s_cbranch_scc1 {Ln}
    s_cmp_lg_u32 s3, 4
    s_cbranch_scc1 {Ln}
    s_memrealtime s[{S_T}:{S_T+1}]
    s_waitcnt lgkmcnt(0)
    s_or_b32 s{S_T}, s{S_T}, 1
    v_mov_b32 v1, s{S_T}
    v_mov_b32 v2, 0
    s_mov_b64 s[{S_EX}:{S_EX+1}], exec
    s_mov_b64 exec, 1
    global_store_dword v2, v1, {sp(S_DBG)} sc1
    s_mov_b64 exec, s[{S_EX}:{S_EX+1}]
    """)
    a.label(Ln)
    kgen.kgen_addr_setup(a, V, S_KTAB)
    w1_lane_setup(a, 232, 236)
    a.e("s_waitcnt vmcnt(0)")
    sh.mark('par')
    ch = list(kgen.kgen_chunks(V, S_KK, None)[:-1])
    ch.append(lambda a: kgen.kgen_x_write(a, V, S_KNH, S_KTAB))
    pos = [0]
    def bg(n, scalar=True):
        if n <= 0 or pos[0] >= len(ch): return
        for f in ch[pos[0]:pos[0]+n]:
            a.e(f"s_mov_b32 m0, s{S_KTAB}")
            if getattr(f, 'is_step', False): f(a, scalar)
            else: f(a)
        pos[0] = min(len(ch), pos[0]+n)
    def slot(st, n):
        hdr, G = w1_groups(st, 232, S_HW)
        a.e(hdr)
        left = n
        for i, g in enumerate(G):
            for l in g: a.e(l)
            k = (n*(i+1))//6 - (n*i)//6
            bg(k)
    sched = CFG.get('sched', [26, 12, 0, 2, 2, 2, 2, 2, 2])
    bg(sched[0], scalar=False)
    sh.mark('kgA')
    a.e("s_barrier")
    Ln2 = a.newlabel("Lnn")
    a.e(f"""
    s_cmp_lg_u32 s3, 4
    s_cbranch_scc1 {Ln2}
    v_mov_b32 v1, 0
    global_load_dword v2, v1, {sp(S_DBG)} sc1
    """)
    a.label(Ln2)
    slot(1, 6); bg(sched[1]-6)
    a.e(f"""
    v_lshlrev_b32 v146, 16, v146
    v_lshlrev_b32 v144, 2, v145
    v_add_u32 v144, {LDS_B1}, v144
    v_cmp_gt_u32 vcc, 192, v145
    s_and_saveexec_b64 s[{S_EX}:{S_EX+1}], vcc
    ds_write_b32 v144, v146
    s_mov_b64 exec, s[{S_EX}:{S_EX+1}]
    v_lshlrev_b32 v147, 16, v147
    v_readfirstlane_b32 s35, v147
    """)
    Ln3 = a.newlabel("Lnn"); Lp = a.newlabel("Lnp"); Lq = a.newlabel("Lnq")
    a.e(f"""
    s_cmp_lg_u32 s3, 4
    s_cbranch_scc1 {Ln3}
    s_mov_b32 s{S_SPIN}, 200000
    """)
    a.label(Lp)
    a.e(f"""
    s_waitcnt vmcnt(0)
    v_readfirstlane_b32 s{S_T}, v2
    s_cmp_lg_u32 s{S_T}, 0
    s_cbranch_scc1 {Lq}
    s_sub_u32 s{S_SPIN}, s{S_SPIN}, 1
    s_cmp_eq_u32 s{S_SPIN}, 0
    s_cbranch_scc1 {Lq}
    s_sleep 2
    v_mov_b32 v1, 0
    global_load_dword v2, v1, {sp(S_DBG)} sc1
    s_branch {Lp}
    """)
    a.label(Lq)
    a.e(f"""
    v_mov_b32 v1, {LDS_CNT+32}
    ds_write_b32 v1, v2
    """)
    a.label(Ln3)
    a.e("s_waitcnt lgkmcnt(0)")
    sh.mark('kgB')
    a.e("s_barrier")
    slot(2, sched[2])
    read_nonce_lds(a, 1)
    a.e("s_waitcnt vmcnt(6)")
    a.e("s_barrier")
    sh.mark('hS0')
    slot(3, sched[3])
    a.e("s_waitcnt vmcnt(6)")
    a.e("s_barrier")
    slot(4, sched[4])
    a.e("s_waitcnt vmcnt(6)")
    a.e("s_barrier")
    La = a.newlabel("Lsa")
    a.e(f"""
    s_cmp_lg_u32 s3, 4
    s_cbranch_scc1 {La}
    s_lshl_b32 s{S_T}, s{S_CT}, 5
    s_add_u32 s{S_T}, s{S_T}, s{S_RT}
    s_lshl_b32 s{S_T}, s{S_T}, 6
    s_add_u32 s{S_T}, s{S_T}, {FA_OFF}
    v_mov_b32 v1, 0
    v_mov_b32 v2, s{S_NONCE}
    s_mov_b64 s[{S_EX}:{S_EX+1}], exec
    s_mov_b64 exec, 1
    buffer_store_dword v2, v1, {sq(SRD_WS)}, s{S_T} offen sc1
    s_mov_b64 exec, s[{S_EX}:{S_EX+1}]
    """)
    a.label(La)
    def kp_setup():
        a.e(f"""
        s_lshr_b32 s{S_T}, s{S_HW}, 1
        s_mul_i32 s80, s{S_T}, {U_CH}
        s_add_u32 s80, s80, {LDS_U + 16}
        s_mul_i32 s83, s{S_T}, {KC_STR}
        s_add_u32 s83, s83, {LDS_KG}
        s_lshl_b32 s{S_T}, s{S_KNH}, 6
        v_add_u32 v152, s{S_T}, v0
        """)
    def u_issue():
        a.e(f"""
        v_lshlrev_b32 v150, 6, v0
        s_lshr_b32 s{S_T}, s2, 5
        s_lshl_b32 s{S_T}, s{S_T}, 11
        s_add_u32 s92, s{S_T}, {FA_OFF}
        """)
        poll_flags(a, 32, 150, 92, 151)
        a.e(f"""
        s_lshr_b32 s{S_T+1}, s{S_HW}, 1
        s_lshl_b32 s{S_T+2}, s2, 1
        s_add_u32 s{S_T+2}, s{S_T+2}, s{S_T+1}
        s_lshl_b32 s{S_T+2}, s{S_T+2}, 12
        s_add_u32 s{S_T+2}, s{S_T+2}, {WS_XNT}
        v_lshlrev_b32 v153, 4, v152
        buffer_load_dwordx4 v[156:159], v153, {sq(SRD_WS)}, s{S_T+2} offen sc1
        buffer_load_dwordx4 v[160:163], v153, {sq(SRD_WS)}, s{S_T+2} offen offset:2048 sc1
        s_mul_i32 s{S_T+3}, s{S_T+1}, {U_CH}
        s_add_u32 s{S_T+3}, s{S_T+3}, {LDS_U}
        v_add_u32 v153, s{S_T+3}, v153
        """)
    late = CFG.get('late', 1)
    if not late:
        slot(5, sched[5]); bg(100)
        a.e("s_waitcnt vmcnt(6)")
        a.e("s_waitcnt lgkmcnt(0)")
        sh.mark('kgC')
        a.e("s_barrier")
        kp_setup()
        hdr, G = w1_groups(6, 232, S_HW); a.e(hdr)
        for g in G:
            for l in g: a.e(l)
        kpost.finish(a, V, S_KNH, S_KTAB, 80, S_T+2)
        a.e("s_waitcnt vmcnt(6)")
        sh.mark('kfin')
        a.e("s_barrier")
        hdr, G = w1_groups(7, 232, S_HW); a.e(hdr)
        for g in G:
            for l in g: a.e(l)
        a.e("v_mov_b32 v8, v152")
        kpost.copies(a, 12, 8, S_KNH, 80, 83, KC_COPY)
        kpost.tail_patch(a, 12, S_KNH, 80, 83, KC_COPY)
        a.e("s_waitcnt vmcnt(6)")
        sh.mark('kcp')
        a.e("s_barrier")
        u_issue()
        sh.mark('upoll')
        a.e("s_barrier")
    else:
        slot(5, sched[5])
        a.e("s_waitcnt vmcnt(6)")
        a.e("s_barrier")
        slot(6, sched[6])
        a.e("s_waitcnt vmcnt(6)")
        a.e("s_barrier")
        slot(7, sched[7])
        a.e("s_waitcnt vmcnt(6)")
        a.e("s_barrier")
        bg(sched[8])
        a.e("s_waitcnt vmcnt(0)")
        a.e("s_barrier")
        sh.mark('hS6')
        if CFG.get('hp2'): a.e(f"s_setprio {CFG['hp2']}")
        kp_setup()
        u_issue()
        bg(100)
        a.e("s_waitcnt lgkmcnt(0)")
        sh.mark('kgC')
        pair_sync(a, F_SYNC3, 1, 2)
        kpost.finish(a, V, S_KNH, S_KTAB, 80, S_T+2)
        pair_sync(a, F_SYNC2, 1, 2)
        sh.mark('kfin')
        a.e("v_mov_b32 v8, v152")
        kpost.copies(a, 12, 8, S_KNH, 80, 83, KC_COPY)
        kpost.tail_patch(a, 12, S_KNH, 80, 83, KC_COPY)
        pair_sync(a, F_SYNC4, 1, 2)
        sh.mark('kcp')
    if CFG.get('w2pf', 1):
        Lpf = a.newlabel("Lpf")
        a.e(f"s_cmp_lg_u32 s3, 7"); a.e(f"s_cbranch_scc1 {Lpf}")
        a.e(f"""
        s_lshr_b32 s{t}, s2, 3
        s_mul_i32 s{t}, s{t}, {43*1024}
        s_and_b32 s{t+1}, s2, 1
        s_lshl_b32 s{t+1}, s{t+1}, 9
        s_add_u32 s{t}, s{t}, s{t+1}
        v_lshrrev_b32 v154, 2, v0
        v_lshlrev_b32 v154, 10, v154
        v_and_b32 v155, 3, v0
        v_lshl_add_u32 v154, v155, 7, v154
        s_mov_b32 s64, s{S_W2}
        s_and_b32 s65, s{S_W2+1}, 0xffff
        s_mov_b32 s66, 1409024
        s_mov_b32 s67, 0x20000
        """)
        for i in range(3):
            a.e(f"s_add_u32 s{t+1}, s{t}, {i*16384}")
            a.e(f"buffer_load_dword v{164+i}, v154, s[64:67], s{t+1} offen")
        a.label(Lpf)
    a.e(f"""
    v_mov_b32 v72, 0
    v_mov_b32 v73, 0
    v_mov_b32 v74, 0
    v_mov_b32 v75, 0
    v_cmp_gt_u32 vcc, 30, v152
    s_and_saveexec_b64 s[{S_EX}:{S_EX+1}], vcc
    ds_write_b128 v153, v[72:75]
    s_mov_b64 exec, s[{S_EX}:{S_EX+1}]
    """)
    make_srd(a, SRD_W, S_W2, 1409024)
    p2_setup5(a, RH)
    w2_dma_lane(a, 232, 236)
    for g in w2_groups5(RH, [0,1], 232):
        for l in g: a.e(l)
    a.e("s_waitcnt vmcnt(8)")
    a.e(f"""
    ds_write_b128 v153, v[156:159] offset:{U_PAD}
    ds_write_b128 v153, v[160:163] offset:{U_PAD+2048}
    """)
    C = conv.conv_vmap(8)
    a.e(f"""
    s_lshr_b32 s{S_T}, s{S_HW}, 1
    s_mul_i32 s76, s{S_T}, {KC_STR}
    s_add_u32 s76, s76, {LDS_KG}
    s_mul_i32 s77, s{S_T}, {U_CH}
    s_add_u32 s77, s77, {LDS_U}
    s_and_b32 s78, s{S_HW}, 1
    """)
    conv.conv_addr_setup(a, C, 76, 77, 78, S_T)
    w2_read_lane5(a, 244, 1)
    a.e("s_waitcnt vmcnt(0)")
    w2_read5(a, RH, [0,1], 244)
    for g in w2_groups5(RH, [2,3], 232):
        for l in g: a.e(l)
    pair_sync(a, F_SYNC1, 1, 2)
    a.e("s_waitcnt vmcnt(0)")
    w2_read5(a, RH, [2,3], 244)
    sh.mark('hready')
    if CFG.get('hp2'): a.e("s_setprio 0")
    lds_wait_cnt(a, F_GELU, 4, 1, 2)
    sh.mark('cstart')
    conv.conv_main(a, C)
    sh.mark('conv')
    a.e(f"""
    s_lshr_b32 s{S_T}, s{S_HW}, 1
    s_lshl_b32 s79, s2, 1
    s_add_u32 s79, s79, s{S_T}
    s_lshl_b32 s79, s79, 12
    s_add_u32 s79, s79, {WS_AOT}
    """)
    conv_exchange_epilogue(a, C, 77, 35, 79)
    g2_pre(a)
    a.e("s_waitcnt vmcnt(3)")
    a.e(f"""
    s_lshl_b32 s{S_T}, s2, 6
    s_add_u32 s{S_T}, s{S_T}, {FC_OFF}
    """)
    lds_arrive_signal(a, 8, 4, S_T, 20)
    sh.mark('sigC')
    th = Stamps(a, stamp == 'h', base=SB); th.n = sh.n; th.names = list(sh.names)
    g2_main(a, RH, th.mark)
    a.label("L_tail")
    tail = Stamps(a, stamp is not None, base=SB)
    src = tg if stamp == 'g' else th
    tail.n = src.n if stamp else 0
    tail.names = list(src.names)
    final_part(a, tail.mark)
    a.e("s_waitcnt vmcnt(0)")
    if stamp: tail.dump()
    kernel_fused.names = tail.names
    a.label("L_end")
    a.e("s_endpgm")
    return (KNAME, a.text(), 256, 102)
```

```python
from v5 import *
import v5
CFG = v5.CFG
F_CNT = 0
F_HRDY = 24
F_HRDY = 112
VC = 19

def sw_arrive(a):
    a.e(f"""
    s_mov_b64 exec, 1
    ds_add_u32 v{VC}, v{VC+0} offset:0
    s_mov_b64 exec, -1
    """.replace(f"v{VC}, v{VC+0} offset:0", f"v{VC}, v3"))

def sw_wait(a, n, vt):
    L = a.newlabel("Lsw"); D = a.newlabel("Lswd")
    a.e(f"s_mov_b32 s{S_SPIN}, 4000000")
    a.label(L)
    a.e(f"""
    ds_read_b32 v{vt}, v{VC}
    s_waitcnt lgkmcnt(0)
    v_readfirstlane_b32 s{S_T+4}, v{vt}
    s_cmp_ge_u32 s{S_T+4}, {n}
    s_cbranch_scc1 {D}
    s_sub_u32 s{S_SPIN}, s{S_SPIN}, 1
    s_cmp_lg_u32 s{S_SPIN}, 0
    s_cbranch_scc1 {L}
    """)
    a.label(D)

def gemm_stage6(a, st, lh):
    cs_slots = [0,1,2] if lh == 0 else [3,4,5]
    def mm(sp_, buf):
        M = []
        s = 2*st + sp_
        for f in range(6):
            for lt in range(2):
                c = "0" if s == 0 else vr(acc(f,lt),4)
                M.append(f"v_mfma_f32_16x16x32_bf16 {vr(acc(f,lt),4)}, {vr(buf+4*f,4)}, {vr(xf(lt,s),4)}, {c}")
            if f in cs_slots:
                D = CSA + 4*cs_slots.index(f)
                c = "0" if s == 0 else vr(D,4)
                M.append(f"v_mfma_f32_16x16x32_bf16 {vr(D,4)}, {vr(buf+4*f,4)}, {vr(ONES,4)}, {c}")
        return M
    G = []
    if st + 3 <= 7:
        hdr, G = w1_groups6(st+3)
    need = 12 + 4*st
    a.e("s_waitcnt lgkmcnt(0)")
    chk = st <= 6
    if chk: a.e(f"ds_read_b32 v1, v{VC}")
    M = mm(0, AF0); L = a_reads(1, AF1)
    gi = 0
    for i in range(len(M)):
        a.e(M[i])
        if i < len(L): a.e(L[i])
        if i == 1 and G: a.e(hdr)
        if i == 4 and chk:
            Ls = a.newlabel("Lsp"); Ld = a.newlabel("Lsd")
            a.e(f"""
            s_waitcnt lgkmcnt(5)
            v_readfirstlane_b32 s{S_T+4}, v1
            s_cmp_ge_u32 s{S_T+4}, {need}
            s_cbranch_scc1 {Ld}
            """)
            sw_wait(a, need, 1)
            a.label(Ld)
            if st == 1: a.extra_stage1()
        if i in (6, 10, 14) and gi < len(G):
            for l in G[gi]: a.e(l)
            gi += 1
    a.e("s_waitcnt lgkmcnt(0)")
    M = mm(1, AF1); L = []
    if st < 7:
        d = W1_SLOT[(st+1)%4] - W1_SLOT[st%4]
        R = a_reads(0, AF0)
        for f in range(6):
            L.append(f"v_add_u32 v{ADR+f}, {d & 0xffffffff:#x}, v{ADR+f}")
            L.append(R[2*f]); L.append(R[2*f+1])
    li = 0
    for i in range(len(M)):
        a.e(M[i])
        for _ in range(2 if i < 3 else 1):
            if li < len(L): a.e(L[li]); li += 1
        if i in (3, 8, 13) and gi < len(G):
            for l in G[gi]: a.e(l)
            gi += 1
    while li < len(L): a.e(L[li]); li += 1
    assert gi == len(G)
    if st + 1 <= 6:
        a.e(f"s_waitcnt vmcnt({6 if st+3 <= 7 else 0})")
        sw_arrive(a)

VW1 = 14
def w1_groups6(st):
    return w1_groups(st, VW1, 3)

def kernel_fused(stamp=None):
    a = Asm()
    SB = 84
    sg = Stamps(a, stamp == 'g', base=SB); sh = Stamps(a, stamp == 'h', base=SB)
    both = Stamps(a, stamp is not None, base=SB)
    both.mark('start')
    prologue(a, 256, "L_end")
    g1_map(a)
    a.e("s_waitcnt lgkmcnt(0)")
    both.mark('karg')
    sg.n = sh.n = both.n; sg.names = list(both.names); sh.names = list(both.names)
    a.e("s_cmp_ge_u32 s3, 4")
    a.e("s_cbranch_scc1 L_helper")
    t = S_T
    make_srd(a, SRD_X, S_X, 2097152)
    make_srd(a, SRD_W, S_W1, 1409024)
    a.e(f"""
    v_mov_b32 v1, {LDS_CNT}
    v_lshl_add_u32 v1, v0, 2, v1
    v_mov_b32 v2, 0
    v_cmp_gt_u32 vcc, 32, v0
    s_and_saveexec_b64 s[{S_EX}:{S_EX+1}], vcc
    ds_write_b32 v1, v2
    s_mov_b64 exec, s[{S_EX}:{S_EX+1}]
    s_waitcnt lgkmcnt(0)
    """)
    a.e("s_barrier")
    x_dma16r(a, 1)
    make_srd(a, SRD_WS, S_WS, WS_SIZE)
    make_srd(a, SRD_OUT, S_OUT, 2097152)
    w1_lane_setup(a, VW1, AF1)
    def issue_now(st):
        hdr, G = w1_groups6(st); a.e(hdr)
        for g in G:
            for l in g: a.e(l)
    issue_now(0)
    gemm_wave_setup6(a)
    a.e(f"v_mov_b32 v{VC}, {LDS_CNT+F_CNT}")
    a.e("v_mov_b32 v3, 1")
    a.e("s_waitcnt vmcnt(6)")
    sg.mark('xland')
    sw_arrive(a); sw_wait(a, 4, 1)
    sg.mark('B0')
    a.e("s_setprio 1")
    issue_now(1)
    gemm_x_stats6(a)
    a.e("s_waitcnt vmcnt(6)")
    a.e("v_mov_b32 v3, 1")
    sg.mark('xn')
    sw_arrive(a); sw_wait(a, 8, 1)
    issue_now(2)
    for l in a_reads(0, AF0): a.e(l)
    gemm_xn_store(a)
    a.e("s_waitcnt vmcnt(8)")
    sw_arrive(a)
    def stage1_extra():
        La = a.newlabel("Lsa"); Lp = a.newlabel("Lnp"); Lq = a.newlabel("Lnq")
        a.e(f"""
        s_cmp_lg_u32 s3, 0
        s_cbranch_scc1 {La}
        v_mov_b32 v2, {LDS_CNT+32}
        s_mov_b32 s{S_SPIN}, 4000000
        """)
        a.label(Lp)
        a.e(f"""
        ds_read_b32 v1, v2
        s_waitcnt lgkmcnt(0)
        v_readfirstlane_b32 s{S_NONCE}, v1
        s_cmp_lg_u32 s{S_NONCE}, 0
        s_cbranch_scc1 {Lq}
        s_sub_u32 s{S_SPIN}, s{S_SPIN}, 1
        s_cmp_lg_u32 s{S_SPIN}, 0
        s_cbranch_scc1 {Lp}
        """)
        a.label(Lq)
        a.e(f"""
        s_lshl_b32 s{t}, s{S_CT}, 5
        s_add_u32 s{t}, s{t}, s{S_RT}
        s_lshl_b32 s{t}, s{t}, 6
        s_add_u32 s{t}, s{t}, {FA_OFF}
        v_mov_b32 v1, 0
        v_mov_b32 v2, s{S_NONCE}
        s_mov_b64 exec, 1
        buffer_store_dword v2, v1, {sq(SRD_WS)}, s{t} offen sc1
        s_mov_b64 exec, -1
        """)
        a.label(La)
    a.extra_stage1 = stage1_extra
    a.e(f"s_cmp_eq_u32 s{S_LH}, 1")
    a.e("s_cbranch_scc1 L_gl1")
    for lh in range(2):
        if lh == 1: a.label("L_gl1")
        for st in range(8):
            if lh == 0 and st in (0,4): sg.mark(f'S{st}')
            gemm_stage6(a, st, lh)
        cs_write(a, lh)
        if lh == 0: a.e("s_branch L_gdone")
    a.label("L_gdone")
    lds_arrive(a, F_GDONE, 1, 2)
    make_srd(a, SRD_W, S_W2, 1409024)
    lds_wait_cnt(a, F_HRDY, 4, 1, 2)
    read_nonce_lds(a, 1)
    p2_setup5(a, RG)
    w2_dma_lane(a, 18, 1)
    lds_wait_cnt(a, F_GDONE, 4, 1, 2)
    sg.mark('E0')
    a.e("s_setprio 2")
    CFG['dma_si'] = (1,3,5,7)
    gemm_epilogue2(a, w2_groups5(RG, [0,1,2,3], 18))
    lds_arrive(a, F_GELU, 1, 2)
    sg.mark('epi')
    a.e(f"v_mov_b32 v4, v18")
    w2_read_lane5(a, 5, 1)
    Lw = a.newlabel("Lw"); Lw2 = a.newlabel("Lw")
    a.e(f"""
    s_mul_i32 s{t}, s{S_FH}, 3
    s_add_u32 s{t}, s{t}, 2
    s_cmp_ge_u32 s{t}, s{S_NP}
    s_cbranch_scc1 {Lw}
    s_waitcnt vmcnt(3)
    s_branch {Lw2}
    """)
    a.label(Lw); a.e("s_waitcnt vmcnt(1)"); a.label(Lw2)
    w2_read5(a, RG, [0,1,2,3], 5)
    a.e("s_waitcnt vmcnt(0)")
    a.e(f"""
    s_lshl_b32 s{t}, s{S_RT}, 3
    s_add_u32 s{t}, s{t}, s{S_CT}
    s_lshl_b32 s{t}, s{t}, 6
    s_add_u32 s{t}, s{t}, {FB_OFF}
    """)
    lds_arrive_signal(a, 4, 4, t, 1)
    a.e("s_setprio 0")
    sg.mark('sigB')
    for g in w2_groups5(RG, [4,5,6], 4):
        for l in g: a.e(l)
    g2_pre(a)
    a.e("s_waitcnt vmcnt(0)")
    w2_read5(a, RG, [4,5,6], 5)
    tg = Stamps(a, stamp == 'g', base=SB); tg.n = sg.n; tg.names = list(sg.names)
    g2_main(a, RG, tg.mark)
    a.e("s_branch L_tail")
    a.label("L_helper")
    a.e(f"s_sub_u32 s{S_HW}, s3, 4")
    V = kgen.kgen_vmap(8); V['transposed'] = True
    a.e(f"""
    s_lshr_b32 s{S_T}, s{S_HW}, 1
    s_lshl_b32 s{S_KC}, s2, 1
    s_add_u32 s{S_KC}, s{S_KC}, s{S_T}
    s_and_b32 s{S_KNH}, s{S_HW}, 1
    """)
    kgen.kgen_load(a, V, S_KC, S_KNH, S_T)
    a.e(f"""
    s_lshl_b32 s{S_T}, s{S_HW}, 6
    v_add_u32 v145, s{S_T}, v0
    s_lshl_b32 s{S_T+1}, s{S_P}, 5
    v_add_u32 v146, s{S_T+1}, v145
    v_min_u32 v146, 1375, v146
    v_lshlrev_b32 v146, 1, v146
    global_load_ushort v146, v146, {sp(S_B1)}
    s_lshl_b32 s{S_T}, s{S_KC}, 1
    v_mov_b32 v147, s{S_T}
    global_load_ushort v147, v147, {sp(S_DSK)}
    """)
    a.e("s_barrier")
    make_srd(a, SRD_X, S_X, 2097152)
    make_srd(a, SRD_WS, S_WS, WS_SIZE)
    make_srd(a, SRD_OUT, S_OUT, 2097152)
    make_srd(a, SRD_W, S_W2, 1409024)
    Ln = a.newlabel("Lnn")
    a.e(f"""
    s_mul_i32 s{S_KTAB}, s{S_HW}, {KG_TAB}
    s_add_u32 s{S_KTAB}, s{S_KTAB}, {LDS_KG}
    s_cmp_lg_u32 s2, 0
    s_cbranch_scc1 {Ln}
    s_cmp_lg_u32 s3, 4
    s_cbranch_scc1 {Ln}
    s_memrealtime s[{S_T}:{S_T+1}]
    s_waitcnt lgkmcnt(0)
    s_or_b32 s{S_T}, s{S_T}, 1
    v_mov_b32 v1, s{S_T}
    v_mov_b32 v2, 0
    s_mov_b64 s[{S_EX}:{S_EX+1}], exec
    s_mov_b64 exec, 1
    global_store_dword v2, v1, {sp(S_DBG)} sc1
    s_mov_b64 exec, s[{S_EX}:{S_EX+1}]
    """)
    a.label(Ln)
    kgen.kgen_addr_setup(a, V, S_KTAB)
    a.e("s_waitcnt vmcnt(0)")
    sh.mark('par')
    a.e(f"""
    v_lshlrev_b32 v146, 16, v146
    v_lshlrev_b32 v144, 2, v145
    v_add_u32 v144, {LDS_B1}, v144
    v_cmp_gt_u32 vcc, 192, v145
    s_and_saveexec_b64 s[{S_EX}:{S_EX+1}], vcc
    ds_write_b32 v144, v146
    s_mov_b64 exec, s[{S_EX}:{S_EX+1}]
    v_lshlrev_b32 v147, 16, v147
    v_readfirstlane_b32 s35, v147
    """)
    ch = list(kgen.kgen_chunks(V, S_KK, None)[:-1])
    a.e(f"s_mov_b32 m0, s{S_KTAB}")
    npk = CFG.get('npk', 26)
    for i, f in enumerate(ch):
        if getattr(f, 'is_step', False): f(a, i >= npk)
        else: f(a)
        if i == 17:
            Ln3 = a.newlabel("Lnn"); Lp = a.newlabel("Lnp"); Lq = a.newlabel("Lnq")
            a.e(f"""
            s_cmp_lg_u32 s3, 4
            s_cbranch_scc1 {Ln3}
            s_mov_b32 s{S_SPIN}, 200000
            """)
            a.label(Lp)
            a.e(f"""
            v_mov_b32 v1, 0
            global_load_dword v2, v1, {sp(S_DBG)} sc1
            s_waitcnt vmcnt(0)
            v_readfirstlane_b32 s{S_T}, v2
            s_cmp_lg_u32 s{S_T}, 0
            s_cbranch_scc1 {Lq}
            s_sub_u32 s{S_SPIN}, s{S_SPIN}, 1
            s_cmp_eq_u32 s{S_SPIN}, 0
            s_cbranch_scc1 {Lq}
            s_sleep 2
            s_branch {Lp}
            """)
            a.label(Lq)
            a.e(f"""
            v_mov_b32 v1, {LDS_CNT+32}
            ds_write_b32 v1, v2
            """)
            a.label(Ln3)
            a.e("s_waitcnt lgkmcnt(0)")
            lds_arrive(a, F_HRDY, 1, 2)
            sh.mark('kgA')
    kgen.kgen_x_write(a, V, S_KNH, S_KTAB)
    sh.mark('kgC')
    pair_sync(a, F_SYNC3, 1, 2)
    lds_wait_cnt(a, F_CNT, 16, 1, 2)
    read_nonce_lds(a, 1)
    a.e(f"""
    s_lshr_b32 s{S_T}, s{S_HW}, 1
    s_mul_i32 s80, s{S_T}, {U_CH}
    s_add_u32 s80, s80, {LDS_U + 16}
    s_mul_i32 s83, s{S_T}, {KC_STR}
    s_add_u32 s83, s83, {LDS_KG}
    s_lshl_b32 s{S_T}, s{S_KNH}, 6
    v_add_u32 v152, s{S_T}, v0
    """)
    kpost.finish(a, V, S_KNH, S_KTAB, 80, S_T+2)
    pair_sync(a, F_SYNC2, 1, 2)
    sh.mark('kfin')
    a.e(f"""
    v_lshlrev_b32 v150, 6, v0
    s_lshr_b32 s{S_T}, s2, 5
    s_lshl_b32 s{S_T}, s{S_T}, 11
    s_add_u32 s92, s{S_T}, {FA_OFF}
    """)
    a.e("v_mov_b32 v8, v152")
    kpost.copies(a, 12, 8, S_KNH, 80, 83, KC_COPY)
    kpost.tail_patch(a, 12, S_KNH, 80, 83, KC_COPY)
    sh.mark('kcp')
    poll_flags(a, 32, 150, 92, 151)
    a.e(f"""
    s_lshr_b32 s{S_T+1}, s{S_HW}, 1
    s_lshl_b32 s{S_T+2}, s2, 1
    s_add_u32 s{S_T+2}, s{S_T+2}, s{S_T+1}
    s_lshl_b32 s{S_T+2}, s{S_T+2}, 12
    s_add_u32 s{S_T+2}, s{S_T+2}, {WS_XNT}
    v_lshlrev_b32 v153, 4, v152
    buffer_load_dwordx4 v[156:159], v153, {sq(SRD_WS)}, s{S_T+2} offen sc1
    buffer_load_dwordx4 v[160:163], v153, {sq(SRD_WS)}, s{S_T+2} offen offset:2048 sc1
    s_mul_i32 s{S_T+3}, s{S_T+1}, {U_CH}
    s_add_u32 s{S_T+3}, s{S_T+3}, {LDS_U}
    v_add_u32 v153, s{S_T+3}, v153
    """)
    pair_sync(a, F_SYNC4, 1, 2)
    a.e(f"""
    v_mov_b32 v72, 0
    v_mov_b32 v73, 0
    v_mov_b32 v74, 0
    v_mov_b32 v75, 0
    v_cmp_gt_u32 vcc, 30, v152
    s_and_saveexec_b64 s[{S_EX}:{S_EX+1}], vcc
    ds_write_b128 v153, v[72:75]
    s_mov_b64 exec, s[{S_EX}:{S_EX+1}]
    s_waitcnt vmcnt(0)
    ds_write_b128 v153, v[156:159] offset:{U_PAD}
    ds_write_b128 v153, v[160:163] offset:{U_PAD+2048}
    """)
    C = conv.conv_vmap(8)
    a.e(f"""
    s_lshr_b32 s{S_T}, s{S_HW}, 1
    s_mul_i32 s76, s{S_T}, {KC_STR}
    s_add_u32 s76, s76, {LDS_KG}
    s_mul_i32 s77, s{S_T}, {U_CH}
    s_add_u32 s77, s77, {LDS_U}
    s_and_b32 s78, s{S_HW}, 1
    """)
    conv.conv_addr_setup(a, C, 76, 77, 78, S_T)
    p2_setup5(a, RH)
    w2_dma_lane(a, 232, 236)
    w2_read_lane5(a, 244, 1)
    sh.mark('uld')
    lds_wait_cnt(a, F_CNT, 36, 1, 2)
    if CFG.get('w2pf', 1):
        Lpf = a.newlabel("Lpf")
        a.e(f"s_cmp_lg_u32 s3, 7"); a.e(f"s_cbranch_scc1 {Lpf}")
        a.e(f"""
        s_lshr_b32 s{t}, s2, 3
        s_mul_i32 s{t}, s{t}, {43*1024}
        s_and_b32 s{t+1}, s2, 1
        s_lshl_b32 s{t+1}, s{t+1}, 9
        s_add_u32 s{t}, s{t}, s{t+1}
        v_lshrrev_b32 v154, 2, v0
        v_lshlrev_b32 v154, 10, v154
        v_and_b32 v155, 3, v0
        v_lshl_add_u32 v154, v155, 7, v154
        """)
        for i in range(3):
            a.e(f"s_add_u32 s{t+1}, s{t}, {i*16384}")
            a.e(f"buffer_load_dword v{164+i}, v154, {sq(SRD_W)}, s{t+1} offen")
        a.label(Lpf)
    for g in w2_groups5(RH, [0,1], 232):
        for l in g: a.e(l)
    a.e("s_waitcnt vmcnt(0)")
    w2_read5(a, RH, [0,1], 244)
    for g in w2_groups5(RH, [2,3], 232):
        for l in g: a.e(l)
    pair_sync(a, F_SYNC1, 1, 2)
    a.e("s_waitcnt vmcnt(0)")
    w2_read5(a, RH, [2,3], 244)
    sh.mark('hready')
    lds_wait_cnt(a, F_GELU, 4, 1, 2)
    sh.mark('cstart')
    conv.conv_main(a, C)
    sh.mark('conv')
    a.e(f"""
    s_lshr_b32 s{S_T}, s{S_HW}, 1
    s_lshl_b32 s79, s2, 1
    s_add_u32 s79, s79, s{S_T}
    s_lshl_b32 s79, s79, 12
    s_add_u32 s79, s79, {WS_AOT}
    """)
    conv_exchange_epilogue(a, C, 77, 35, 79)
    a.e("s_waitcnt vmcnt(0)")
    a.e(f"""
    s_lshl_b32 s{S_T}, s2, 6
    s_add_u32 s{S_T}, s{S_T}, {FC_OFF}
    """)
    lds_arrive_signal(a, 8, 4, S_T, 20)
    sh.mark('sigC')
    g2_pre(a)
    th = Stamps(a, stamp == 'h', base=SB); th.n = sh.n; th.names = list(sh.names)
    g2_main(a, RH, th.mark)
    a.label("L_tail")
    tail = Stamps(a, stamp is not None, base=SB)
    src = tg if stamp == 'g' else th
    tail.n = src.n if stamp else 0
    tail.names = list(src.names)
    final_part(a, tail.mark)
    a.e("s_waitcnt vmcnt(0)")
    if stamp: tail.dump()
    kernel_fused.names = tail.names
    a.label("L_end")
    a.e("s_endpgm")
    return (KNAME, a.text(), 256, 102)

def gemm_wave_setup6(a):
    t = S_T
    a.e(f"""
    s_and_b32 s{S_LH}, s3, 1
    s_lshr_b32 s{S_FH}, s3, 1
    s_lshl_b32 s{S_LTA}, s{S_LH}, 1
    s_add_u32 s{S_LTB}, s{S_LTA}, 1
    s_sub_u32 s{S_LTB}, s{S_LTB}, s{S_FH}
    s_add_u32 s{S_LTA}, s{S_LTA}, s{S_FH}
    s_mov_b32 s{S_GC}, {hx(C0)}
    s_mov_b32 s{S_GC+1}, {hx(C1)}
    s_mov_b32 s{S_ONE}, 1.0
    s_mov_b32 s{S_ONE+1}, 1.0
    v_lshrrev_b32 v1, 2, v0
    v_mul_u32_u24 v2, 384, v1
    v_and_b32 v3, 3, v0
    v_lshl_add_u32 v2, v3, 3, v2
    v_lshrrev_b32 v3, 1, v1
    v_and_b32 v3, 3, v3
    s_mul_i32 s{t}, s{S_FH}, 6
    """)
    for f in range(6):
        a.e(f"""
        s_add_u32 s{t+2}, s{t}, {f}
        v_xor_b32 v17, s{t+2}, v3
        v_lshl_add_u32 v{ADR+f}, v17, 5, v2
        v_add_u32 v{ADR+f}, {W1_SLOT[0]}, v{ADR+f}
        """)
    for i in range(4): a.e(f"v_mov_b32 v{ONES+i}, 0x3f803f80")

def gemm_x_stats6(a):
    b = Asm()
    gemm_x_stats(b)
    for l in b.lines: a.lines.append(l.replace("v14", "v17"))
```

```python
from v6 import *
import v6
CFG = v6.CFG
F_FULL = 128
F_FREE = 160
def free_arrive(a, st):
    a.e(f"s_mov_b64 exec, 1\nds_add_u32 v{VC}, v3 offset:{F_FREE+4*st}\ns_mov_b64 exec, -1")

def gemm_stage7(a, st, lh):
    cs_slots = [0,1,2] if lh == 0 else [3,4,5]
    def mm(sp_, buf):
        M = []
        s = 2*st + sp_
        for f in range(6):
            for lt in range(2):
                c = "0" if s == 0 else vr(acc(f,lt),4)
                M.append(f"v_mfma_f32_16x16x32_bf16 {vr(acc(f,lt),4)}, {vr(buf+4*f,4)}, {vr(xf(lt,s),4)}, {c}")
            if f in cs_slots:
                D = CSA + 4*cs_slots.index(f)
                c = "0" if s == 0 else vr(D,4)
                M.append(f"v_mfma_f32_16x16x32_bf16 {vr(D,4)}, {vr(buf+4*f,4)}, {vr(ONES,4)}, {c}")
        return M
    a.e("s_waitcnt lgkmcnt(0)")
    chk = 2 <= st + 1 <= 7
    if chk: a.e(f"ds_read_b32 v1, v{VC} offset:{F_FULL + 4*(st+1)}")
    M = mm(0, AF0); L = a_reads(1, AF1)
    for i in range(len(M)):
        a.e(M[i])
        if i < len(L): a.e(L[i])
        if i == 4 and chk:
            Ls = a.newlabel("Lsp"); Ld = a.newlabel("Lsd")
            a.e(f"""
            s_waitcnt lgkmcnt(5)
            v_readfirstlane_b32 s{S_T+4}, v1
            s_cmp_lg_u32 s{S_T+4}, 0
            s_cbranch_scc1 {Ld}
            s_mov_b32 s{S_SPIN}, 4000000
            """)
            a.label(Ls)
            a.e(f"""
            ds_read_b32 v1, v{VC} offset:{F_FULL + 4*(st+1)}
            s_waitcnt lgkmcnt(0)
            v_readfirstlane_b32 s{S_T+4}, v1
            s_cmp_lg_u32 s{S_T+4}, 0
            s_cbranch_scc1 {Ld}
            s_sub_u32 s{S_SPIN}, s{S_SPIN}, 1
            s_cmp_lg_u32 s{S_SPIN}, 0
            s_cbranch_scc1 {Ls}
            """)
            a.label(Ld)
    a.e("s_waitcnt lgkmcnt(0)")
    if st <= 5 or True:
        if st == 1:
            a.e("s_waitcnt vmcnt(0)")
        free_arrive(a, st)
    if st == 2: a.extra_stage1()
    M = mm(1, AF1); L = []
    if st < 7:
        d = W1_SLOT[(st+1)%4] - W1_SLOT[st%4]
        R = a_reads(0, AF0)
        for f in range(6):
            L.append(f"v_add_u32 v{ADR+f}, {d & 0xffffffff:#x}, v{ADR+f}")
            L.append(R[2*f]); L.append(R[2*f+1])
    li = 0
    for i in range(len(M)):
        a.e(M[i])
        for _ in range(2 if i < 3 else 1):
            if li < len(L): a.e(L[li]); li += 1
    while li < len(L): a.e(L[li]); li += 1

def w1_full_stage(a, sSt, vp):
    t = S_T
    a.e(f"""
    s_add_u32 s79, s{S_ROT}, s{sSt}
    s_and_b32 s79, s79, 7
    s_lshl_b32 s79, s79, 6
    s_mul_i32 s79, s79, 2752
    s_lshl_b32 s{t+1}, s{S_P}, 6
    s_add_u32 s79, s79, s{t+1}
    s_and_b32 s{t+1}, s{sSt}, 3
    s_mov_b32 s81, {W1_SLOT[1]}
    s_cmp_eq_u32 s{t+1}, 0
    s_cselect_b32 s81, {W1_SLOT[0]}, s81
    s_cmp_eq_u32 s{t+1}, 2
    s_cselect_b32 s81, {W1_SLOT[2]}, s81
    s_cmp_eq_u32 s{t+1}, 3
    s_cselect_b32 s81, {W1_SLOT[3]}, s81
    """)
    for G in range(8):
        rows = 32*(G>>2) + 16*(G&1) + 4*((G>>1)&1)
        a.e(f"s_add_u32 s{t}, s79, {rows*2752}")
        for p in range(3):
            a.e(f"s_add_u32 m0, s81, {(G*3+p)*1024}")
            a.e(f"buffer_load_dwordx4 v{vp+p}, {sq(SRD_W)}, s{t} offen lds")

def kernel_fused(stamp=None):
    a = Asm()
    SB = 84
    sg = Stamps(a, stamp == 'g', base=SB); sh = Stamps(a, stamp == 'h', base=SB)
    both = Stamps(a, stamp is not None, base=SB)
    both.mark('start')
    prologue(a, 256, "L_end")
    g1_map(a)
    a.e("s_waitcnt lgkmcnt(0)")
    both.mark('karg')
    sg.n = sh.n = both.n; sg.names = list(both.names); sh.names = list(both.names)
    a.e("s_cmp_ge_u32 s3, 4")
    a.e("s_cbranch_scc1 L_helper")
    t = S_T
    make_srd(a, SRD_X, S_X, 2097152)
    make_srd(a, SRD_W, S_W1, 1409024)
    a.e(f"""
    v_mov_b32 v1, {LDS_CNT}
    v_lshl_add_u32 v1, v0, 2, v1
    v_mov_b32 v2, 0
    v_cmp_gt_u32 vcc, 48, v0
    s_and_saveexec_b64 s[{S_EX}:{S_EX+1}], vcc
    ds_write_b32 v1, v2
    s_mov_b64 exec, s[{S_EX}:{S_EX+1}]
    s_waitcnt lgkmcnt(0)
    """)
    a.e("s_barrier")
    x_dma16r(a, 1)
    make_srd(a, SRD_WS, S_WS, WS_SIZE)
    make_srd(a, SRD_OUT, S_OUT, 2097152)
    w1_lane_setup(a, VW1, AF1)
    def issue_now(st):
        hdr, G = w1_groups6(st); a.e(hdr)
        for g in G:
            for l in g: a.e(l)
    issue_now(0)
    gemm_wave_setup6(a)
    a.e(f"v_mov_b32 v{VC}, {LDS_CNT+F_CNT}")
    a.e("v_mov_b32 v3, 1")
    a.e("s_waitcnt vmcnt(6)")
    sg.mark('xland')
    sw_arrive(a); sw_wait(a, 4, 1)
    sg.mark('B0')
    a.e("s_setprio 1")
    issue_now(1)
    gemm_x_stats6(a)
    a.e("s_waitcnt vmcnt(0)")
    a.e("v_mov_b32 v3, 1")
    sg.mark('xn')
    sw_arrive(a); sw_wait(a, 8, 1)
    for l in a_reads(0, AF0): a.e(l)
    gemm_xn_store(a)
    def stage_extra():
        La = a.newlabel("Lsa"); Lp = a.newlabel("Lnp"); Lq = a.newlabel("Lnq")
        a.e(f"s_cmp_lg_u32 s3, 0"); a.e(f"s_cbranch_scc1 {La}")
        lds_wait_cnt(a, F_FREE+4, 4, 2, 1)
        a.e(f"""
        v_mov_b32 v2, {LDS_CNT+32}
        s_mov_b32 s{S_SPIN}, 4000000
        """)
        a.label(Lp)
        a.e(f"""
        ds_read_b32 v1, v2
        s_waitcnt lgkmcnt(0)
        v_readfirstlane_b32 s{S_NONCE}, v1
        s_cmp_lg_u32 s{S_NONCE}, 0
        s_cbranch_scc1 {Lq}
        s_sub_u32 s{S_SPIN}, s{S_SPIN}, 1
        s_cmp_lg_u32 s{S_SPIN}, 0
        s_cbranch_scc1 {Lp}
        """)
        a.label(Lq)
        a.e(f"""
        s_lshl_b32 s{t}, s{S_CT}, 5
        s_add_u32 s{t}, s{t}, s{S_RT}
        s_lshl_b32 s{t}, s{t}, 6
        s_add_u32 s{t}, s{t}, {FA_OFF}
        v_mov_b32 v1, 0
        v_mov_b32 v2, s{S_NONCE}
        s_mov_b64 exec, 1
        buffer_store_dword v2, v1, {sq(SRD_WS)}, s{t} offen sc1
        s_mov_b64 exec, -1
        """)
        a.label(La)
    a.extra_stage1 = stage_extra
    a.e(f"s_cmp_eq_u32 s{S_LH}, 1")
    a.e("s_cbranch_scc1 L_gl1")
    for lh in range(2):
        if lh == 1: a.label("L_gl1")
        for st in range(8):
            if lh == 0 and st in (0,4): sg.mark(f'S{st}')
            gemm_stage7(a, st, lh)
        cs_write(a, lh)
        if lh == 0: a.e("s_branch L_gdone")
    a.label("L_gdone")
    lds_arrive(a, F_GDONE, 1, 2)
    make_srd(a, SRD_W, S_W2, 1409024)
    lds_wait_cnt(a, F_HRDY, 4, 1, 2)
    read_nonce_lds(a, 1)
    p2_setup5(a, RG)
    w2_dma_lane(a, 18, 1)
    lds_wait_cnt(a, F_GDONE, 4, 1, 2)
    sg.mark('E0')
    a.e("s_setprio 2")
    CFG['dma_si'] = (1,3,5,7)
    gemm_epilogue2(a, w2_groups5(RG, [0,1,2,3], 18))
    lds_arrive(a, F_GELU, 1, 2)
    sg.mark('epi')
    a.e(f"v_mov_b32 v4, v18")
    w2_read_lane5(a, 5, 1)
    Lw = a.newlabel("Lw"); Lw2 = a.newlabel("Lw")
    a.e(f"""
    s_mul_i32 s{t}, s{S_FH}, 3
    s_add_u32 s{t}, s{t}, 2
    s_cmp_ge_u32 s{t}, s{S_NP}
    s_cbranch_scc1 {Lw}
    s_waitcnt vmcnt(3)
    s_branch {Lw2}
    """)
    a.label(Lw); a.e("s_waitcnt vmcnt(1)"); a.label(Lw2)
    w2_read5(a, RG, [0,1,2,3], 5)
    a.e("s_waitcnt vmcnt(0)")
    a.e(f"""
    s_lshl_b32 s{t}, s{S_RT}, 3
    s_add_u32 s{t}, s{t}, s{S_CT}
    s_lshl_b32 s{t}, s{t}, 6
    s_add_u32 s{t}, s{t}, {FB_OFF}
    """)
    lds_arrive_signal(a, 4, 4, t, 1)
    a.e("s_setprio 0")
    sg.mark('sigB')
    for g in w2_groups5(RG, [4,5,6], 4):
        for l in g: a.e(l)
    g2_pre(a)
    a.e("s_waitcnt vmcnt(0)")
    w2_read5(a, RG, [4,5,6], 5)
    tg = Stamps(a, stamp == 'g', base=SB); tg.n = sg.n; tg.names = list(sg.names)
    g2_main(a, RG, tg.mark)
    a.e("s_branch L_tail")
    a.label("L_helper")
    a.e(f"s_sub_u32 s{S_HW}, s3, 4")
    V = kgen.kgen_vmap(8); V['transposed'] = True
    a.e(f"""
    s_lshr_b32 s{S_T}, s{S_HW}, 1
    s_lshl_b32 s{S_KC}, s2, 1
    s_add_u32 s{S_KC}, s{S_KC}, s{S_T}
    s_and_b32 s{S_KNH}, s{S_HW}, 1
    """)
    kgen.kgen_load(a, V, S_KC, S_KNH, S_T)
    a.e(f"""
    s_lshl_b32 s{S_T}, s{S_HW}, 6
    v_add_u32 v145, s{S_T}, v0
    s_lshl_b32 s{S_T+1}, s{S_P}, 5
    v_add_u32 v146, s{S_T+1}, v145
    v_min_u32 v146, 1375, v146
    v_lshlrev_b32 v146, 1, v146
    global_load_ushort v146, v146, {sp(S_B1)}
    s_lshl_b32 s{S_T}, s{S_KC}, 1
    v_mov_b32 v147, s{S_T}
    global_load_ushort v147, v147, {sp(S_DSK)}
    """)
    a.e("s_barrier")
    make_srd(a, SRD_X, S_X, 2097152)
    make_srd(a, SRD_WS, S_WS, WS_SIZE)
    make_srd(a, SRD_OUT, S_OUT, 2097152)
    make_srd(a, SRD_W, S_W1, 1409024)
    Ln = a.newlabel("Lnn")
    a.e(f"""
    s_mul_i32 s{S_KTAB}, s{S_HW}, {KG_TAB}
    s_add_u32 s{S_KTAB}, s{S_KTAB}, {LDS_KG}
    s_cmp_lg_u32 s2, 0
    s_cbranch_scc1 {Ln}
    s_cmp_lg_u32 s3, 4
    s_cbranch_scc1 {Ln}
    s_memrealtime s[{S_T}:{S_T+1}]
    s_waitcnt lgkmcnt(0)
    s_or_b32 s{S_T}, s{S_T}, 1
    v_mov_b32 v1, s{S_T}
    v_mov_b32 v2, 0
    s_mov_b64 s[{S_EX}:{S_EX+1}], exec
    s_mov_b64 exec, 1
    global_store_dword v2, v1, {sp(S_DBG)} sc1
    s_mov_b64 exec, s[{S_EX}:{S_EX+1}]
    """)
    a.label(Ln)
    kgen.kgen_addr_setup(a, V, S_KTAB)
    w1_lane_setup(a, 232, 236)
    a.e("s_waitcnt vmcnt(0)")
    sh.mark('par')
    a.e(f"""
    v_lshlrev_b32 v146, 16, v146
    v_lshlrev_b32 v144, 2, v145
    v_add_u32 v144, {LDS_B1}, v144
    v_cmp_gt_u32 vcc, 192, v145
    s_and_saveexec_b64 s[{S_EX}:{S_EX+1}], vcc
    ds_write_b32 v144, v146
    s_mov_b64 exec, s[{S_EX}:{S_EX+1}]
    v_lshlrev_b32 v147, 16, v147
    v_readfirstlane_b32 s35, v147
    """)
    ch = list(kgen.kgen_chunks(V, S_KK, None)[:-1])
    ch.append(lambda a: kgen.kgen_x_write(a, V, S_KNH, S_KTAB))
    npk = CFG.get('npk', 26)
    def duty(lo, stage_base, addr_base, addr_mul, thr):
        L = a.newlabel("Ldu")
        a.e(f"""
        s_sub_u32 s{t+6}, s{S_HW}, {lo}
        s_cmp_ge_u32 s{t+6}, 2
        s_cbranch_scc1 {L}
        s_mul_i32 s{t+5}, s{t+6}, {addr_mul}
        s_add_u32 s{t+5}, s{t+5}, {LDS_CNT+addr_base}
        s_mov_b32 s93, {thr}
        s_add_u32 s92, s{t+6}, {stage_base}
        v_mov_b32 v1, s{t+5}
        s_mov_b32 s{S_SPIN}, 4000000
        """)
        Ls = a.newlabel("Lds"); Ld = a.newlabel("Ldd")
        a.label(Ls)
        a.e(f"""
        ds_read_b32 v2, v1
        s_waitcnt lgkmcnt(0)
        v_readfirstlane_b32 s{t+4}, v2
        s_cmp_ge_u32 s{t+4}, s93
        s_cbranch_scc1 {Ld}
        s_sub_u32 s{S_SPIN}, s{S_SPIN}, 1
        s_cmp_lg_u32 s{S_SPIN}, 0
        s_cbranch_scc1 {Ls}
        """)
        a.label(Ld)
        w1_full_stage(a, 92, 232)
        a.label(L)
    def full(lo, stage_base):
        L = a.newlabel("Lfu")
        a.e(f"""
        s_sub_u32 s{t+6}, s{S_HW}, {lo}
        s_cmp_ge_u32 s{t+6}, 2
        s_cbranch_scc1 {L}
        s_add_u32 s{t+6}, s{t+6}, {stage_base}
        s_lshl_b32 s{t+6}, s{t+6}, 2
        s_add_u32 s{t+6}, s{t+6}, {LDS_CNT+F_FULL}
        v_mov_b32 v1, s{t+6}
        v_mov_b32 v2, 1
        s_waitcnt vmcnt(0)
        ds_write_b32 v1, v2
        """)
        a.label(L)
    P = CFG.get('pos', dict(d1=36, f1=40, d2=42, f2=47, d3=49, f3=53))
    for i, f in enumerate(ch):
        if i == P['d1']: duty(0, 2, F_CNT, 0, 8)
        if i == P['f1']: full(0, 2)
        if i == P['d2']: duty(2, 4, F_FREE, 4, 4)
        if i == P['f2']: full(2, 4)
        if i == P['d3']: duty(0, 6, F_FREE+8, 4, 4)
        a.e(f"s_mov_b32 m0, s{S_KTAB}")
        if getattr(f, 'is_step', False): f(a, i >= npk)
        else: f(a)
        if i == 17:
            Ln3 = a.newlabel("Lnn"); Lp = a.newlabel("Lnp"); Lq = a.newlabel("Lnq")
            a.e(f"""
            s_cmp_lg_u32 s3, 4
            s_cbranch_scc1 {Ln3}
            s_mov_b32 s{S_SPIN}, 200000
            """)
            a.label(Lp)
            a.e(f"""
            v_mov_b32 v1, 0
            global_load_dword v2, v1, {sp(S_DBG)} sc1
            s_waitcnt vmcnt(0)
            v_readfirstlane_b32 s{S_T}, v2
            s_cmp_lg_u32 s{S_T}, 0
            s_cbranch_scc1 {Lq}
            s_sub_u32 s{S_SPIN}, s{S_SPIN}, 1
            s_cmp_eq_u32 s{S_SPIN}, 0
            s_cbranch_scc1 {Lq}
            s_sleep 2
            s_branch {Lp}
            """)
            a.label(Lq)
            a.e(f"""
            v_mov_b32 v1, {LDS_CNT+32}
            ds_write_b32 v1, v2
            """)
            a.label(Ln3)
            a.e("s_waitcnt lgkmcnt(0)")
            lds_arrive(a, F_HRDY, 1, 2)
            sh.mark('kgA')
    full(0, 6)
    sh.mark('kgC')
    pair_sync(a, F_SYNC3, 1, 2)
    read_nonce_lds(a, 1)
    a.e(f"""
    s_lshr_b32 s{S_T}, s{S_HW}, 1
    s_mul_i32 s80, s{S_T}, {U_CH}
    s_add_u32 s80, s80, {LDS_U + 16}
    s_mul_i32 s83, s{S_T}, {KC_STR}
    s_add_u32 s83, s83, {LDS_KG}
    s_lshl_b32 s{S_T}, s{S_KNH}, 6
    v_add_u32 v152, s{S_T}, v0
    """)
    lds_wait_cnt(a, F_FREE, 4, 1, 2)
    kpost.finish(a, V, S_KNH, S_KTAB, 80, S_T+2)
    pair_sync(a, F_SYNC2, 1, 2)
    sh.mark('kfin')
    a.e(f"""
    v_lshlrev_b32 v150, 6, v0
    s_lshr_b32 s{S_T}, s2, 5
    s_lshl_b32 s{S_T}, s{S_T}, 11
    s_add_u32 s92, s{S_T}, {FA_OFF}
    """)
    a.e("v_mov_b32 v8, v152")
    kpost.copies(a, 12, 8, S_KNH, 80, 83, KC_COPY)
    kpost.tail_patch(a, 12, S_KNH, 80, 83, KC_COPY)
    sh.mark('kcp')
    poll_flags(a, 32, 150, 92, 151)
    a.e(f"""
    s_lshr_b32 s{S_T+1}, s{S_HW}, 1
    s_lshl_b32 s{S_T+2}, s2, 1
    s_add_u32 s{S_T+2}, s{S_T+2}, s{S_T+1}
    s_lshl_b32 s{S_T+2}, s{S_T+2}, 12
    s_add_u32 s{S_T+2}, s{S_T+2}, {WS_XNT}
    v_lshlrev_b32 v153, 4, v152
    buffer_load_dwordx4 v[156:159], v153, {sq(SRD_WS)}, s{S_T+2} offen sc1
    buffer_load_dwordx4 v[160:163], v153, {sq(SRD_WS)}, s{S_T+2} offen offset:2048 sc1
    s_mul_i32 s{S_T+3}, s{S_T+1}, {U_CH}
    s_add_u32 s{S_T+3}, s{S_T+3}, {LDS_U}
    v_add_u32 v153, s{S_T+3}, v153
    """)
    pair_sync(a, F_SYNC4, 1, 2)
    a.e(f"""
    v_mov_b32 v72, 0
    v_mov_b32 v73, 0
    v_mov_b32 v74, 0
    v_mov_b32 v75, 0
    v_cmp_gt_u32 vcc, 30, v152
    s_and_saveexec_b64 s[{S_EX}:{S_EX+1}], vcc
    ds_write_b128 v153, v[72:75]
    s_mov_b64 exec, s[{S_EX}:{S_EX+1}]
    s_waitcnt vmcnt(0)
    ds_write_b128 v153, v[156:159] offset:{U_PAD}
    ds_write_b128 v153, v[160:163] offset:{U_PAD+2048}
    """)
    C = conv.conv_vmap(8)
    a.e(f"""
    s_lshr_b32 s{S_T}, s{S_HW}, 1
    s_mul_i32 s76, s{S_T}, {KC_STR}
    s_add_u32 s76, s76, {LDS_KG}
    s_mul_i32 s77, s{S_T}, {U_CH}
    s_add_u32 s77, s77, {LDS_U}
    s_and_b32 s78, s{S_HW}, 1
    """)
    conv.conv_addr_setup(a, C, 76, 77, 78, S_T)
    make_srd(a, SRD_W, S_W2, 1409024)
    p2_setup5(a, RH)
    w2_dma_lane(a, 232, 236)
    w2_read_lane5(a, 244, 1)
    sh.mark('uld')
    lds_wait_cnt(a, F_FREE+20, 4, 1, 2)
    if CFG.get('w2pf', 1):
        Lpf = a.newlabel("Lpf")
        a.e(f"s_cmp_lg_u32 s3, 7"); a.e(f"s_cbranch_scc1 {Lpf}")
        a.e(f"""
        s_lshr_b32 s{t}, s2, 3
        s_mul_i32 s{t}, s{t}, {43*1024}
        s_and_b32 s{t+1}, s2, 1
        s_lshl_b32 s{t+1}, s{t+1}, 9
        s_add_u32 s{t}, s{t}, s{t+1}
        v_lshrrev_b32 v154, 2, v0
        v_lshlrev_b32 v154, 10, v154
        v_and_b32 v155, 3, v0
        v_lshl_add_u32 v154, v155, 7, v154
        """)
        for i in range(3):
            a.e(f"s_add_u32 s{t+1}, s{t}, {i*16384}")
            a.e(f"buffer_load_dword v{164+i}, v154, {sq(SRD_W)}, s{t+1} offen")
        a.label(Lpf)
    for g in w2_groups5(RH, [0,1], 232):
        for l in g: a.e(l)
    a.e("s_waitcnt vmcnt(0)")
    w2_read5(a, RH, [0,1], 244)
    for g in w2_groups5(RH, [2,3], 232):
        for l in g: a.e(l)
    pair_sync(a, F_SYNC1, 1, 2)
    a.e("s_waitcnt vmcnt(0)")
    w2_read5(a, RH, [2,3], 244)
    sh.mark('hready')
    lds_wait_cnt(a, F_GELU, 4, 1, 2)
    sh.mark('cstart')
    conv.conv_main(a, C)
    sh.mark('conv')
    a.e(f"""
    s_lshr_b32 s{S_T}, s{S_HW}, 1
    s_lshl_b32 s79, s2, 1
    s_add_u32 s79, s79, s{S_T}
    s_lshl_b32 s79, s79, 12
    s_add_u32 s79, s79, {WS_AOT}
    """)
    conv_exchange_epilogue(a, C, 77, 35, 79)
    a.e("s_waitcnt vmcnt(0)")
    a.e(f"""
    s_lshl_b32 s{S_T}, s2, 6
    s_add_u32 s{S_T}, s{S_T}, {FC_OFF}
    """)
    lds_arrive_signal(a, 8, 4, S_T, 20)
    sh.mark('sigC')
    g2_pre(a)
    th = Stamps(a, stamp == 'h', base=SB); th.n = sh.n; th.names = list(sh.names)
    g2_main(a, RH, th.mark)
    a.label("L_tail")
    tail = Stamps(a, stamp is not None, base=SB)
    src = tg if stamp == 'g' else th
    tail.n = src.n if stamp else 0
    tail.names = list(src.names)
    final_part(a, tail.mark)
    a.e("s_waitcnt vmcnt(0)")
    if stamp: tail.dump()
    kernel_fused.names = tail.names
    a.label("L_end")
    a.e("s_endpgm")
    return (KNAME, a.text(), 256, 102)
```

```python
from v7 import *
import v7, v4
CFG = v4.CFG

G_NS = 7; H_NS = 4
STG_G = LDS_W2
STG_H = LDS_W2 + 65536
F_SYNC4 = 96
F_GELU = 88
S_STEP = 94
S_NS2 = 93
ACC2 = 64
def acc2(l, d): return ACC2 + (4*l + d)*4

class Role:
    def __init__(s, name, w2f, hbufs, nslots, nstg):
        s.name = name; s.w2f = w2f; s.hb = hbufs; s.n = nslots; s.nstg = nstg
    def wf(s, k, d): return s.w2f + (4*k + d)*4
RG = Role('g', 128, [16, 32, 48, 240], 7, 4)
RH = Role('h', 180, [16, 32, 48, 128], 4, 2)

def p2_setup5(a, role):
    t = S_T
    if role is RG:
        a.e(f"""
        s_mul_i32 s{t}, s3, 7
        s_mov_b32 s{t+1}, 7
        s_lshl_b32 s81, s3, 14
        s_add_u32 s81, s81, {STG_G}
        """)
    else:
        a.e(f"""
        s_lshl_b32 s{t}, s{S_HW}, 2
        s_add_u32 s{t}, s{t}, 28
        s_cmp_eq_u32 s{S_HW}, 3
        s_cselect_b32 s{t+1}, 3, 4
        s_lshl_b32 s81, s{S_HW}, 13
        s_add_u32 s81, s81, {STG_H}
        """)
    a.e(f"""
    s_add_u32 s{t+2}, s{S_RT}, s{S_CT}
    s_and_b32 s{t+2}, s{t+2}, 3
    s_cmp_ge_u32 s{t+2}, s{t+1}
    s_cselect_b32 s{t+3}, s{t+1}, 0
    s_sub_u32 s{t+2}, s{t+2}, s{t+3}
    """)
    for k in range(role.n):
        a.e(f"""
        s_add_u32 s{t+4}, s{t+2}, {k}
        s_cmp_ge_u32 s{t+4}, s{t+1}
        s_cselect_b32 s{t+3}, s{t+1}, 0
        s_sub_u32 s{t+4}, s{t+4}, s{t+3}
        s_add_u32 s{S_STEP+k}, s{t+4}, s{t}
        """)
    a.e(f"""
    s_lshl_b32 s80, s{S_CT}, 7
    s_mov_b32 s{S_NS2}, s{t+1}
    """)

def w2_groups5(role, slots, vD):
    L = []
    for k in slots:
        for q in range(4):
            g = []
            if q == 0: g += [f"s_lshl_b32 s69, s{S_STEP+k}, 15", "s_add_u32 s69, s69, s80"]
            g += [f"s_add_u32 m0, s81, {(k%role.nstg)*4096 + q*1024}",
                  f"s_add_u32 s68, s69, {q*8192}",
                  f"buffer_load_dwordx4 v{vD}, {sq(SRD_W)}, s68 offen lds"]
            L.append(g)
    return L

def w2_read_lane5(a, vA, vt):
    a.e(f"""
    v_lshrrev_b32 v{vt}, 2, v0
    v_lshlrev_b32 v{vt+1}, 7, v{vt}
    v_and_b32 v{vt+2}, 3, v0
    v_lshl_add_u32 v{vt+1}, v{vt+2}, 3, v{vt+1}
    v_lshrrev_b32 v{vt+2}, 1, v{vt}
    v_and_b32 v{vt+2}, 3, v{vt+2}
    v_add_u32 v{vt+1}, s81, v{vt+1}
    """)
    for ds in range(4):
        a.e(f"v_xor_b32 v{vt}, {ds}, v{vt+2}")
        a.e(f"v_lshl_add_u32 v{vA+ds}, v{vt}, 5, v{vt+1}")

def w2_read5(a, role, slots, vA):
    n = 0
    for k in slots:
        for ds in range(4):
            for h in range(2):
                a.e(f"ds_read_b64_tr_b16 {vr(role.wf(k,ds)+2*h,2)}, v{vA+ds} offset:{(k%role.nstg)*4096 + h*2048}")
                n += 1
                if n % 12 == 0: a.e("s_waitcnt lgkmcnt(3)")
    a.e("s_waitcnt lgkmcnt(0)")

def h_load5(a, role, k, vL):
    buf = role.hb[k % len(role.hb)]
    a.e(f"s_lshl_b32 s69, s{S_STEP+k}, 12")
    a.e(f"s_add_u32 s69, s69, s{S_HB}")
    for ls in range(4):
        a.e(f"s_add_u32 s68, s69, {ls*1024}")
        a.e(f"buffer_load_dwordx4 {vr(buf+4*ls,4)}, v{vL}, {sq(SRD_WS)}, s68 offen sc1")

def mfma5(a, role, k):
    buf = role.hb[k % len(role.hb)]
    for ls in range(4):
        for ds in range(4):
            c = "0" if k == 0 else vr(acc2(ls,ds),4)
            a.e(f"v_mfma_f32_16x16x32_bf16 {vr(acc2(ls,ds),4)}, {vr(buf+4*ls,4)}, {vr(role.wf(k,ds),4)}, {c}")

VL5 = 9; VX5 = 10
def g2_pre(a):
    t = S_T
    a.e(f"""
    v_lshlrev_b32 v{VL5}, 4, v0
    s_mul_i32 s{S_HB}, s{S_RT}, {H_RT}
    s_add_u32 s{S_HB}, s{S_HB}, {WS_H}
    s_lshl_b32 s{t}, s{S_RT}, 9
    s_add_u32 s78, s{t}, {FB_OFF}
    v_lshrrev_b32 v2, 4, v0
    v_lshrrev_b32 v3, 2, v0
    v_and_b32 v3, 3, v3
    v_and_b32 v1, 3, v0
    v_lshlrev_b32 v2, 5, v2
    v_lshl_add_u32 v2, v1, 3, v2
    v_lshl_add_u32 v3, v3, 12, v2
    s_lshl_b32 s{t}, s{S_RT}, 16
    s_lshl_b32 s{t+1}, s{S_CT}, 7
    s_add_u32 s{t}, s{t}, s{t+1}
    s_lshr_b32 s{t+2}, s3, 1
    s_lshl_b32 s{t+2}, s{t+2}, 14
    s_add_u32 s{t}, s{t}, s{t+2}
    s_and_b32 s{t+2}, s3, 1
    s_lshl_b32 s{t+2}, s{t+2}, 11
    s_add_u32 s{t}, s{t}, s{t+2}
    v_add_u32 v3, s{t}, v3
    buffer_load_dwordx2 {vr(VX5,2)}, v3, {sq(SRD_X)}, 0 offen
    buffer_load_dwordx2 {vr(VX5+2,2)}, v3, {sq(SRD_X)}, 0 offen offset:1024
    v_add_u32 v2, s{t+1}, v2
    global_load_dwordx2 {vr(VX5+4,2)}, v2, {sp(S_B2)}
    v_lshlrev_b32 v1, 6, v0
    """)

def g2_main(a, role, mk):
    poll_flags(a, 8, 1, 78, 2)
    mk('hflag')
    nb = len(role.hb)
    for k in range(min(nb, role.n)): h_load5(a, role, k, VL5)
    issued = min(nb, role.n)
    for k in range(role.n):
        last_opt = (role is RH and k == 3)
        if last_opt:
            L = a.newlabel("Lno4")
            a.e(f"s_cmp_lt_u32 s{S_NS2}, 4"); a.e(f"s_cbranch_scc1 {L}")
        a.e(f"s_waitcnt vmcnt({4*(issued-1-k)})")
        mfma5(a, role, k)
        if issued < role.n:
            h_load5(a, role, issued, VL5); issued += 1
        if last_opt: a.label(L)
    mk('g2mm')

def final_part(a, mk):
    t = S_T
    a.e(f"""
    s_lshr_b32 s{t+1}, s3, 1
    s_lshl_b32 s{t}, s{S_CT}, 5
    s_lshl_b32 s{t+2}, s{t+1}, 3
    s_add_u32 s{t}, s{t}, s{t+2}
    s_lshl_b32 s{t}, s{t}, 6
    s_add_u32 s78, s{t}, {FC_OFF}
    v_lshlrev_b32 v1, 6, v0
    """)
    poll_flags(a, 8, 1, 78, 2)
    a.e(f"""
    v_and_b32 v1, 15, v0
    v_lshlrev_b32 v1, 12, v1
    v_lshrrev_b32 v2, 4, v0
    v_lshl_add_u32 v1, v2, 3, v1
    s_lshr_b32 s{t+1}, s3, 1
    s_lshl_b32 s{t}, s{S_CT}, 2
    s_add_u32 s{t}, s{t}, s{t+1}
    s_lshl_b32 s{t}, s{t}, 16
    s_lshl_b32 s{t+2}, s{S_RT}, 7
    s_add_u32 s{t}, s{t}, s{t+2}
    s_and_b32 s{t+2}, s3, 1
    s_lshl_b32 s{t+2}, s{t+2}, 6
    s_add_u32 s{t}, s{t}, s{t+2}
    s_add_u32 s{t}, s{t}, {WS_AOT}
    buffer_load_dwordx2 v[16:17], v1, {sq(SRD_WS)}, s{t} offen sc1
    buffer_load_dwordx2 v[18:19], v1, {sq(SRD_WS)}, s{t} offen offset:32 sc1
    s_waitcnt vmcnt(0)
    v_lshlrev_b32 v24, 16, v16
    v_and_b32 v25, 0xffff0000, v16
    v_lshlrev_b32 v26, 16, v17
    v_and_b32 v27, 0xffff0000, v17
    v_lshlrev_b32 v28, 16, v18
    v_and_b32 v29, 0xffff0000, v18
    v_lshlrev_b32 v30, 16, v19
    v_and_b32 v31, 0xffff0000, v19
    """)
    Ld = a.newlabel("Laod")
    for w in range(8):
        Ln = a.newlabel("Laon")
        a.e(f"s_cmp_lg_u32 s3, {w}"); a.e(f"s_cbranch_scc1 {Ln}")
        for k in range(2):
            A_ = acc2(2*(w&1)+k, w>>1)
            for i in range(4): a.e(f"v_add_f32 v{A_+i}, v{A_+i}, v{24+4*k+i}")
        a.e(f"s_branch {Ld}")
        a.label(Ln)
    a.label(Ld)
    mk('ao')
    a.e("s_barrier")
    a.e(f"s_lshl_b32 s{t}, s3, 8")
    a.e(f"s_mov_b32 m0, s{t}")
    for idx in range(32):
        a.e(f"ds_write_addtid_b32 v{ACC2+idx} offset:{2048*idx}")
    a.e(f"s_add_u32 m0, s{t}, 63740")
    for idx in range(32, 64):
        a.e(f"ds_write_addtid_b32 v{ACC2+idx} offset:{2048*idx - 63740}")
    a.e("s_waitcnt lgkmcnt(0)")
    mk('pw')
    a.e("s_barrier")
    a.e(f"""
    v_lshrrev_b32 v2, 4, v0
    v_lshlrev_b32 v2, 13, v2
    v_and_b32 v1, 15, v0
    v_lshl_add_u32 v2, v1, 4, v2
    s_lshr_b32 s{t}, s3, 1
    s_lshl_b32 s{t}, s{t}, 15
    s_and_b32 s{t+1}, s3, 1
    s_lshl_b32 s{t+1}, s{t+1}, 12
    s_add_u32 s{t}, s{t}, s{t+1}
    v_add_u32 v2, s{t}, v2
    """)
    T = ACC2; VX = VX5
    for k in range(2):
        for w in range(8):
            a.e(f"ds_read_b128 {vr(T+32*k+4*w,4)}, v2 offset:{2048*k + 256*w}")
        if k == 0: a.e("s_waitcnt lgkmcnt(4)")
    U = 24
    a.e(f"""
    v_lshlrev_b32 v{U+8}, 16, v{VX+4}
    v_and_b32 v{U+9}, 0xffff0000, v{VX+4}
    v_lshlrev_b32 v{U+10}, 16, v{VX+5}
    v_and_b32 v{U+11}, 0xffff0000, v{VX+5}
    """)
    for k in range(2):
        a.e(f"s_waitcnt lgkmcnt({8 if k == 0 else 0})")
        B_ = T + 32*k
        for step in (4,2,1):
            for w in range(step):
                for e in (0,2):
                    a.e(f"v_pk_add_f32 {vr(B_+4*w+e,2)}, {vr(B_+4*w+e,2)}, {vr(B_+4*(w+step)+e,2)}")
        a.e(f"""
        v_lshlrev_b32 v{U}, 16, v{VX+2*k}
        v_and_b32 v{U+1}, 0xffff0000, v{VX+2*k}
        v_lshlrev_b32 v{U+2}, 16, v{VX+2*k+1}
        v_and_b32 v{U+3}, 0xffff0000, v{VX+2*k+1}
        v_pk_add_f32 {vr(U,2)}, {vr(U,2)}, {vr(U+8,2)}
        v_pk_add_f32 {vr(U+2,2)}, {vr(U+2,2)}, {vr(U+10,2)}
        v_pk_add_f32 {vr(U,2)}, {vr(U,2)}, {vr(B_,2)}
        v_pk_add_f32 {vr(U+2,2)}, {vr(U+2,2)}, {vr(B_+2,2)}
        v_cvt_pk_bf16_f32 v{U+4+2*k}, v{U}, v{U+1}
        v_cvt_pk_bf16_f32 v{U+5+2*k}, v{U+2}, v{U+3}
        buffer_store_dwordx2 {vr(U+4+2*k,2)}, v3, {sq(SRD_OUT)}, 0 offen offset:{1024*k}
        """)
    mk('fin')

def w1_groups(st, vp, sW):
    slot = W1_SLOT[st % 4]
    t = S_T
    hdr = f"""
    s_add_u32 s79, s{S_ROT}, {st}
    s_and_b32 s79, s79, 7
    s_lshl_b32 s79, s79, 6
    s_lshr_b32 s{t+1}, s{sW}, 1
    s_lshl_b32 s{t+1}, s{t+1}, 5
    s_add_u32 s79, s79, s{t+1}
    s_and_b32 s{t+1}, s{sW}, 1
    s_lshl_b32 s{t+1}, s{t+1}, 2
    s_add_u32 s79, s79, s{t+1}
    s_mul_i32 s79, s79, 2752
    s_lshl_b32 s{t+1}, s{S_P}, 6
    s_add_u32 s79, s79, s{t+1}
    s_mul_i32 s81, s{sW}, 6144
    """
    G = []
    for gg in range(2):
        for p in range(3):
            g = []
            if gg == 1 and p == 0: g.append(f"s_add_u32 s79, s79, {16*2752}")
            g += [f"s_add_u32 m0, s81, {slot + (gg*3+p)*1024}", f"buffer_load_dwordx4 v{vp+p}, {sq(SRD_W)}, s79 offen lds"]
            G.append(g)
    return hdr, G

def gemm_stage8(a, st, lh):
    b = Asm(); b.uid = a.uid + 1000*(st+1) + 10000*lh
    if st <= 4:
        gemm_stage(a, st, lh)
        return
    cs_slots = [0,1,2] if lh == 0 else [3,4,5]
    def mm(sp_, buf):
        M = []
        s = 2*st + sp_
        for f in range(6):
            for lt in range(2):
                M.append(f"v_mfma_f32_16x16x32_bf16 {vr(acc(f,lt),4)}, {vr(buf+4*f,4)}, {vr(xf(lt,s),4)}, {vr(acc(f,lt),4)}")
            if f in cs_slots:
                D = CSA + 4*cs_slots.index(f)
                M.append(f"v_mfma_f32_16x16x32_bf16 {vr(D,4)}, {vr(buf+4*f,4)}, {vr(ONES,4)}, {vr(D,4)}")
        return M
    a.e("s_waitcnt lgkmcnt(0)")
    chk = st + 1 in (6, 7)
    if chk: a.e(f"ds_read_b32 v1, v{VC} offset:{F_FULL + 4*(st+1)}")
    M = mm(0, AF0); L = a_reads(1, AF1)
    for i in range(len(M)):
        a.e(M[i])
        if i < len(L): a.e(L[i])
        if i == 8 and chk:
            Ls = a.newlabel("Lsp"); Ld = a.newlabel("Lsd")
            a.e(f"""
            s_waitcnt lgkmcnt(9)
            v_readfirstlane_b32 s{S_T+4}, v1
            s_cmp_ge_u32 s{S_T+4}, 4
            s_cbranch_scc1 {Ld}
            s_mov_b32 s{S_SPIN}, 4000000
            """)
            a.label(Ls)
            a.e(f"""
            ds_read_b32 v1, v{VC} offset:{F_FULL + 4*(st+1)}
            s_waitcnt lgkmcnt(0)
            v_readfirstlane_b32 s{S_T+4}, v1
            s_cmp_ge_u32 s{S_T+4}, 4
            s_cbranch_scc1 {Ld}
            s_sub_u32 s{S_SPIN}, s{S_SPIN}, 1
            s_cmp_lg_u32 s{S_SPIN}, 0
            s_cbranch_scc1 {Ls}
            """)
            a.label(Ld)
    a.e("s_waitcnt lgkmcnt(0)")
    if st == 5: free_arrive(a, 5)
    M = mm(1, AF1); L = []
    if st < 7:
        d = W1_SLOT[(st+1)%4] - W1_SLOT[st%4]
        R = a_reads(0, AF0)
        for f in range(6):
            L.append(f"v_add_u32 v{ADR+f}, {d & 0xffffffff:#x}, v{ADR+f}")
            L.append(R[2*f]); L.append(R[2*f+1])
    li = 0
    for i in range(len(M)):
        a.e(M[i])
        for _ in range(2 if i < 3 else 1):
            if li < len(L): a.e(L[li]); li += 1
    while li < len(L): a.e(L[li]); li += 1

def kernel_fused(stamp=None):
    a = Asm()
    SB = 84
    sg = Stamps(a, stamp == 'g', base=SB); sh = Stamps(a, stamp == 'h', base=SB)
    both = Stamps(a, stamp is not None, base=SB)
    both.mark('start')
    prologue(a, 256, "L_end")
    g1_map(a)
    a.e("s_waitcnt lgkmcnt(0)")
    both.mark('karg')
    sg.n = sh.n = both.n; sg.names = list(both.names); sh.names = list(both.names)
    a.e("s_cmp_ge_u32 s3, 4")
    a.e("s_cbranch_scc1 L_helper")
    t = S_T
    make_srd(a, SRD_X, S_X, 2097152)
    make_srd(a, SRD_W, S_W1, 1409024)
    a.e("s_barrier")
    x_dma16r(a, 1)
    make_srd(a, SRD_WS, S_WS, WS_SIZE)
    make_srd(a, SRD_OUT, S_OUT, 2097152)
    w1_lane_setup(a, AF1, AF1+4)
    w1_issue(a, 0, AF1, 3)
    gemm_wave_setup(a)
    a.e(f"""
    v_mov_b32 v1, {LDS_CNT}
    v_lshl_add_u32 v1, v0, 2, v1
    v_mov_b32 v2, 0
    v_cmp_gt_u32 vcc, 48, v0
    s_and_saveexec_b64 s[{S_EX}:{S_EX+1}], vcc
    ds_write_b32 v1, v2
    s_mov_b64 exec, s[{S_EX}:{S_EX+1}]
    s_waitcnt lgkmcnt(0)
    s_waitcnt vmcnt(6)
    """)
    sg.mark('xland')
    a.e("s_barrier")
    sg.mark('B0')
    a.e("s_setprio 1")
    gemm_x_stats(a)
    a.e("s_waitcnt vmcnt(0)")
    sg.mark('xn')
    a.e("s_barrier")
    for l in a_reads(0, AF0): a.e(l)
    gemm_xn_store(a)
    a.e(f"v_mov_b32 v{VC}, {LDS_CNT}")
    a.e("v_mov_b32 v3, 1")
    a.e(f"s_cmp_eq_u32 s{S_LH}, 1")
    a.e("s_cbranch_scc1 L_gl1")
    for lh in range(2):
        if lh == 1: a.label("L_gl1")
        for st in range(8):
            if st == 2: a.e("s_waitcnt vmcnt(0)")
            if st <= 4: a.e("s_barrier")
            if lh == 0 and st in (0,4): sg.mark(f'S{st}')
            gemm_stage8(a, st, lh)
        cs_write(a, lh)
        if lh == 0: a.e("s_branch L_gdone")
    a.label("L_gdone")
    lds_arrive(a, F_GDONE, 1, 2)
    make_srd(a, SRD_W, S_W2, 1409024)
    read_nonce_lds(a, 1)
    p2_setup5(a, RG)
    w2_dma_lane(a, 18, 1)
    lds_wait_cnt(a, F_GDONE, 4, 1, 2)
    sg.mark('E0')
    a.e("s_setprio 2")
    CFG['dma_si'] = (1,3,5,7)
    gemm_epilogue2(a, w2_groups5(RG, [0,1,2,3], 18))
    lds_arrive(a, F_GELU, 1, 2)
    sg.mark('epi')
    a.e(f"v_mov_b32 v4, v18")
    w2_read_lane5(a, 5, 1)
    Lw = a.newlabel("Lw"); Lw2 = a.newlabel("Lw")
    a.e(f"""
    s_mul_i32 s{t}, s{S_FH}, 3
    s_add_u32 s{t}, s{t}, 2
    s_cmp_ge_u32 s{t}, s{S_NP}
    s_cbranch_scc1 {Lw}
    s_waitcnt vmcnt(3)
    s_branch {Lw2}
    """)
    a.label(Lw); a.e("s_waitcnt vmcnt(1)"); a.label(Lw2)
    w2_read5(a, RG, [0,1,2,3], 5)
    a.e("s_waitcnt vmcnt(0)")
    a.e(f"""
    s_lshl_b32 s{t}, s{S_RT}, 3
    s_add_u32 s{t}, s{t}, s{S_CT}
    s_lshl_b32 s{t}, s{t}, 6
    s_add_u32 s{t}, s{t}, {FB_OFF}
    """)
    lds_arrive_signal(a, 4, 4, t, 1)
    a.e("s_setprio 0")
    sg.mark('sigB')
    for g in w2_groups5(RG, [4,5,6], 4):
        for l in g: a.e(l)
    g2_pre(a)
    a.e("s_waitcnt vmcnt(0)")
    w2_read5(a, RG, [4,5,6], 5)
    tg = Stamps(a, stamp == 'g', base=SB); tg.n = sg.n; tg.names = list(sg.names)
    g2_main(a, RG, tg.mark)
    a.e("s_branch L_tail")
    a.label("L_helper")
    a.e(f"s_sub_u32 s{S_HW}, s3, 4")
    V = kgen.kgen_vmap(8); V['transposed'] = True
    a.e(f"""
    s_lshr_b32 s{S_T}, s{S_HW}, 1
    s_lshl_b32 s{S_KC}, s2, 1
    s_add_u32 s{S_KC}, s{S_KC}, s{S_T}
    s_and_b32 s{S_KNH}, s{S_HW}, 1
    """)
    kgen.kgen_load(a, V, S_KC, S_KNH, S_T)
    a.e(f"""
    s_lshl_b32 s{S_T}, s{S_HW}, 6
    v_add_u32 v145, s{S_T}, v0
    s_lshl_b32 s{S_T+1}, s{S_P}, 5
    v_add_u32 v146, s{S_T+1}, v145
    v_min_u32 v146, 1375, v146
    v_lshlrev_b32 v146, 1, v146
    global_load_ushort v146, v146, {sp(S_B1)}
    s_lshl_b32 s{S_T}, s{S_KC}, 1
    v_mov_b32 v147, s{S_T}
    global_load_ushort v147, v147, {sp(S_DSK)}
    """)
    a.e("s_barrier")
    make_srd(a, SRD_X, S_X, 2097152)
    make_srd(a, SRD_W, S_W1, 1409024)
    make_srd(a, SRD_WS, S_WS, WS_SIZE)
    make_srd(a, SRD_OUT, S_OUT, 2097152)
    Ln = a.newlabel("Lnn")
    a.e(f"""
    s_mul_i32 s{S_KTAB}, s{S_HW}, {KG_TAB}
    s_add_u32 s{S_KTAB}, s{S_KTAB}, {LDS_KG}
    s_cmp_lg_u32 s2, 0
    s_cbranch_scc1 {Ln}
    s_cmp_lg_u32 s3, 4
    s_cbranch_scc1 {Ln}
    s_memrealtime s[{S_T}:{S_T+1}]
    s_waitcnt lgkmcnt(0)
    s_or_b32 s{S_T}, s{S_T}, 1
    v_mov_b32 v1, s{S_T}
    v_mov_b32 v2, 0
    s_mov_b64 s[{S_EX}:{S_EX+1}], exec
    s_mov_b64 exec, 1
    global_store_dword v2, v1, {sp(S_DBG)} sc1
    s_mov_b64 exec, s[{S_EX}:{S_EX+1}]
    """)
    a.label(Ln)
    kgen.kgen_addr_setup(a, V, S_KTAB)
    w1_lane_setup(a, 232, 236)
    a.e("s_waitcnt vmcnt(0)")
    sh.mark('par')
    ch = list(kgen.kgen_chunks(V, S_KK, None)[:-1])
    ch.append(lambda a: kgen.kgen_x_write(a, V, S_KNH, S_KTAB))
    pos = [0]
    def bg(n, scalar=True):
        if n <= 0 or pos[0] >= len(ch): return
        for f in ch[pos[0]:pos[0]+n]:
            a.e(f"s_mov_b32 m0, s{S_KTAB}")
            if getattr(f, 'is_step', False): f(a, scalar)
            else: f(a)
        pos[0] = min(len(ch), pos[0]+n)
    def slot(st, n):
        hdr, G = w1_groups(st, 232, S_HW)
        a.e(hdr)
        left = n
        for i, g in enumerate(G):
            for l in g: a.e(l)
            k = (n*(i+1))//6 - (n*i)//6
            bg(k)
    sched = CFG.get('sched', [26, 27, 0, 0, 0, 0])
    bg(sched[0], scalar=False)
    sh.mark('kgA')
    a.e("s_barrier")
    Ln2 = a.newlabel("Lnn")
    a.e(f"""
    s_cmp_lg_u32 s3, 4
    s_cbranch_scc1 {Ln2}
    v_mov_b32 v1, 0
    global_load_dword v2, v1, {sp(S_DBG)} sc1
    """)
    a.label(Ln2)
    slot(1, 6); bg(sched[1]-6)
    a.e(f"""
    v_lshlrev_b32 v146, 16, v146
    v_lshlrev_b32 v144, 2, v145
    v_add_u32 v144, {LDS_B1}, v144
    v_cmp_gt_u32 vcc, 192, v145
    s_and_saveexec_b64 s[{S_EX}:{S_EX+1}], vcc
    ds_write_b32 v144, v146
    s_mov_b64 exec, s[{S_EX}:{S_EX+1}]
    v_lshlrev_b32 v147, 16, v147
    v_readfirstlane_b32 s35, v147
    """)
    Ln3 = a.newlabel("Lnn"); Lp = a.newlabel("Lnp"); Lq = a.newlabel("Lnq")
    a.e(f"""
    s_cmp_lg_u32 s3, 4
    s_cbranch_scc1 {Ln3}
    s_mov_b32 s{S_SPIN}, 200000
    """)
    a.label(Lp)
    a.e(f"""
    s_waitcnt vmcnt(0)
    v_readfirstlane_b32 s{S_T}, v2
    s_cmp_lg_u32 s{S_T}, 0
    s_cbranch_scc1 {Lq}
    s_sub_u32 s{S_SPIN}, s{S_SPIN}, 1
    s_cmp_eq_u32 s{S_SPIN}, 0
    s_cbranch_scc1 {Lq}
    s_sleep 2
    v_mov_b32 v1, 0
    global_load_dword v2, v1, {sp(S_DBG)} sc1
    s_branch {Lp}
    """)
    a.label(Lq)
    a.e(f"""
    v_mov_b32 v1, {LDS_CNT+32}
    ds_write_b32 v1, v2
    """)
    a.label(Ln3)
    a.e("s_waitcnt lgkmcnt(0)")
    sh.mark('kgB')
    a.e("s_barrier")
    slot(2, sched[2])
    read_nonce_lds(a, 1)
    a.e("s_waitcnt vmcnt(6)")
    a.e("s_barrier")
    sh.mark('hS0')
    slot(3, sched[3])
    a.e("s_waitcnt vmcnt(6)")
    a.e("s_barrier")
    slot(4, sched[4])
    a.e("s_waitcnt vmcnt(6)")
    a.e("s_barrier")
    La = a.newlabel("Lsa")
    a.e(f"""
    s_cmp_lg_u32 s3, 4
    s_cbranch_scc1 {La}
    s_lshl_b32 s{S_T}, s{S_CT}, 5
    s_add_u32 s{S_T}, s{S_T}, s{S_RT}
    s_lshl_b32 s{S_T}, s{S_T}, 6
    s_add_u32 s{S_T}, s{S_T}, {FA_OFF}
    v_mov_b32 v1, 0
    v_mov_b32 v2, s{S_NONCE}
    s_mov_b64 s[{S_EX}:{S_EX+1}], exec
    s_mov_b64 exec, 1
    buffer_store_dword v2, v1, {sq(SRD_WS)}, s{S_T} offen sc1
    s_mov_b64 exec, s[{S_EX}:{S_EX+1}]
    """)
    a.label(La)
    slot(5, 0)
    a.e("s_waitcnt vmcnt(6)")
    a.e("s_barrier")
    slot(6, 0)
    a.e("s_waitcnt vmcnt(6)")
    a.e("s_barrier")
    sh.mark('hS4')
    slot(7, 0)
    def setfull(st):
        lds_arrive(a, F_FULL + 4*st, 1, 2)
    a.e(f"""
    s_mul_i32 s{t}, s{S_HW}, 43
    v_add_u32 v154, s{t}, v0
    v_lshrrev_b32 v155, 2, v154
    v_lshlrev_b32 v155, 10, v155
    v_and_b32 v154, 3, v154
    v_lshl_add_u32 v154, v154, 7, v155
    s_lshr_b32 s{t}, s2, 3
    s_mul_i32 s{t}, s{t}, {43*1024}
    s_and_b32 s{t+1}, s2, 1
    s_lshl_b32 s{t+1}, s{t+1}, 9
    s_add_u32 s{t}, s{t}, s{t+1}
    s_mov_b32 s64, s{S_W2}
    s_and_b32 s65, s{S_W2+1}, 0xffff
    s_mov_b32 s66, 1409024
    s_mov_b32 s67, 0x20000
    s_mov_b32 exec_lo, -1
    s_mov_b32 exec_hi, 0x7ff
    buffer_load_dword v164, v154, s[64:67], s{t} offen
    s_mov_b64 exec, -1
    """)
    a.e("s_waitcnt vmcnt(7)")
    setfull(6)
    a.e(f"""
    s_lshr_b32 s{S_T}, s{S_HW}, 1
    s_mul_i32 s80, s{S_T}, {U_CH}
    s_add_u32 s80, s80, {LDS_U + 16}
    s_mul_i32 s83, s{S_T}, {KC_STR}
    s_add_u32 s83, s83, {LDS_KG}
    s_lshl_b32 s{S_T}, s{S_KNH}, 6
    v_add_u32 v152, s{S_T}, v0
    """)
    a.e("s_waitcnt vmcnt(1)")
    setfull(7)
    sh.mark('kgC')
    if CFG.get('hp2'): a.e(f"s_setprio {CFG['hp2']}")
    kpost.finish(a, V, S_KNH, S_KTAB, 80, S_T+2)
    pair_sync(a, F_SYNC2, 1, 2)
    sh.mark('kfin')
    a.e(f"""
    v_lshlrev_b32 v150, 6, v0
    s_lshr_b32 s{S_T}, s2, 5
    s_lshl_b32 s{S_T}, s{S_T}, 11
    s_add_u32 s92, s{S_T}, {FA_OFF}
    """)
    poll_flags(a, 32, 150, 92, 151)
    a.e(f"""
    s_lshr_b32 s{S_T+1}, s{S_HW}, 1
    s_lshl_b32 s{S_T+2}, s2, 1
    s_add_u32 s{S_T+2}, s{S_T+2}, s{S_T+1}
    s_lshl_b32 s{S_T+2}, s{S_T+2}, 12
    s_add_u32 s{S_T+2}, s{S_T+2}, {WS_XNT}
    v_lshlrev_b32 v153, 4, v152
    buffer_load_dwordx4 v[156:159], v153, {sq(SRD_WS)}, s{S_T+2} offen sc1
    buffer_load_dwordx4 v[160:163], v153, {sq(SRD_WS)}, s{S_T+2} offen offset:2048 sc1
    s_mul_i32 s{S_T+3}, s{S_T+1}, {U_CH}
    s_add_u32 s{S_T+3}, s{S_T+3}, {LDS_U}
    v_add_u32 v153, s{S_T+3}, v153
    """)
    a.e("v_mov_b32 v8, v152")
    kpost.copies(a, 12, 8, S_KNH, 80, 83, KC_COPY)
    kpost.tail_patch(a, 12, S_KNH, 80, 83, KC_COPY)
    pair_sync(a, F_SYNC4, 1, 2)
    sh.mark('kcp')
    lds_wait_cnt(a, F_FREE+20, 4, 1, 2)
    if CFG.get('w2pf_late', 0):
        Lpf = a.newlabel("Lpf")
        a.e(f"s_cmp_lg_u32 s3, 7"); a.e(f"s_cbranch_scc1 {Lpf}")
        a.e(f"""
        s_lshr_b32 s{t}, s2, 3
        s_mul_i32 s{t}, s{t}, {43*1024}
        s_and_b32 s{t+1}, s2, 1
        s_lshl_b32 s{t+1}, s{t+1}, 9
        s_add_u32 s{t}, s{t}, s{t+1}
        v_lshrrev_b32 v154, 2, v0
        v_lshlrev_b32 v154, 10, v154
        v_and_b32 v155, 3, v0
        v_lshl_add_u32 v154, v155, 7, v154
        s_mov_b32 s64, s{S_W2}
        s_and_b32 s65, s{S_W2+1}, 0xffff
        s_mov_b32 s66, 1409024
        s_mov_b32 s67, 0x20000
        """)
        for i in range(3):
            a.e(f"s_add_u32 s{t+1}, s{t}, {i*16384}")
            a.e(f"buffer_load_dword v{164+i}, v154, s[64:67], s{t+1} offen")
        a.label(Lpf)
    a.e(f"""
    v_mov_b32 v72, 0
    v_mov_b32 v73, 0
    v_mov_b32 v74, 0
    v_mov_b32 v75, 0
    v_cmp_gt_u32 vcc, 30, v152
    s_and_saveexec_b64 s[{S_EX}:{S_EX+1}], vcc
    ds_write_b128 v153, v[72:75]
    s_mov_b64 exec, s[{S_EX}:{S_EX+1}]
    """)
    make_srd(a, SRD_W, S_W2, 1409024)
    p2_setup5(a, RH)
    w2_dma_lane(a, 232, 236)
    for g in w2_groups5(RH, [0,1], 232):
        for l in g: a.e(l)
    a.e("s_waitcnt vmcnt(8)")
    a.e(f"""
    ds_write_b128 v153, v[156:159] offset:{U_PAD}
    ds_write_b128 v153, v[160:163] offset:{U_PAD+2048}
    """)
    C = conv.conv_vmap(8)
    a.e(f"""
    s_lshr_b32 s{S_T}, s{S_HW}, 1
    s_mul_i32 s76, s{S_T}, {KC_STR}
    s_add_u32 s76, s76, {LDS_KG}
    s_mul_i32 s77, s{S_T}, {U_CH}
    s_add_u32 s77, s77, {LDS_U}
    s_and_b32 s78, s{S_HW}, 1
    """)
    conv.conv_addr_setup(a, C, 76, 77, 78, S_T)
    w2_read_lane5(a, 244, 1)
    a.e("s_waitcnt vmcnt(0)")
    w2_read5(a, RH, [0,1], 244)
    for g in w2_groups5(RH, [2,3], 232):
        for l in g: a.e(l)
    pair_sync(a, F_SYNC1, 1, 2)
    a.e("s_waitcnt vmcnt(0)")
    w2_read5(a, RH, [2,3], 244)
    sh.mark('hready')
    if CFG.get('hp2'): a.e("s_setprio 0")
    lds_wait_cnt(a, F_GELU, 4, 1, 2)
    sh.mark('cstart')
    conv.conv_main(a, C)
    sh.mark('conv')
    a.e(f"""
    s_lshr_b32 s{S_T}, s{S_HW}, 1
    s_lshl_b32 s79, s2, 1
    s_add_u32 s79, s79, s{S_T}
    s_lshl_b32 s79, s79, 12
    s_add_u32 s79, s79, {WS_AOT}
    """)
    conv_exchange_epilogue(a, C, 77, 35, 79)
    g2_pre(a)
    a.e("s_waitcnt vmcnt(3)")
    a.e(f"""
    s_lshl_b32 s{S_T}, s2, 6
    s_add_u32 s{S_T}, s{S_T}, {FC_OFF}
    """)
    lds_arrive_signal(a, 8, 4, S_T, 20)
    sh.mark('sigC')
    th = Stamps(a, stamp == 'h', base=SB); th.n = sh.n; th.names = list(sh.names)
    g2_main(a, RH, th.mark)
    a.label("L_tail")
    tail = Stamps(a, stamp is not None, base=SB)
    src = tg if stamp == 'g' else th
    tail.n = src.n if stamp else 0
    tail.names = list(src.names)
    final_part(a, tail.mark)
    a.e("s_waitcnt vmcnt(0)")
    if stamp: tail.dump()
    kernel_fused.names = tail.names
    a.label("L_end")
    a.e("s_endpgm")
    return (KNAME, a.text(), 256, 102)
```

```python
import sys, json
import common
import v8 as VM
from v8 import *
import v8 as VM
hdr = "".join(l for l in open("parallel_sum__ssm_conv_s4d__mixer_channel_mlp__prompt.s.ref").read().splitlines(True) if l.startswith(";") and "@launch" not in l and "Override launch" not in l and "grid=ceil" not in l)
def build(path, stamp):
    k = VM.kernel_fused(stamp)
    s = build_file(hdr, [], [k])
    s = s.replace('.amdgcn_target', f"; @launch grid=(256,1,1) block=(512,1,1) lds={LDS_TOTAL}\n.amdgcn_target", 1)
    open(path, "w").write(s)
    if stamp: json.dump(VM.kernel_fused.names, open(path.replace('.s','.json'), "w"))
    return s
def bs(name, role, want):
    common.Stamps.want = set(want); build(f"dev/{name}.s", role)
if __name__ == "__main__":
    CFG.clear()
    for kv in sys.argv[1:]:
        k, v = kv.split('='); CFG[k] = eval(v)
    common.Stamps.want = None
    s = build("f.s", None)
    print(len(s.splitlines()), len(s))
    sets = {
     'g1': ('g', ['start','xland','xn','S0']),
     'g2': ('g', ['start','S4','E0','epi']),
     'g3': ('g', ['start','sigB','hflag','g2mm']),
     'g4': ('g', ['start','ao','pw','fin']),
     'h1': ('h', ['start','par','kgA','kgB']),
     'h2': ('h', ['start','hS4','kgC','kfin']),
     'h3': ('h', ['start','kcp','hready','conv']),
     'h4': ('h', ['start','sigC','hflag','g2mm']),
    }
    for n,(r,w) in sets.items(): bs("f_"+n, r, w)
```
